```python
import torch

def _softmax(x, axis=-1):
    return torch.softmax(x, dim=axis)

def _gelu(x):
    return torch.nn.functional.gelu(x, approximate='tanh')

def _silu(x):
    return torch.nn.functional.silu(x)

def _sigmoid(x):
    return torch.sigmoid(x)

def _layernorm(x, axis=-1, eps=1e-05):
    m = x.mean(dim=axis, keepdim=True)
    v = x.var(dim=axis, keepdim=True, unbiased=False)
    return (x - m) / torch.sqrt(v + eps)

def _scatter_add(tgt, idx, src, axis=0):
    return tgt.clone().index_add_(axis, idx, src)

def _segment_sum(src, seg, n):
    out = torch.zeros((n,) + src.shape[1:], dtype=src.dtype)
    return out.index_add_(0, seg, src)

def _pad(x, pw):
    flat = tuple((v for pair in reversed(pw) for v in pair))
    return torch.nn.functional.pad(x, flat)
kernel_name = 'adaLN_cond__compressed_kv_cla__dense_activation_relu__decode'

def setup_inputs():

    _w = lambda a: (lambda t: t.to(torch.bfloat16) if t.is_floating_point() else t)(torch.as_tensor(a))

    def _A_setup():
        B, H, Sq, Sk, D, M = (8, 32, 1, 4096, 128, 512)
        Dc = 4 * D
        return {'x': _w((lambda *s: torch.randn(*s, dtype=torch.bfloat16) * 0.05)(B, Sq, M)), 'c_kv': _w((lambda *s: torch.randn(*s, dtype=torch.bfloat16) * 1.6)(B, Sk, Dc)), 'w_q': _w((lambda *s: torch.randn(*s, dtype=torch.bfloat16) * 1.6)(M, H, D) * M ** (-0.5)), 'w_uk': _w((lambda *s: torch.randn(*s, dtype=torch.bfloat16) * 1.6)(Dc, H, D) * Dc ** (-0.5)), 'w_uv': _w((lambda *s: torch.randn(*s, dtype=torch.bfloat16) * 1.6)(Dc, H, D) * Dc ** (-0.5)), 'w_o': _w((lambda *s: torch.randn(*s, dtype=torch.bfloat16) * 1.6)(H, D, M) * (H * D) ** (-0.5))}
    _A_in = _A_setup()

    def _B_setup():
        B, S, D, Dff = (8, 1, 512, 1792)
        return {'x': _w((lambda *s: torch.randn(*s, dtype=torch.bfloat16) * 0.05)(B, S, D)), 'w1': _w((lambda *s: torch.randn(*s, dtype=torch.bfloat16) * 0.05)(D, Dff)), 'w2': _w((lambda *s: torch.randn(*s, dtype=torch.bfloat16) * 0.05)(Dff, D))}
    _B_in = _B_setup()
    return {'A_x': _A_in['x'], 'A_c_kv': _A_in['c_kv'], 'A_w_q': _A_in['w_q'], 'A_w_uk': _A_in['w_uk'], 'A_w_uv': _A_in['w_uv'], 'A_w_o': _A_in['w_o'], 'B_x': _B_in['x'], 'B_w1': _B_in['w1'], 'B_w2': _B_in['w2'], 'c': _w((lambda *s: torch.randn(*s, dtype=torch.bfloat16) * 0.2)(8, 512) * 8.0), 'w_mod': _w((lambda *s: torch.randn(*s, dtype=torch.bfloat16) * 0.2)(512, 6 * 512) * 512 ** (-0.5) * 8.0)}

def reference(A_x, A_c_kv, A_w_q, A_w_uk, A_w_uv, A_w_o, B_x, B_w1, B_w2, c, w_mod):

    def _A_ref(x, c_kv, w_q, w_uk, w_uv, w_o):
        B, Sq, M = (x.shape[0], x.shape[1], x.shape[2])
        Sk = c_kv.shape[1]
        H, D = (w_q.shape[1], w_q.shape[2])
        q = torch.einsum('bqm,mhd->bhqd', x, w_q)
        k = torch.einsum('bkc,chd->bhkd', c_kv, w_uk)
        v = torch.einsum('bkc,chd->bhkd', c_kv, w_uv)
        scores = torch.einsum('bhqd,bhkd->bhqk', q, k) * D ** (-0.5)
        off = Sk - Sq
        qi = torch.arange(Sq)[:, None]
        kj = torch.arange(Sk)[None, :]
        cmask = kj <= qi + off
        scores = torch.where(cmask[None, None], scores, -1000000000.0)
        p = _softmax(scores, axis=-1)
        ctx = torch.einsum('bhqk,bhkd->bhqd', p, v)
        return torch.einsum('bhqd,hdm->bqm', ctx, w_o)

    def _B_ref(x, w1, w2):
        h = torch.einsum('bsd,df->bsf', x, w1)
        zero = torch.zeros_like(h)
        h = torch.maximum(h, zero)
        return torch.einsum('bsf,fd->bsd', h, w2)
    x = A_x
    mod = (_silu(c) @ w_mod).reshape(c.shape[0], 6, 1, -1)
    sa, ca, ga, sb, cb, gb = (mod[:, 0].clone(), mod[:, 1].clone(), mod[:, 2].clone(), mod[:, 3].clone(), mod[:, 4].clone(), mod[:, 5].clone())
    h = _layernorm(x, axis=-1) * (1 + ca) + sa
    x = x + ga * _A_ref(h, A_c_kv, A_w_q, A_w_uk, A_w_uv, A_w_o)
    h = _layernorm(x, axis=-1) * (1 + cb) + sb
    x = x + gb * _B_ref(h, B_w1, B_w2)
    return x
```

```python
import re

TRANS = ('v_exp_f32', 'v_log_f32', 'v_rcp_f32', 'v_rsq_f32', 'v_sqrt_f32', 'v_sin_f32', 'v_cos_f32',
         'v_rcp_iflag_f32')


def _regs(tok):
    tok = tok.strip()
    tok = tok.lstrip('-')
    m = re.match(r'^abs\((.*)\)$', tok) or re.match(r'^\|(.*)\|$', tok)
    if m:
        tok = m.group(1)
    m = re.match(r'^([vsa])(\d+)$', tok)
    if m:
        return {(m.group(1), int(m.group(2)))}
    m = re.match(r'^([vsa])\[(\d+):(\d+)\]$', tok)
    if m:
        return {(m.group(1), i) for i in range(int(m.group(2)), int(m.group(3)) + 1)}
    if tok in ('vcc', 'vcc_lo', 'vcc_hi'):
        return {('x', 'vcc')}
    if tok in ('exec', 'exec_lo', 'exec_hi'):
        return {('x', 'exec')}
    if tok == 'm0':
        return {('x', 'm0')}
    return set()


class Ins:
    __slots__ = ('text', 'op', 'ops', 'mods', 'kind', 'wr', 'rd', 'srcc', 'srcab', 'passes', 'states', 'target',
                 'dpp', 'label', 'stdata', 'lanesel', 'sdwa')

    def __init__(self, text):
        self.text = text
        self.label = None
        self.target = None
        t = text.split(';')[0].strip()
        if t.endswith(':'):
            self.label = t[:-1]
            self.op = None
            self.kind = 'label'
            self.states = 0
            self.wr = set()
            self.rd = set()
            return
        if t.startswith('.') or not t:
            self.op = None
            self.kind = 'directive'
            self.states = 0
            self.wr = set()
            self.rd = set()
            return
        parts = t.split(None, 1)
        op = parts[0]
        rest = parts[1] if len(parts) > 1 else ''
        ops = []
        cur = ''
        depth = 0
        for ch in rest:
            if ch in '[(':
                depth += 1
            if ch in '])':
                depth -= 1
            if ch == ',' and depth == 0:
                ops.append(cur.strip())
                cur = ''
            else:
                cur += ch
        mods = ''
        if cur.strip():
            last = cur.strip().split(None, 1)
            ops.append(last[0])
            mods = last[1] if len(last) > 1 else ''
        self.op, self.ops, self.mods = op, ops, mods
        self.dpp = '_dpp' in op
        self.sdwa = '_sdwa' in op
        self.srcc = set()
        self.srcab = set()
        self.passes = 0
        self.stdata = set()
        self.lanesel = set()
        self.states = 1
        R = [_regs(o) for o in ops]
        allr = set().union(*R) if R else set()
        wr, rd = set(), set()
        base = re.sub(r'_(e32|e64|dpp|sdwa)$', '', op)
        if op == 's_nop':
            self.kind = 'nop'
            self.states = int(ops[0], 0) + 1
        elif op.startswith('v_mfma'):
            self.kind = 'mfma'
            wr = R[0]
            self.srcab = R[1] | R[2]
            self.srcc = R[3]
            rd = self.srcab | self.srcc
            self.passes = 8 if '32x32x16' in op else 4
        elif op.startswith('v_'):
            self.kind = 'trans' if base in TRANS else 'valu'
            if base.startswith('v_cmp'):
                wr = R[0]
                rd = set().union(*R[1:])
            elif base.startswith('v_permlane'):
                wr = R[0] | R[1]
                rd = R[0] | R[1]
            elif base in ('v_readlane_b32', 'v_writelane_b32'):
                wr = R[0]
                rd = R[1] | R[2]
                self.lanesel = R[2]
                if base == 'v_writelane_b32':
                    rd |= R[0]
            elif base in ('v_add_co_u32', 'v_sub_co_u32', 'v_addc_co_u32', 'v_subb_co_u32', 'v_div_scale_f32',
                          'v_mad_u64_u32'):
                wr = R[0] | R[1]
                rd = set().union(*R[2:])
            else:
                wr = R[0]
                rd = set().union(*R[1:]) if len(R) > 1 else set()
                if base in ('v_fmac_f32', 'v_pk_fmac_f16', 'v_dot2c_f32_bf16') or self.dpp or self.sdwa:
                    rd |= R[0]
                if base == 'v_cndmask_b32' and len(ops) == 3:
                    rd |= {('x', 'vcc')}
        elif op.startswith('ds_'):
            self.kind = 'ds'
            if op.startswith('ds_read') or op.startswith('ds_bpermute') or op.startswith('ds_permute') \
                    or op.startswith('ds_swizzle'):
                wr = R[0]
                rd = set().union(*R[1:])
            else:
                rd = allr
        elif op.startswith('buffer_') or op.startswith('global_'):
            self.kind = 'vmem'
            islds = ' lds' in (' ' + mods) or '_lds_' in op
            if 'load' in op and not islds:
                wr = R[0]
                rd = set().union(*R[1:])
            else:
                rd = allr
                if islds:
                    rd = rd | {('x', 'm0')}
                    self.kind = 'vmem_lds'
                if 'store' in op and ('x3' in op or 'x4' in op):
                    self.stdata = R[0] if op.startswith('buffer_') else R[1]
        elif op.startswith('s_'):
            self.kind = 'salu'
            if op in ('s_branch',) or op.startswith('s_cbranch'):
                self.kind = 'branch'
                self.target = ops[0]
            elif op in ('s_waitcnt', 's_barrier', 's_sleep', 's_setprio', 's_endpgm', 's_sethalt'):
                pass
            elif op.startswith('s_cmp') or op.startswith('s_bitcmp'):
                rd = allr
            elif op.startswith('s_load') or op.startswith('s_buffer_load') or op.startswith('s_mem'):
                self.kind = 'smem'
                wr = R[0]
                rd = set().union(*R[1:]) if len(R) > 1 else set()
            elif op in ('s_setpc_b64',):
                rd = allr
                self.kind = 'jump'
            elif op in ('s_swappc_b64',):
                wr = R[0]
                rd = R[1]
                self.kind = 'call'
            else:
                wr = R[0]
                rd = set().union(*R[1:]) if len(R) > 1 else set()
                if 'saveexec' in op:
                    wr = wr | {('x', 'exec')}
        else:
            raise ValueError('unknown instruction: ' + text)
        self.wr, self.rd = wr, rd


def isv(rs):
    return {r for r in rs if r[0] in 'va'}


def iss(rs):
    return {r for r in rs if r[0] == 's' or r == ('x', 'vcc')}


def required(p, c):
    need = 0
    pk, ck = p.kind, c.kind
    pvalu = pk in ('valu', 'trans')
    cvalu = ck in ('valu', 'trans')
    cvmem = ck in ('vmem', 'vmem_lds')
    if pvalu:
        wv = isv(p.wr)
        ws = iss(p.wr)
        if ck == 'mfma' and wv & c.rd:
            need = max(need, 2)
        if cvalu:
            if c.dpp and wv & c.rd:
                need = max(need, 2)
            if c.op.startswith('v_permlane') and wv & c.rd:
                need = max(need, 2)
            if (c.op.startswith('v_readlane') or c.op.startswith('v_readfirstlane')) and wv & c.rd:
                need = max(need, 1)
            if ws & c.rd:
                need = max(need, 2)
            if ws & c.lanesel:
                need = max(need, 4)
            if pk == 'trans' and ck != 'trans' and wv & c.rd:
                need = max(need, 1)
            if pk == 'trans' and ck == 'trans' and wv & c.rd:
                need = max(need, 1)
            if p.sdwa and wv & (c.rd | c.wr):
                need = max(need, 1)
        if cvmem and ws & c.rd:
            need = max(need, 5)
        if ck == 'mfma' and pk == 'trans' and wv & c.rd:
            need = max(need, 2)
    if pk == 'mfma':
        d = p.wr
        big = 12 if p.passes == 8 else 8
        if ck == 'mfma':
            if d & c.srcab:
                need = max(need, big)
            if d & c.srcc:
                if not (c.srcc == d and c.passes == p.passes):
                    need = max(need, 10 if p.passes == 8 else 6)
            elif d & c.wr:
                need = max(need, big)
        elif cvalu:
            if d & (c.rd | c.wr):
                need = max(need, big)
            if p.srcc & c.wr:
                need = max(need, 7 if p.passes == 8 else 3)
        elif cvmem or ck == 'ds':
            if d & (c.rd | c.wr):
                need = max(need, big)
    if pk == 'salu' and ('x', 'm0') in p.wr and ck == 'vmem_lds':
        need = max(need, 1)
    if pk == 'vmem' and p.stdata:
        if cvalu and p.stdata & c.wr:
            need = max(need, 2)
        elif ck == 'mfma' and p.stdata & c.wr:
            need = max(need, 2)
        elif p.stdata & c.wr:
            need = max(need, 1)
    return need


MAXD = 12


class Asm:
    def __init__(self):
        self.lines = []

    def __call__(self, s):
        for l in s.split('\n'):
            l = l.strip()
            if l:
                self.lines.append(l)

    def finalize(self, calls=None):
        ins = [Ins(l) for l in self.lines]
        out = []
        srcs = {}
        for i, x in enumerate(ins):
            if x.target:
                srcs.setdefault(x.target, []).append(i)
        pads = [0] * len(ins)

        def scan(c, i, dist, seen):
            need = 0
            while i >= 0 and dist < MAXD:
                x = ins[i]
                if x.kind == 'label':
                    for s in srcs.get(x.label, []):
                        key = (s, dist)
                        if key not in seen:
                            seen.add(key)
                            need = max(need, scan(c, s, dist, seen))
                    j = i - 1
                    while j >= 0 and ins[j].kind in ('directive',):
                        j -= 1
                    if j >= 0 and ins[j].op in ('s_branch', 's_endpgm', 's_setpc_b64'):
                        return need
                    dist += pads[i]
                    i -= 1
                    continue
                if x.kind == 'directive':
                    i -= 1
                    continue
                r = required(x, c)
                if r > dist:
                    need = max(need, r - dist)
                dist += x.states + pads[i]
                i -= 1
            return need

        for i, c in enumerate(ins):
            if c.kind in ('label', 'directive', 'nop'):
                continue
            pads[i] = scan(c, i - 1, 0, set())
        for i, c in enumerate(ins):
            n = pads[i]
            while n > 0:
                k = min(n, 16)
                out.append('    s_nop %d' % (k - 1))
                n -= k
            out.append(c.text if c.kind == 'label' else '    ' + c.text)
        return '\n'.join(out) + '\n'
```

```python
import sys, os
sys.path.insert(0, os.path.dirname(os.path.abspath(__file__)))
from asmlib import Asm

NAME = 'adaLN_cond__compressed_kv_cla__dense_activation_relu__decode'

CFG = dict(
    sflag=1, slowp=1, sparse=0, depth=10, sl_qa0=0, flag_at=2, h4=3, n0=8, npre=32, spread='2,10,8,6,6', sl_y0=0, sl_pub=0, sl_q2=0, sl_ctx=0, pq2=1, p_wm='-', p_w1='-', p_w2='-', p_wo='-',
    ts=0,
    poll_max=60000,
    nt='nt',
    ntw='nt',
)
for a_ in sys.argv[2:]:
    k_, v_ = a_.split('=')
    CFG[k_] = int(v_) if v_.lstrip('-').isdigit() else v_
NT = CFG['nt'] if CFG['nt'] != '-' else ''
NTW = CFG['ntw'] if CFG['ntw'] != '-' else ''

EPOCH = 0
MOD1 = CFG.get("o_mod1", CFG.get("wsoff", 0)) * 0x40000 + 0x1000
XID = CFG.get("o_xid", CFG.get("wsoff", 0)) * 0x40000 + 0x19000
FLG = CFG.get("o_flg", CFG.get("wsoff", 0)) * 0x40000 + 0x11000
FK = CFG.get("o_fk", CFG.get("wsoff", 0)) * 0x40000 + 0x15000
F3 = CFG.get("o_f3", CFG.get("wsoff", 0)) * 0x40000 + 0x20000
F4 = CFG.get("o_f4", CFG.get("wsoff", 0)) * 0x40000 + 0x24000
DBR = CFG.get("o_dbr", CFG.get("wsoff", 0)) * 0x40000 + 0x28000
CLR_E = CFG.get("o_clr_e", CFG.get("wsoff", 0)) * 0x40000 + 0x30000
QA = CLR_E
MODL = QA + 0x40000
STATS = MODL + 0x8000
FLG = STATS + 0x8000
CLR_L = FLG + 0x4000
CTX = CLR_L
OPART = CTX + 0x40000
F3, F4 = OPART + 0x10000, OPART + 0x14000
YP = OPART + 0x18000
CLR_E_PER = (CLR_L - CLR_E) // 128
CLR_L_PER = (YP - CLR_L) // 128
Q2 = YP + 128 * 7168
M2 = Q2 + 0x80000
OP = M2 + 0x80000
WS_END = OP + 0x400000
MSH = CFG.get('msh', 12)
if MSH > 9:
    MOD1 = WS_END
    WS_END += 128 << MSH
TSB = 0xe00000
WS_SIZE = 0xf00000

L_WUV = 0
L_W1 = 32768
L_W2 = 0
L_WO = 32768
L_WQ = 98304
MISC = 131072
L_WM = MISC
L_WML = MISC + 8192
SCR = MISC + 24576
L_XN = L_WO
L_RED1 = MISC + 16384
L_WM1 = MISC
L_SF = L_WO + 12288
L_H = L_WO + 16384
L_QL = L_WO + 20480
L_RED3 = L_WQ
PBUF = MISC
L_MX = MISC + 5120
L_ALPHA = MISC + 6144
L_FLAG = MISC + 6272
L_LS = MISC + 6400
L_XB = MISC + 8192
L_H2 = MISC + 8192
L_FP = MISC + 21504
L_ST = MISC + 26624
L_XOK = SCR + 4352
L_WT = SCR
L_CC = SCR + 2048
LDS_BYTES = 163840

sX_, sKV, sWQ, sWUK, sWUV, sWO, sW1, sW2, sC, sWM, sOUT, sWS = [4 + 4 * i for i in range(12)]


def srd(n):
    return f's[{n}:{n + 3}]'


sXC, sR, sU, sSID, sW, sE, sTLO, sTHI, sH, sCQ, sBH, sCNT = range(52, 64)
sT0, sT1, sT2, sT3, sT4, sT5 = range(64, 70)
sEX = 70
sLNK = 72
sTGT = 74
sPE, sPO = 76, 77
sKB = 78
sWB = sBH
sXT = sW1
sXID, sLOC = sW1, sW1 + 1
sA0, sA1 = sW2 + 1, sW2 + 2
sM0, sM1 = sW1 + 2, sW1 + 3
sMS = sW2 + 3
sCX = sW2
sTS = 80
NTS = 11

A = Asm()
POL = {}
for nm_, s_ in (('wm', sWM), ('wq', sWQ), ('wuk', sWUK), ('wuv', sWUV), ('wo', sWO), ('w1', sW1), ('w2', sW2)):
    if 'p_' + nm_ in CFG:
        POL[s_] = CFG['p_' + nm_].replace('-', '')
_late = [0]
_lab = [0]


def lab(p='L'):
    _lab[0] += 1
    return f'{p}_{_lab[0]}'


def v4(n):
    return f'v[{n}:{n + 3}]'


def v2(n):
    return f'v[{n}:{n + 1}]'


def TF(i):
    if CFG['ts'] and CFG.get('tsfront', 0):
        A(f's_memrealtime s[{sTS + 2 * i}:{sTS + 2 * i + 1}]')


def TL(i):
    if CFG['ts'] and CFG.get('tslate', 0):
        A(f's_memrealtime s[{sTS + 2 * i}:{sTS + 2 * i + 1}]')


def TP(i):
    if CFG['ts'] and CFG.get('tsstep', -1) == 200:
        A(f's_memtime s[{sTS + 2 * i}:{sTS + 2 * i + 1}]')


def TC(i, j):
    if CFG['ts'] and CFG.get('tsstep', -1) == j:
        A(f's_memtime s[{sTS + 2 * i}:{sTS + 2 * i + 1}]')


def TS(i):
    if CFG['ts'] and not (CFG.get('tsfront', 0) and i >= 3) and not (CFG.get('tsstep', -1) >= 0 and i >= 1):
        assert i < NTS
        A(f's_memrealtime s[{sTS + 2 * i}:{sTS + 2 * i + 1}]')


def exec_set(lo, hi):
    A(f's_mov_b32 exec_lo, {lo:#x}')
    A(f's_mov_b32 exec_hi, {hi:#x}')


def exec_all():
    A('s_mov_b64 exec, -1')


def rne1(d, s):
    A(f'v_cvt_pk_bf16_f32 v{d}, 0, v{s}')


def rne2(d0, d1, s0, s1):
    rne1(d0, s0)
    rne1(d1, s1)


def unpack(dst, src, n):
    for i in range(n):
        A(f'v_lshlrev_b32 v{dst + 2 * i}, 16, v{src + i}')
        A(f'v_and_b32 v{dst + 2 * i + 1}, 0xffff0000, v{src + i}')


DPPM = 'row_mask:0xf bank_mask:0xf'


def row_reduce(op, regs):
    for sh in (8, 4, 2, 1):
        for r in regs:
            A(f'{op}_dpp v{r}, v{r}, v{r} row_ror:{sh} {DPPM}')


def wave_sum(regs, sdst):
    row_reduce('v_add_f32', regs)
    for r in regs:
        A(f'v_add_f32_dpp v{r}, v{r}, v{r} row_bcast:15 row_mask:0xa bank_mask:0xf')
    for r in regs:
        A(f'v_add_f32_dpp v{r}, v{r}, v{r} row_bcast:31 row_mask:0xc bank_mask:0xf')
    for r, s in zip(regs, sdst):
        A(f'v_readlane_b32 s{s}, v{r}, 63')


def max_tree(regs, tmp):
    regs = list(regs)
    if len(regs) == 1:
        A(f'v_mov_b32 v{tmp}, v{regs[0]}')
        return
    if len(regs) == 2:
        A(f'v_max_u32 v{tmp}, v{regs[0]}, v{regs[1]}')
        return
    A(f'v_max3_u32 v{tmp}, v{regs[0]}, v{regs[1]}, v{regs[2]}')
    regs = regs[3:]
    while len(regs) >= 2:
        A(f'v_max3_u32 v{tmp}, v{tmp}, v{regs[0]}, v{regs[1]}')
        regs = regs[2:]
    if regs:
        A(f'v_max_u32 v{tmp}, v{tmp}, v{regs[0]}')


def poll(loads, check_regs, tmp, sleep=1, pre_sleep=0, check=None):
    top, done = lab('poll'), lab('pdone')
    A(f's_mov_b32 s{sCNT}, {CFG["poll_max"]}')
    if pre_sleep:
        A(f's_sleep {pre_sleep}')
    A(f'{top}:')
    loads()
    A('s_waitcnt vmcnt(0)')
    if check:
        check()
    else:
        max_tree(check_regs, tmp)
        A(f'v_cmp_eq_u32 vcc, -1, v{tmp}')
    A(f's_cbranch_vccz {done}')
    if sleep:
        A(f's_sleep {sleep}')
    A(f's_sub_u32 s{sCNT}, s{sCNT}, 1')
    A(f's_cbranch_scc0 {top}')
    A(f'{done}:')


def hint_pub(region, wave, vt, st):
    sk = lab('nohint')
    A(f's_cmp_lg_u32 s{sW}, {wave}')
    A(f's_cbranch_scc1 {sk}')
    A(f's_lshl_b32 s{st}, s{sSID}, 7')
    A(f's_add_u32 s{st}, s{st}, {region}')
    A(f'v_mov_b32 v{vt}, s{sE}')
    A(f'v_mov_b32 v{vt + 1}, 0')
    exec_set(1, 0)
    A(f'buffer_store_dword v{vt}, v{vt + 1}, {srd(sWS)}, s{st} offen sc1')
    exec_all()
    A(f'{sk}:')


def hint_wait(s_off, st, sleep=0):
    top, done = lab('hw'), lab('hd')
    A(f's_mov_b32 s{sCNT}, {CFG["poll_max"]}')
    A(f'{top}:')
    A(f's_load_dword s{st}, s[{sWS}:{sWS + 1}], s{s_off} glc')
    A('s_waitcnt lgkmcnt(0)')
    A(f's_cmp_eq_u32 s{st}, s{sE}')
    A(f's_cbranch_scc1 {done}')
    if sleep:
        A(f's_sleep {sleep}')
    A(f's_sub_u32 s{sCNT}, s{sCNT}, 1')
    A(f's_cbranch_scc0 {top}')
    A(f'{done}:')


def layernorm_rows(x, t, out_bf):
    A(f'v_readfirstlane_b32 s{sT0}, v{x}')
    for i in range(8):
        A(f'v_subrev_f32 v{t + i}, s{sT0}, v{x + i}')
    A(f'v_add_f32 v{t + 8}, v{t}, v{t + 1}')
    A(f'v_mul_f32 v{t + 9}, v{t}, v{t}')
    A(f'v_fmac_f32 v{t + 9}, v{t + 1}, v{t + 1}')
    for i in range(2, 8):
        A(f'v_add_f32 v{t + 8}, v{t + 8}, v{t + i}')
        A(f'v_fmac_f32 v{t + 9}, v{t + i}, v{t + i}')
    wave_sum([t + 8, t + 9], [sT1, sT2])
    inv = '0x3b000000'
    A(f'v_mov_b32 v{t}, {inv}')
    A(f'v_mul_f32 v{t + 1}, s{sT1}, v{t}')
    A(f'v_mul_f32 v{t + 2}, s{sT2}, v{t}')
    A(f'v_fma_f32 v{t + 2}, -v{t + 1}, v{t + 1}, v{t + 2}')
    A(f'v_max_f32 v{t + 2}, 0, v{t + 2}')
    A(f'v_add_f32 v{t + 1}, s{sT0}, v{t + 1}')
    rne2(t + 1, t + 2, t + 1, t + 2)
    A(f'v_add_f32 v{t + 2}, 0x3727c5ac, v{t + 2}')
    rne1(t + 2, t + 2)
    A(f'v_sqrt_f32 v{t + 2}, v{t + 2}')
    for i in range(8):
        A(f'v_sub_f32 v{x + i}, v{x + i}, v{t + 1}')
    rne1(t + 2, t + 2)
    A(f'v_rcp_f32 v{t + 2}, v{t + 2}')
    for i in range(0, 8, 2):
        rne2(x + i, x + i + 1, x + i, x + i + 1)
    for i in range(8):
        A(f'v_mul_f32 v{x + i}, v{x + i}, v{t + 2}')
    if out_bf is not None:
        for i in range(4):
            A(f'v_cvt_pk_bf16_f32 v{out_bf + i}, v{x + 2 * i}, v{x + 2 * i + 1}')
    else:
        for i in range(0, 8, 2):
            rne2(x + i, x + i + 1, x + i, x + i + 1)


def dma(voff, srd_, soff, lds_s=None, lds_imm=None, off=0, pol=None):
    if lds_s is not None:
        A(f's_mov_b32 m0, s{lds_s}')
    elif lds_imm is not None:
        A(f's_mov_b32 m0, {lds_imm}')
    if pol is None:
        pol = POL.get(srd_, NTW)
    if CFG.get('x_skip', 0) and _late[0]:
        return
    o = f' offset:{off}' if off else ''
    A(f'buffer_load_dwordx4 v{voff}, {srd(srd_)}, {soff} offen{o} {pol} lds')


VTR = 6
VR16 = 7
VWO = 192
VWOA = 5
sT4P = 79


SIZES = {sX_: 8192, sKV: 33554432, sWQ: 4194304, sWUK: 4194304, sWUV: 4194304, sWO: 4194304,
         sW1: 1835008, sW2: 1835008, sC: 8192, sWM: 3145728, sOUT: 8192, sWS: WS_SIZE}


def srd_tail(*regs):
    for s in regs:
        A(f's_mov_b32 s{s + 2}, {SIZES[s]}')
        A(f's_mov_b32 s{s + 3}, 0x00020000')


def late_ptrs(*regs):
    offs = {sWUV: 32, sWO: 40, sW1: 56, sW2: 64, sOUT: 88}
    A(f's_load_dword s{sE}, s[{sWS}:{sWS + 1}], {EPOCH}')
    for s in regs:
        A(f's_load_dwordx2 s[{s}:{s + 1}], s[0:1], {offs[s]}')
    srd_tail(*regs)


def cfrag_off():
    A('v_and_b32 v4, 7, v1')
    A('v_lshlrev_b32 v4, 10, v4')
    A('v_lshrrev_b32 v5, 3, v1')
    A('v_lshl_add_u32 v4, v5, 6, v4')
    A('v_lshl_add_u32 v4, v2, 4, v4')


def prologue():
    A('s_cmp_ge_u32 s2, 256')
    A('s_cbranch_scc1 L_end')
    TS(0)
    if CFG['ts']:
        A(f's_memtime s[{sEX}:{sEX + 1}]')
    for s, off in ((sC, 72), (sWM, 80), (sWS, 104), (sKV, 8), (sX_, 0), (sWQ, 16), (sWUK, 24)):
        A(f's_load_dwordx2 s[{s}:{s + 1}], s[0:1], {off}')
    A('v_mov_b32 v3, v0')
    A('v_lshrrev_b32 v4, 6, v0')
    A('v_and_b32 v0, 63, v0')
    A(f'v_readfirstlane_b32 s{sW}, v4')
    A('v_and_b32 v1, 15, v0')
    A('v_lshrrev_b32 v2, 4, v0')
    A(f's_and_b32 s{sXC}, s2, 7')
    A(f's_lshr_b32 s{sR}, s2, 3')
    A(f's_and_b32 s{sU}, s{sR}, 15')
    A(f's_lshl_b32 s{sSID}, s{sXC}, 4')
    A(f's_add_u32 s{sSID}, s{sSID}, s{sU}')
    A('v_lshlrev_b32 v16, 4, v3')
    srd_tail(sC, sWM, sWS, sX_)
    cfrag_off()
    A(f's_cmp_ge_u32 s{sR}, 16')
    A('s_cbranch_scc1 L_att0')
    A(f's_cmp_lg_u32 s{sW}, 0')
    A('s_cbranch_scc1 L_svc0')


def make_tag():
    A(f's_mul_i32 s{sE}, s{sE}, 0x9e3779b1')
    A(f's_add_u32 s{sE}, s{sE}, 0x7f4a7c15')
    A(f's_and_b32 s{sTLO}, s{sE}, 0xffff')
    A(f's_lshr_b32 s{sTHI}, s{sE}, 16')


def code_prefetch(vt):
    A(f's_getpc_b64 s[{sT0}:{sT1}]')
    here = lab('pc')
    A(f'{here}:')
    A(f's_sub_u32 s{sT0}, s{sT0}, {here}-{NAME}_kernel')
    A(f's_subb_u32 s{sT1}, s{sT1}, 0')
    A(f's_lshl_b32 s{sT2}, s{sW}, 4')
    A(f's_add_u32 s{sT2}, s{sT2}, s{sU}')
    A(f's_lshl_b32 s{sT2}, s{sT2}, 10')
    sk = lab('cpf')
    A(f's_cmp_ge_u32 s{sT2}, L_code_end-{NAME}_kernel')
    A(f's_cbranch_scc1 {sk}')
    A(f's_min_u32 s{sT2}, s{sT2}, L_code_end-{NAME}_kernel-1024')
    A(f'v_lshl_add_u32 v{vt}, v0, 4, s{sT2}')
    A(f'global_load_dwordx4 v[64:67], v{vt}, s[{sT0}:{sT1}]')
    A(f'{sk}:')


def silu_frag(src_=8, dst=24, n=4, fill=None):
    unpack(64, src_, n)
    t = 64 + 2 * n
    for i in range(2 * n):
        A(f'v_mul_f32 v{t + i}, 0xbfb8aa3b, v{64 + i}')
    for i in range(2 * n):
        A(f'v_exp_f32 v{t + i}, v{t + i}')
    if fill:
        fill()
    for i in range(2 * n):
        A(f'v_add_f32 v{t + i}, 1.0, v{t + i}')
    for i in range(2 * n):
        A(f'v_rcp_f32 v{t + i}, v{t + i}')
    for i in range(2 * n):
        A(f'v_mul_f32 v{64 + i}, v{64 + i}, v{t + i}')
    for i in range(n):
        A(f'v_cvt_pk_bf16_f32 v{dst + i}, v{64 + 2 * i}, v{65 + 2 * i}')


def tree_add(base, n, stop):
    while n > stop:
        n //= 2
        for i in range(n):
            A(f'v_add_f32 v{base + i}, v{base + i}, v{base + n + i}')


def pub_flag(w):
    sk = lab('noflg')
    A(f's_cmp_lg_u32 s{sW}, {w}')
    A(f's_cbranch_scc1 {sk}')
    A(f'v_mov_b32 v76, s{sE}')
    A(f'v_not_b32 v77, v76')
    A(f's_lshl_b32 s{sT3}, s{sSID}, 7')
    A(f's_add_u32 s{sT3}, s{sT3}, {FLG}')
    A('v_lshlrev_b32 v78, 3, v0')
    exec_set(0xffff, 0)
    A(f'buffer_store_dwordx2 v[76:77], v78, {srd(sWS)}, s{sT3} offen sc1')
    exec_all()
    A(f'{sk}:')


def tagbytes(v):
    A(f'v_and_b32 v{v}, 1, v0')
    A(f'v_lshlrev_b32 v{v}, 4, v{v}')
    A(f'v_lshrrev_b32 v{v}, v{v}, s{sE}')
    A(f'v_bfe_u32 v{v + 1}, v{v}, 8, 8')
    A(f'v_and_b32 v{v}, 0xff, v{v}')


def poll8(loads, base, tg, sleep, first_issued=False, pre_sleep=0, ntg=2, n=8, first_wait=0):
    top, done = lab('poll'), lab('pdone')
    A(f's_mov_b32 s{sCNT}, {CFG["poll_max"]}')
    if pre_sleep:
        A(f's_sleep {pre_sleep}')
    if not first_issued:
        loads()
    if first_wait is not None:
        A(f's_waitcnt vmcnt({first_wait})')
    A(f'{top}:')
    for i in range(n):
        A(f'v_xor_b32 v{base + i}, v{base + i}, v{tg + (i & (ntg - 1))}')
    t = base + n
    A(f'v_or3_b32 v{t}, v{base}, v{base + 1}, v{base + 2}')
    A(f'v_or3_b32 v{t + 1}, v{base + 3}, v{base + 4}, v{base + 5}')
    for i in range(6, n, 2):
        k = t + ((i >> 1) + 1 & 1)
        A(f'v_or3_b32 v{k}, v{k}, v{base + i}, v{base + i + 1}')
    A(f'v_or_b32 v{t}, v{t}, v{t + 1}')
    A(f'v_and_b32 v{t}, 0xff, v{t}')
    A(f'v_cmp_ne_u32 vcc, 0, v{t}')
    A(f's_cbranch_vccz {done}')
    if sleep:
        A(f's_sleep {sleep}')
    loads()
    A(f's_sub_u32 s{sCNT}, s{sCNT}, 1')
    A('s_waitcnt vmcnt(0)')
    A(f's_cbranch_scc0 {top}')
    A(f'{done}:')


def tile_addr():
    A(f's_lshr_b32 s{sH}, s{sSID}, 2')
    A(f's_and_b32 s{sCQ}, s{sU}, 3')
    A('v_lshlrev_b32 v29, 13, v2')
    A(f's_and_b32 s{sT5}, s{sW}, 3')
    A(f's_lshl_b32 s{sT3}, s{sCQ}, 20')
    A(f's_lshl_b32 s{sT4}, s{sT5}, 18')
    A(f's_add_u32 s{sT3}, s{sT3}, s{sT4}')
    A(f's_lshl_b32 s{sT4}, s{sH}, 8')
    A(f's_add_u32 s{sT3}, s{sT3}, s{sT4}')
    A(f's_lshl_b32 s{sT4}, s{sT5}, 13')


def ln_x():
    unpack(96, 8, 4)
    layernorm_rows(96, 72, 84)
    A(f'ds_write_b128 v16, v[84:87] offset:{L_XN}')


def wave_if(cond, val, body, other=None):
    inv = {'lt': 'ge', 'ge': 'lt', 'eq': 'lg', 'lg': 'eq'}[cond]
    sk, dn = lab('wi'), lab('wd')
    A(f's_cmp_{inv}_u32 s{sW}, {val}')
    A(f's_cbranch_scc1 {sk}')
    body()
    if other:
        A(f's_branch {dn}')
    A(f'{sk}:')
    if other:
        other()
        A(f'{dn}:')


def xid_reg():
    A(f's_getreg_b32 s{sXID}, hwreg(HW_REG_XCC_ID)')
    A(f's_not_b32 s{sT3}, s{sE}')
    A(f's_xor_b32 s{sXID}, s{sT3}, s{sXID}')
    for r in range(4):
        A(f'v_bfe_u32 v{12 + r}, s{sE}, {8 * r}, 8')


def wm_addr():
    A('v_lshrrev_b32 v32, 3, v0')
    A('v_mul_u32_u24 v32, 6144, v32')
    A('v_add_u32 v32, v32, v95')
    A('v_xor_b32 v33, 64, v32')
    A(f's_lshl_b32 s{sT0}, s{sCQ}, 2')
    A(f's_add_u32 s{sT0}, s{sT0}, s{sT5}')
    A(f's_mul_i32 s{sA0}, s{sT0}, {32 * 6144}')
    A(f's_lshl_b32 s{sT0}, s{sH}, 7')
    A(f's_add_u32 s{sA0}, s{sA0}, s{sT0}')
    A(f's_add_u32 s{sA0}, s{sA0}, 2048')
    A(f's_lshl_b32 s{sA1}, s{sT5}, 12')
    A(f's_add_u32 s{sA1}, s{sA1}, {L_WML}')


def wm_go():
    for k in range(4):
        A(f's_add_u32 s{sT0}, s{sA0}, {8 * 6144 * k}')
        A(f's_add_u32 m0, s{sA1}, {1024 * k}')
        dma(32 + (k & 1), sWM, f's{sT0}', pol=NTW)


WMAT = CFG.get('wmat', 0)


def service_issue():
    A('L_svc0:')
    A('v_lshlrev_b32 v17, 4, v0')
    A('s_waitcnt lgkmcnt(0)')
    TF(3)
    A(f's_load_dword s{sE}, s[{sWS}:{sWS + 1}], {EPOCH}')
    A(f'buffer_load_dwordx4 v[8:11], v16, {srd(sX_)}, 0 offen')
    wave_if('eq', 3, lambda: A(f'buffer_load_dwordx4 v[40:43], v17, {srd(sX_)}, 0 offen'))
    A('s_branch L_svc')


def service_b2():
    if WMAT == 0:
        wave_if('ge', 4, lambda: (wm_go(), TF(4), A('s_waitcnt vmcnt(4)')), lambda: A('s_waitcnt vmcnt(0)'))
    else:
        A('s_waitcnt vmcnt(0)')
    TF(6)
    A('v_mov_b32 v44, v16')
    A(f's_cmp_eq_u32 s{sW}, 3')
    A(f's_cselect_b32 s{sT4}, 1, 0')
    A('L_ln:')
    unpack(96, 8, 4)
    layernorm_rows(96, 72, 84)
    A(f'ds_write_b128 v44, v[84:87] offset:{L_XN}')
    for i in range(4):
        A(f'v_mov_b32 v{8 + i}, v{40 + i}')
    A('v_lshlrev_b32 v44, 4, v0')
    A(f's_sub_u32 s{sT4}, s{sT4}, 1')
    A('s_cbranch_scc0 L_ln')
    A('s_waitcnt lgkmcnt(0)')
    make_tag()
    xid_reg()
    A(f's_cmp_lt_u32 s{sW}, 4')
    A('s_cbranch_scc1 L_svc3')
    srd_tail(sWQ)
    tile_addr()
    A('v_lshlrev_b32 v30, 1, v2')
    A('v_xor_b32 v30, v30, v1')
    A('v_lshl_add_u32 v30, v30, 4, v29')
    A('v_xor_b32 v31, 128, v30')
    TF(8)
    A('s_barrier')
    TF(9)
    for i in range(8):
        A(f's_add_u32 s{sT0}, s{sT3}, {4 * 8192 * i}')
        A(f's_add_u32 m0, s{sT4}, {L_WQ + 1024 * i}')
        dma(30 + ((i >> 1) & 1), sWQ, f's{sT0}')
    A('v_xor_b32 v30, v1, v2')
    A('v_lshl_add_u32 v30, v30, 4, v29')
    for i in range(8):
        if i & 1 == 0:
            A(f'v_xor_b32 v31, {64 * (i >> 1)}, v30')
        A(f's_add_u32 s{sT0}, s{sT3}, {4 * 8192 * i}')
        A(f's_add_u32 m0, s{sT4}, {1024 * i}')
        dma(31, sWUK, f's{sT0}')
    if WMAT == 2:
        wm_go()
    TF(5)
    A('s_branch L_svc4')
    A('L_svc3:')
    for i in range(4):
        A(f'v_mov_b32 v{68 + i}, -1')
    A(f's_mul_i32 s{sT3}, s{sSID}, {CLR_L_PER}')
    A(f's_add_u32 s{sT3}, s{sT3}, {CLR_L - 1024}')
    A(f'v_min_u32 v30, {CLR_L_PER + 1024 - 16}, v16')
    A(f'buffer_store_dwordx4 v[68:71], v30, {srd(sWS)}, s{sT3} offen sc1')

    def xid_pub():
        A(f'v_mov_b32 v66, s{sE}')
        A(f'v_mov_b32 v67, s{sXID}')
        A(f's_lshl_b32 s{sT4}, s{sSID}, 7')
        A(f's_add_u32 s{sT4}, s{sT4}, {XID}')
        exec_set(0xffff, 0)
        A(f'buffer_store_dwordx2 v[66:67], v17, {srd(sWS)}, s{sT4} offen sc1')
        exec_all()
    wave_if('eq', 1, xid_pub)
    A(f's_and_b32 s{sT2}, s{sW}, 1')
    A(f's_lshl_b32 s{sT2}, s{sT2}, 2')
    A(f's_add_u32 s{sT2}, s{sT2}, s{sCQ}')
    A(f's_lshl_b32 s{sT2}, s{sT2}, 4')
    A(f's_and_b32 s{sT3}, s{sH}, 15')
    A(f's_add_u32 s{sT2}, s{sT2}, s{sT3}')
    A(f's_lshl_b32 s{sT2}, s{sT2}, {MSH}')
    A(f's_add_u32 s{sT2}, s{sT2}, {MOD1 + 1024}')
    TF(8)
    A('s_barrier')
    TF(9)
    if CFG.get('hh', 1):
        A(f's_cmp_eq_u32 s{sW}, 3')
        A('s_cbranch_scc1 L_svc4')
        hint_wait(sT2, sT3)


def service_pre():
    A('L_svc:')
    for s_, o_ in ((sWUV, 32), (sWO, 40), (sOUT, 88)):
        A(f's_load_dwordx2 s[{s_}:{s_ + 1}], s[0:1], {o_}')
    srd_tail(sWUV, sWO, sOUT, sWUK, sKV)
    tile_addr()
    A(f's_mov_b32 s{sPE}, 0x05040100')
    A(f's_mov_b32 s{sPO}, 0x07060302')
    A('v_lshrrev_b32 v17, 2, v1')
    A('v_and_b32 v38, 3, v1')
    A('v_lshl_add_u32 v28, v2, 3, v17')
    A('v_lshlrev_b32 v36, 8, v28')
    A('v_lshl_add_u32 v36, v38, 3, v36')
    A(f'v_lshlrev_b32 v{VWOA}, 7, v28')
    A(f'v_lshl_add_u32 v{VWOA}, v38, 3, v{VWOA}')
    A('v_bfe_u32 v28, v1, 3, 1')
    A(f'v_lshl_add_u32 v{VWOA}, v28, 5, v{VWOA}')
    A('v_and_b32 v37, 1, v2')
    A(f'v_lshl_add_u32 v{VWOA}, v37, 6, v{VWOA}')
    A('v_and_b32 v19, 7, v1')
    A('v_lshlrev_b32 v95, 1, v37')
    A('v_xor_b32 v95, v95, v19')
    A('v_lshlrev_b32 v95, 4, v95')
    A('v_lshl_add_u32 v37, v37, 2, v17')
    A(f'v_xor_b32 v37, s{sW}, v37')
    A('v_lshl_add_u32 v36, v37, 5, v36')
    A(f's_lshl_b32 s{sT2}, s{sW}, 5')
    A('v_bfe_u32 v28, v0, 2, 3')
    A('v_and_b32 v21, 3, v0')
    A('v_lshrrev_b32 v22, 5, v0')
    A('v_lshl_add_u32 v22, v21, 1, v22')
    A('v_mul_u32_u24 v20, 272, v28')
    A('v_lshl_add_u32 v20, v22, 2, v20')
    A(f'v_add_u32 v20, s{sT2}, v20')
    A('v_lshlrev_b32 v24, 10, v28')
    A('v_lshl_add_u32 v24, v22, 2, v24')
    A(f's_lshl_b32 s{sT0}, s{sCQ}, 8')
    A(f's_add_u32 s{sT0}, s{sT0}, s{sT2}')
    A(f'v_add_u32 v21, s{sT0}, v24')
    A('v_mul_u32_u24 v22, 272, v19')
    A('v_lshrrev_b32 v28, 3, v1')
    A('v_lshl_add_u32 v22, v28, 6, v22')
    A('v_lshl_add_u32 v22, v2, 4, v22')
    A('v_lshlrev_b32 v17, 3, v0')
    A('v_lshlrev_b32 v23, 6, v19')
    A('v_lshl_add_u32 v23, v2, 4, v23')
    A('v_and_b32 v26, 31, v0')
    A('v_lshlrev_b32 v26, 4, v26')
    A('v_lshrrev_b32 v28, 5, v0')
    A('v_lshl_add_u32 v39, v28, 12, v26')
    A(f'v_lshl_add_u32 v26, v28, {MSH}, v26')
    A(f'v_add_u32 v27, {2 << MSH}, v26')

    wm_addr()
    A(f's_lshl_b32 s{sT0}, s{sCQ}, {MSH + 4}')
    A(f's_lshr_b32 s{sT1}, s{sW}, 1')
    A(f's_lshl_b32 s{sT1}, s{sT1}, {MSH + 2}')
    A(f's_add_u32 s{sT0}, s{sT0}, s{sT1}')
    A(f's_and_b32 s{sT1}, s{sW}, 1')
    A(f's_lshl_b32 s{sT1}, s{sT1}, 9')
    A(f's_add_u32 s{sT0}, s{sT0}, s{sT1}')
    A(f's_add_u32 s{sM0}, s{sT0}, {MOD1}')
    A(f's_add_u32 s{sM1}, s{sM0}, {64 << MSH}')
    A('v_lshlrev_b32 v34, 7, v2')
    A(f's_lshl_b32 s{sLOC}, s{sH}, 9')
    A(f's_add_u32 s{sLOC}, s{sLOC}, {XID}')
    A(f's_cmp_eq_u32 s{sW}, 0')
    A('s_cbranch_scc1 L_svc4')
    service_b2()
    A('L_svc4:')

    def ld1():
        A(f'buffer_load_dwordx4 v[68:71], v26, {srd(sWS)}, s{sM1} offen sc1')
        A(f'buffer_load_dwordx4 v[76:79], v27, {srd(sWS)}, s{sM1} offen sc1')
        A(f'buffer_load_dwordx4 v[64:67], v26, {srd(sWS)}, s{sM0} offen sc1')
        A(f'buffer_load_dwordx4 v[72:75], v27, {srd(sWS)}, s{sM0} offen sc1')

    A('s_waitcnt lgkmcnt(0)')
    TF(10)
    A('s_barrier')
    TS(1)
    ld1()
    A(f'buffer_load_dwordx2 v[90:91], v34, {srd(sWS)}, s{sLOC} offen sc1')
    wave_if('ge', 4, lambda: A(f's_waitcnt vmcnt({13 + 4 * (WMAT == 2)})'))
    A('s_barrier')
    A(f'ds_read_b32 v84, v21 offset:{L_XN}')
    A(f'v_add_u32 v30, {L_WQ}, v36')
    for t in range(4):
        for eh in range(2):
            A(f'ds_read_b64_tr_b16 {v2(96 + 4 * t + 2 * eh)}, v30 offset:{t * 8192 + eh * 1024}')

    A(f's_lshl_b32 s{sT2}, s{sSID}, 12')
    A(f's_lshl_b32 s{sT3}, s{sW}, 9')
    A(f's_add_u32 s{sT2}, s{sT2}, s{sT3}')
    A(f's_add_u32 s{sT2}, s{sT2}, {Q2}')
    A(f's_mov_b32 s{sT4}, 0xff')
    A('s_waitcnt lgkmcnt(8)')
    unpack(88, 84, 1)
    poll8(ld1, 64, 12, CFG.get('sl_h', 1), first_issued=True, ntg=4, n=16)
    TS(2)
    for r in range(8):
        A(f'v_add_f32 v{64 + (r ^ 4)}, v{64 + (r ^ 4)}, v{72 + (r ^ 4)}')
    for p in (68, 69, 64, 65):
        A(f'v_permlane32_swap_b32 v{p}, v{p + 2}')
    A('v_add_f32 v68, v68, v70')
    A('v_add_f32 v69, v69, v71')
    A('v_add_f32 v64, v64, v66')
    A('v_add_f32 v65, v65, v67')
    rne2(68, 69, 68, 69)
    rne2(64, 65, 64, 65)
    A('v_add_f32 v68, 1.0, v68')
    A('v_add_f32 v69, 1.0, v69')
    rne2(68, 69, 68, 69)
    A('v_mul_f32 v68, v68, v88')
    A('v_mul_f32 v69, v69, v89')
    rne2(68, 69, 68, 69)
    A('v_add_f32 v68, v68, v64')
    A('v_add_f32 v69, v69, v65')
    A('v_cvt_pk_bf16_f32 v68, v68, v69')
    A(f'ds_write_b32 v20, v68 offset:{L_H}')
    A('s_waitcnt lgkmcnt(0)')
    A('s_barrier')
    A(f'ds_read_b128 v[64:67], v22 offset:{L_H}')
    A(f'ds_read_b128 v[68:71], v22 offset:{L_H + 128}')
    A(f'v_xor_b32 v90, s{sE}, v90')
    A(f'v_xor_b32 v91, s{sXID}, v91')
    A('v_or_b32 v90, v90, v91')
    A('v_cmp_ne_u32 vcc, 0, v90')
    A(f's_lshl_b32 s{sT0}, s{sH}, 14')
    A(f's_add_u32 s{sT0}, s{sT0}, s{sT3}')
    A(f's_add_u32 s{sT0}, s{sT0}, {Q2}')
    A(f's_add_u32 s{sT1}, s{sT0}, 8192')
    A('s_waitcnt lgkmcnt(1)')
    A('v_mfma_f32_16x16x32_bf16 v[112:115], v[96:99], v[64:67], 0')
    A('v_mfma_f32_16x16x32_bf16 v[116:119], v[100:103], v[64:67], 0')
    A('s_waitcnt lgkmcnt(0)')
    A('v_mfma_f32_16x16x32_bf16 v[112:115], v[104:107], v[68:71], v[112:115]')
    A('v_mfma_f32_16x16x32_bf16 v[116:119], v[108:111], v[68:71], v[116:119]')
    for r in range(4):
        A(f'v_add_f32_dpp v{112 + r}, v{116 + r}, v{112 + r} row_ror:8 {DPPM}')
    for r in range(4):
        A(f'v_bfi_b32 v{112 + r}, s{sT4}, v{12 + r}, v{112 + r}')
    exec_set(0x00ff00ff, 0x00ff00ff)
    far, dn = lab('far'), lab('dn')
    A(f's_cbranch_vccnz {far}')
    A(f'buffer_store_dwordx4 v[112:115], v23, {srd(sWS)}, s{sT2} offen')
    A(f's_branch {dn}')
    A(f'{far}:')
    A(f'buffer_store_dwordx4 v[112:115], v23, {srd(sWS)}, s{sT2} offen sc1')
    A(f'{dn}:')
    exec_all()
    TS(3)

    def uk_frag():
        A('v_lshrrev_b32 v40, 2, v1')
        A('v_lshl_add_u32 v40, v40, 3, v38')
        A('v_lshlrev_b32 v40, 8, v40')
        A(f's_lshl_b32 s{sT5}, s{sW}, 13')
        A(f'v_add_u32 v40, s{sT5}, v40')
        A('v_xor_b32 v41, v1, v2')
        A('v_lshlrev_b32 v30, 15, v19')
        A('v_lshl_add_u32 v30, v2, 4, v30')
        A(f's_lshr_b32 s{sT5}, s{sH}, 4')
        A(f's_lshl_b32 s{sT5}, s{sT5}, 14')
        A(f's_lshl_b32 s{sT2}, s{sCQ}, 12')
        A(f's_add_u32 s{sT5}, s{sT5}, s{sT2}')
        A(f's_lshl_b32 s{sT2}, s{sW}, 10')
        A(f's_add_u32 s{sT5}, s{sT5}, s{sT2}')
        A(f's_and_b32 s{sT2}, s{sH}, 15')
        A(f's_lshl_b32 s{sT2}, s{sT2}, 6')
        A(f's_add_u32 s{sT5}, s{sT5}, s{sT2}')
        A(f's_add_u32 s{sT5}, s{sT5}, {QA}')
        for t in range(4):
            A(f'v_xor_b32 v42, {4 * t}, v41')
            A('v_lshl_add_u32 v42, v42, 4, v40')
            for tau in range(2):
                A(f'ds_read_b128 {v4(128 + 16 * tau + 4 * t)}, v42 offset:{1024 * tau}')

    def wm_frag():
        A('v_lshlrev_b32 v40, 4, v0')
        A(f'ds_read_b128 v[128:131], v40 offset:{L_SF}')
        A(f'ds_read_b128 v[132:135], v40 offset:{L_SF + 1024}')
        A(f's_and_b32 s{sT5}, s{sW}, 3')
        A(f's_lshl_b32 s{sT2}, s{sT5}, 5')
        A(f'v_xor_b32 v41, s{sT2}, v{VWOA}')
        A(f'v_add_u32 v41, {L_WML}, v41')
        A(f's_lshl_b32 s{sT5}, s{sT5}, 9')
        A(f's_lshl_b32 s{sT2}, s{sSID}, 12')
        A(f's_add_u32 s{sT5}, s{sT5}, s{sT2}')
        A(f's_add_u32 s{sT5}, s{sT5}, {M2}')
    wave_if('lt', 4, uk_frag, wm_frag)

    def ld2():
        A(f'buffer_load_dwordx4 v[64:67], v39, {srd(sWS)}, s{sT0} offen sc1')
        A(f'buffer_load_dwordx4 v[68:71], v39, {srd(sWS)}, s{sT1} offen sc1')

    def sum4():
        for r in range(4):
            A(f'v_add_f32 v{64 + r}, v{64 + r}, v{68 + r}')
        A('v_permlane32_swap_b32 v64, v66')
        A('v_permlane32_swap_b32 v65, v67')
        A('v_add_f32 v64, v64, v66')
        A('v_add_f32 v65, v65, v67')
    poll8(ld2, 64, 12, 0, pre_sleep=CFG.get('sl_q2', 1), ntg=4)
    TS(4)
    sum4()
    A('v_cvt_pk_bf16_f32 v64, v64, v65')
    A(f'ds_write_b32 v20, v64 offset:{L_QL}')
    A('s_waitcnt lgkmcnt(0)')
    A('s_barrier')
    if CFG.get('flag_at', 0) == 0:
        pub_flag(4)

    def p3():
        A(f'ds_read_b128 v[64:67], v22 offset:{L_QL}')
        A(f'ds_read_b128 v[68:71], v22 offset:{L_QL + 128}')
        A('s_waitcnt lgkmcnt(0)')
        for tau in range(2):
            A(f'v_mfma_f32_16x16x32_bf16 {v4(96 + 8 * tau)}, {v4(128 + 16 * tau)}, v[64:67], 0')
            A(f'v_mfma_f32_16x16x32_bf16 {v4(100 + 8 * tau)}, {v4(132 + 16 * tau)}, v[64:67], 0')
        for tau in range(2):
            A(f'v_mfma_f32_16x16x32_bf16 {v4(96 + 8 * tau)}, {v4(136 + 16 * tau)}, v[68:71], {v4(96 + 8 * tau)}')
            A(f'v_mfma_f32_16x16x32_bf16 {v4(100 + 8 * tau)}, {v4(140 + 16 * tau)}, v[68:71], {v4(100 + 8 * tau)}')
        for tau in range(2):
            for r in range(4):
                A(f'v_add_f32_dpp v{96 + 8 * tau + r}, v{100 + 8 * tau + r}, v{96 + 8 * tau + r} row_ror:8 {DPPM}')
        for tau in range(2):
            for i in range(2):
                A(f'v_cvt_pk_bf16_f32 v{72 + 2 * tau + i}, v{96 + 8 * tau + 2 * i}, v{97 + 8 * tau + 2 * i}')
        exec_set(0x00ff00ff, 0x00ff00ff)
        A(f'buffer_store_dwordx4 v[72:75], v30, {srd(sWS)}, s{sT5} offen sc1')
        exec_all()
        if CFG.get('flag_at', 0) == 2:
            A('s_waitcnt vmcnt(0)')
        if CFG.get('flag_at', 0) >= 1:
            pub_flag(3)

    def modl():
        for t in range(4):
            for eh in range(2):
                A(f'ds_read_b64_tr_b16 {v2(64 + 4 * t + 2 * eh)}, v41 offset:{t * 4096 + eh * 512}')
        for t in range(4):
            A(f's_waitcnt lgkmcnt({6 - 2 * t})')
            d = 96 + 4 * (t & 1)
            A(f'v_mfma_f32_16x16x32_bf16 {v4(d)}, {v4(64 + 4 * t)}, {v4(128 + 4 * (t >> 1))}, ' + ('0' if t < 2 else v4(d)))
        for r in range(4):
            A(f'v_add_f32_dpp v{96 + r}, v{100 + r}, v{96 + r} row_ror:8 {DPPM}')
        for r in range(4):
            A(f'v_bfi_b32 v{96 + r}, s{sT4}, v{12 + r}, v{96 + r}')
        exec_set(0x00ff00ff, 0x00ff00ff)
        A(f'buffer_store_dwordx4 v[96:99], v23, {srd(sWS)}, s{sT5} offen sc1')
        exec_all()
    wave_if('lt', 4, p3, modl)
    TS(5)
    A('v_and_b32 v30, 1, v0')
    A('v_lshlrev_b32 v30, 7, v30')
    A(f's_lshl_b32 s{sT5}, s{sXC}, 11')
    A(f's_lshl_b32 s{sT2}, s{sW}, 8')
    A(f's_add_u32 s{sT5}, s{sT5}, s{sT2}')
    A(f's_add_u32 s{sT5}, s{sT5}, {XID}')
    A('v_bfe_u32 v37, v1, 2, 1')
    A('v_lshlrev_b32 v37, 12, v37')
    A('v_lshl_add_u32 v37, v38, 5, v37')
    A('v_lshl_add_u32 v37, v2, 3, v37')
    A(f's_lshl_b32 s{sCX}, s{sH}, 13')
    A(f's_lshl_b32 s{sT2}, s{sCQ}, 10')
    A(f's_add_u32 s{sCX}, s{sCX}, s{sT2}')
    A(f's_lshl_b32 s{sT2}, s{sW}, 7')
    A(f's_add_u32 s{sCX}, s{sCX}, s{sT2}')
    A(f's_add_u32 s{sCX}, s{sCX}, {CTX}')
    A(f's_lshl_b32 s{sT0}, s{sH}, 14')
    A(f's_lshl_b32 s{sT1}, s{sCQ}, 9')
    A(f's_add_u32 s{sT0}, s{sT0}, s{sT1}')
    A(f's_add_u32 s{sT0}, s{sT0}, {M2}')
    A(f's_add_u32 s{sT1}, s{sT0}, 8192')
    npf = CFG.get('npf', 16)
    R = (npf + 7) // 8
    if npf:
        per = npf * 8 // R
        assert per * R == npf * 8
        A('v_lshlrev_b32 v119, 7, v0')
        A(f's_lshl_b32 s{sT3}, s{sSID}, 18')
        A(f's_mul_i32 s{sT2}, s{sW}, {per * 128}')
        A(f's_add_u32 s{sT3}, s{sT3}, s{sT2}')
        A(f's_add_u32 s{sT3}, s{sT3}, {(32 - npf) * 8192}')
    A('s_barrier')
    wave_if('eq', 5, ld2)
    A(f'buffer_load_dwordx2 v[90:91], v30, {srd(sWS)}, s{sT5} offen sc1')
    A(f'buffer_load_dwordx2 v[92:93], v37, {srd(sWS)}, s{sCX} offen sc1')
    for i in range(R):
        m = (1 << per) - 1
        if per < 64:
            exec_set(m & 0xffffffff, m >> 32)
        A(f'buffer_load_dword v{118 - i}, v119, {srd(sKV)}, s{sT3} offen')
        if per < 64:
            exec_all()
        A(f's_add_u32 s{sT3}, s{sT3}, {per * 128 * 8}')
        A('s_barrier')
    TL(1)
    A(f's_waitcnt vmcnt({R + 1})')
    A(f'v_xor_b32 v90, s{sE}, v90')
    A(f'v_xor_b32 v91, s{sXID}, v91')
    A('v_or_b32 v90, v90, v91')
    A('v_and_b32 v91, 1, v0')
    A(f's_lshl_b32 s{sT2}, s{sW}, 3')
    A(f's_add_u32 s{sT2}, s{sT2}, {L_XOK}')
    A(f'v_lshl_add_u32 v91, v91, 2, s{sT2}')
    A('ds_write_b32 v91, v90')

    def modl_fin():
        poll8(ld2, 64, 12, 2, first_issued=True, ntg=4, first_wait=None)
        sum4()
        A(f's_lshr_b32 s{sT2}, s{sSID}, 5')
        A(f's_lshl_b32 s{sT1}, s{sT2}, 13')
        A(f's_and_b32 s{sT3}, s{sSID}, 31')
        A(f's_lshl_b32 s{sT3}, s{sT3}, 5')
        A(f's_add_u32 s{sT1}, s{sT1}, s{sT3}')
        A(f's_add_u32 s{sT1}, s{sT1}, {MODL}')
        A(f's_cmp_eq_u32 s{sT2}, 2')
        A(f's_cselect_b32 s{sT2}, 1.0, 0')
        rne2(64, 65, 64, 65)
        A(f'v_add_f32 v64, s{sT2}, v64')
        A(f'v_add_f32 v65, s{sT2}, v65')
        A('v_cvt_pk_bf16_f32 v64, v64, v65')
        A(f'buffer_store_dword v64, v24, {srd(sWS)}, s{sT1} offen sc1')
    wave_if('eq', 5, modl_fin)
    TL(2)
    wuv_dma(range(4), wave_s=sW, nwaves=8, vt=28)
    if CFG.get('uvb', 1):
        A('s_barrier')
    TL(3)
    A(f's_lshl_b32 s{sWB}, s{sU}, 2')
    A(f's_add_u32 s{sWB}, s{sWB}, s{sW}')
    A(f's_and_b32 s{sWB}, s{sWB}, 7')
    A('v_lshrrev_b32 v17, 3, v0')
    A('v_lshlrev_b32 v17, 10, v17')
    A('v_add_u32 v17, v17, v95')
    A('v_xor_b32 v18, 64, v17')
    A(f's_lshl_b32 s{sT1}, s{sXC}, 19')
    A(f's_lshl_b32 s{sT2}, s{sWB}, 16')
    A(f's_add_u32 s{sT1}, s{sT1}, s{sT2}')
    A(f's_lshr_b32 s{sT2}, s{sU}, 1')
    A(f's_xor_b32 s{sT2}, s{sT2}, {CFG.get("nsx", 4)}')
    A(f's_lshl_b32 s{sT2}, s{sT2}, 7')
    A(f's_add_u32 s{sT1}, s{sT1}, s{sT2}')
    A(f's_lshl_b32 s{sT2}, s{sW}, 13')
    A(f's_add_u32 s{sT2}, s{sT2}, {L_WO}')
    A(f'v_add_u32 v{VWOA}, s{sT2}, v{VWOA}')
    for i in range(8):
        dma(17 + (i & 1), sWO, f's{sT1}', lds_s=sT2)
        if i < 7:
            A(f's_add_u32 s{sT1}, s{sT1}, {8 * 1024}')
            A(f's_add_u32 s{sT2}, s{sT2}, 1024')
    TL(4)


def wuv_dma(idx, wave_s, nwaves, vt):
    per = 32 // nwaves
    A(f'v_and_b32 v{vt}, 1, v2')
    A(f'v_lshlrev_b32 v{vt}, 18, v{vt}')
    A(f'v_lshrrev_b32 v{vt + 1}, 1, v2')
    A(f'v_lshl_add_u32 v{vt}, v{vt + 1}, 17, v{vt}')
    A(f'v_lshlrev_b32 v{vt + 1}, 1, v2')
    A(f'v_xor_b32 v{vt + 1}, v{vt + 1}, v1')
    A(f'v_lshl_add_u32 v{vt}, v{vt + 1}, 4, v{vt}')
    A(f'v_xor_b32 v{vt + 1}, 128, v{vt}')
    A(f's_lshl_b32 s{sT1}, s{sCQ}, 20')
    A(f's_mul_i32 s{sT2}, s{wave_s}, {per // 2 * 8192}')
    A(f's_add_u32 s{sT1}, s{sT1}, s{sT2}')
    A(f's_lshl_b32 s{sT2}, s{sH}, 8')
    A(f's_add_u32 s{sT1}, s{sT1}, s{sT2}')
    A(f's_mul_i32 s{sT2}, s{wave_s}, {per * 1024}')
    assert L_WUV == 0
    for i in idx:
        A(f's_add_u32 s{sT3}, s{sT1}, {((i & 1) * 64 + (i >> 1)) * 8192}')
        A(f's_add_u32 s{sT4}, s{sT2}, {i * 1024}')
        dma(vt + ((i >> 1) & 1), sWUV, f's{sT3}', lds_s=sT4)


def t1():
    _late[0] = 0
    A('v_and_b32 v38, 3, v1')
    A('v_lshlrev_b32 v32, 10, v2')
    A('v_lshl_add_u32 v32, v1, 4, v32')
    A(f's_lshl_b32 s{sT0}, s{sSID}, 15')
    A(f's_lshl_b32 s{sT1}, s{sW}, 12')
    A(f's_add_u32 s{sT0}, s{sT0}, s{sT1}')
    A(f's_add_u32 s{sT0}, s{sT0}, {OP}')
    A(f's_lshl_b32 s{sT2}, s{sW}, 8')
    A(f's_add_u32 s{sT2}, s{sT2}, {L_WT}')
    A('v_and_b32 v33, 1, v1')
    A('v_lshlrev_b32 v33, 5, v33')
    A('v_lshl_add_u32 v33, v2, 3, v33')
    A(f'v_add_u32 v33, s{sT2}, v33')
    A('v_lshlrev_b32 v44, 5, v2')
    A('v_lshl_add_u32 v44, v1, 1, v44')
    A(f'v_add_u32 v44, s{sT2}, v44')
    A(f's_mul_i32 s{sT2}, s{sW}, 272')
    A(f's_add_u32 s{sT2}, s{sT2}, {L_CC}')
    A('v_lshlrev_b32 v34, 4, v1')
    A(f'v_add_u32 v34, s{sT2}, v34')
    A('v_mul_u32_u24 v35, 272, v19')
    A('v_lshl_add_u32 v35, v2, 4, v35')
    A(f'v_add_u32 v35, {L_CC}, v35')
    A('v_lshlrev_b32 v49, 3, v38')
    A(f'v_lshrrev_b32 v49, v49, s{sE}')
    for k in range(4):
        A(f'v_bfe_u32 v{8 + k}, v49, {2 * k}, 1')
        A(f'v_bfe_u32 v48, v49, {2 * k + 1}, 1')
        A(f'v_lshl_or_b32 v{8 + k}, v48, 16, v{8 + k}')
    if CFG.get('stl', 0):
        A('v_lshlrev_b32 v39, 5, v1')
        A(f's_lshl_b32 s{sT2}, s{sXC}, 12')
        A(f's_lshl_b32 s{sT3}, s{sW}, 9')
        A(f's_add_u32 s{sT2}, s{sT2}, s{sT3}')
        A(f's_and_b32 s{sT3}, s{sH}, 3')
        A(f's_lshl_b32 s{sT3}, s{sT3}, 3')
        A(f's_add_u32 s{sT2}, s{sT2}, s{sT3}')
        A(f's_add_u32 s{sT2}, s{sT2}, {STATS}')
    else:
        A('v_lshlrev_b32 v39, 8, v1')
        A(f's_lshl_b32 s{sT2}, s{sW}, 12')
        A(f's_lshl_b32 s{sT3}, s{sH}, 3')
        A(f's_add_u32 s{sT2}, s{sT2}, s{sT3}')
        A(f's_add_u32 s{sT2}, s{sT2}, {STATS}')
    t2_setup()
    A('v_lshlrev_b32 v91, 2, v1')
    A(f'v_add_u32 v91, {L_XOK}, v91')
    A('s_waitcnt vmcnt(8) lgkmcnt(0)')
    A('s_barrier')
    A('ds_read_b32 v90, v91')
    for t in range(4):
        for eh in range(2):
            A(f'ds_read_b64_tr_b16 {v2(112 + 4 * t + 2 * eh)}, v36 offset:{L_WUV + t * 8192 + eh * 1024}')
    A('s_waitcnt lgkmcnt(8)')
    A('v_cmp_ne_u32 vcc, 0, v90')
    A(f's_or_b32 s{sLOC}, vcc_lo, vcc_hi')
    if CFG.get('st1', 1):
        A(f's_waitcnt vmcnt({CFG.get("st1w", 4)})')
        A(f'buffer_load_dwordx2 v[40:41], v39, {srd(sWS)}, s{sT2} offen sc1')
    A('s_waitcnt vmcnt(0)')
    for nt in range(4):
        A(f'v_xor_b32 v47, {nt * 32}, v{VWOA}')
        for t in range(2):
            for eh in range(2):
                A(f'ds_read_b64_tr_b16 {v2(VWO + 16 * t + 4 * nt + 2 * eh)}, v47 offset:{t * 4096 + eh * 512}')
    TS(6)
    lst = lambda: A(f'buffer_load_dwordx2 v[40:41], v39, {srd(sWS)}, s{sT2} offen sc1')

    def ldd():
        for e in range(4):
            A(f'buffer_load_dwordx4 {v4(64 + 4 * e)}, v32, {srd(sWS)}, s{sT0} offen offset:{256 * e} sc1')
    if CFG.get('db', -1) >= 0:
        A('v_lshlrev_b32 v41, 2, v1')
        A(f's_lshl_b32 s{sT3}, s{sXC}, 10')
        A(f's_lshl_b32 s{sT4}, s{sW}, 7')
        A(f's_add_u32 s{sT3}, s{sT3}, s{sT4}')
        A(f's_add_u32 s{sT3}, s{sT3}, {DBR}')
        poll(lambda: A(f'buffer_load_dword v40, v41, {srd(sWS)}, s{sT3} offen sc1'), None, 47, sleep=CFG.get('sl_st', 1),
             check=lambda: A(f'v_cmp_ne_u32 vcc, s{sE}, v40'))
        TS(7)
        if CFG.get('sl_op', 0):
            A(f's_sleep {CFG["sl_op"]}')
        lst()
        ldd()
        A('s_waitcnt vmcnt(4)')
        A('v_max_u32 v47, v40, v41')
        A('v_cmp_eq_u32 vcc, -1, v47')
        okst = lab('okst')
        A(f's_cbranch_vccz {okst}')
        poll(lst, [40, 41], 47, sleep=0)
        A(f'{okst}:')
    else:
        got = lab('gotst')
        if CFG.get('st1', 1):
            A('v_max_u32 v47, v40, v41')
            A('v_cmp_eq_u32 vcc, -1, v47')
            A(f's_cbranch_vccz {got}')
            A('v_cmp_ne_u32 vcc, -1, v47')
            full = lab('full')
            A(f's_cbranch_vccnz {full}')
        if CFG.get('st_stage', 1):
            A(f'v_mov_b32 v41, s{sU}')
            A(f'v_lshlrev_b32 v41, {5 if CFG.get("stl", 0) else 8}, v41')
            poll(lambda: A(f'buffer_load_dword v40, v41, {srd(sWS)}, s{sT2} offen sc1'), [40], 47, sleep=CFG.get('sl_st0', 4))
        if CFG.get('st_stage', 1):
            A('v_mov_b32 v40, -1')
        if CFG.get('st1', 1):
            A(f'{full}:')
        if CFG.get('mpoll', 1):
            top, done = lab('poll'), lab('pdone')
            A(f's_mov_b32 s{sCNT}, {CFG["poll_max"]}')
            A(f'{top}:')
            A('v_max_u32 v47, v40, v41')
            A('v_cmp_eq_u32 vcc, -1, v47')
            A(f's_cbranch_vccz {done}')
            A('s_mov_b64 exec, vcc')
            lst()
            exec_all()
            A('s_waitcnt vmcnt(0)')
            A(f's_sub_u32 s{sCNT}, s{sCNT}, 1')
            A(f's_cbranch_scc0 {top}')
            A(f'{done}:')
        else:
            poll(lst, [40, 41], 47, sleep=CFG.get('sl_st', 1))
        A(f'{got}:')
        TS(7)
        ldd()
    A('v_mov_b32 v42, v40')
    row_reduce('v_max_f32', [42])
    A('v_sub_f32 v40, v40, v42')
    A('v_exp_f32 v40, v40')
    A('v_mul_f32 v41, v41, v40')
    row_reduce('v_add_f32', [41])
    A('v_rcp_f32 v41, v41')
    A('v_and_b32 v47, 1, v2')
    A('v_cmp_eq_u32 vcc, 1, v47')
    A('v_mul_f32 v40, v40, v41')
    A('v_cvt_pk_bf16_f32 v42, v40, v40')
    A('v_and_b32 v43, 0xffff0000, v42')
    A('v_sub_f32 v40, v40, v43')
    A('v_cvt_pk_bf16_f32 v43, v40, v40')
    A('v_cndmask_b32 v42, v42, v43, vcc')
    A('ds_write_b16 v44, v42')
    A('s_waitcnt lgkmcnt(0)')
    A('ds_read_b64 v[52:53], v33')
    top, done = lab('poll'), lab('pdone')
    A(f's_mov_b32 s{sCNT}, {CFG["poll_max"]}')
    A(f'{top}:')
    A('s_waitcnt vmcnt(0)')
    for i in range(16):
        A(f'v_xor_b32 v{80 + i}, v{64 + i}, v{8 + (i & 3)}')
    A('v_or3_b32 v47, v80, v81, v82')
    A('v_or3_b32 v48, v83, v84, v85')
    A('v_or3_b32 v47, v47, v86, v87')
    A('v_or3_b32 v48, v48, v88, v89')
    A('v_or3_b32 v47, v47, v90, v91')
    A('v_or3_b32 v48, v48, v92, v93')
    A('v_or3_b32 v47, v47, v94, v95')
    A('v_or_b32 v47, v47, v48')
    A('v_and_b32 v47, 0x00010001, v47')
    A('v_cmp_ne_u32 vcc, 0, v47')
    A(f's_cbranch_vccz {done}')
    ldd()
    A(f's_sub_u32 s{sCNT}, s{sCNT}, 1')
    A(f's_cbranch_scc0 {top}')
    A('s_waitcnt vmcnt(0)')
    A(f'{done}:')
    TS(8)
    for z in range(8):
        for i in range(2):
            sel = sPO if z & 1 else sPE
            A(f'v_perm_b32 v{64 + 2 * z + i}, v{80 + 8 * i + 4 + (z >> 1)}, v{80 + 8 * i + (z >> 1)}, s{sel}')
        if z & 1:
            for i in range(2):
                A(f'v_or_b32 v{64 + 2 * z + i}, 0x00010001, v{64 + 2 * z + i}')
        if z == 1:
            A('s_waitcnt lgkmcnt(0)')
        if z >= 1:
            A(f'v_mfma_f32_16x16x16_bf16 {v4(128 + 4 * (z - 1))}, v[52:53], {v2(64 + 2 * (z - 1))}, 0')
    A(f'v_mfma_f32_16x16x16_bf16 {v4(128 + 28)}, v[52:53], {v2(64 + 14)}, 0')
    for z in range(8):
        A(f'v_add_f32 v{128 + 4 * z}, v{128 + 4 * z}, v{129 + 4 * z}')
    for i in range(4):
        A(f'v_cvt_pk_bf16_f32 v{80 + i}, v{128 + 8 * i}, v{132 + 8 * i}')
    exec_set(0xffff, 0)
    A('ds_write_b128 v34, v[80:83]')
    exec_all()
    A('s_waitcnt lgkmcnt(0)')
    A('s_barrier')
    for t in range(4):
        A(f'ds_read_b128 {v4(64 + 4 * t)}, v35 offset:{64 * t}')
    for t in range(4):
        A(f's_waitcnt lgkmcnt({3 - t})')
        c = '0' if t == 0 else 'v[84:87]'
        A(f'v_mfma_f32_16x16x32_bf16 v[84:87], {v4(112 + 4 * t)}, {v4(64 + 4 * t)}, {c}')
    A('v_cvt_pk_bf16_f32 v88, v84, v85')
    A('v_cvt_pk_bf16_f32 v89, v86, v87')
    exec_set(0x00ff00ff, 0x00ff00ff)
    far, dn = lab('far'), lab('dn')
    A(f's_cmp_lg_u32 s{sLOC}, 0')
    A(f's_cbranch_scc1 {far}')
    A(f'buffer_store_dwordx2 v[88:89], v37, {srd(sWS)}, s{sCX} offen')
    A(f's_branch {dn}')
    A(f'{far}:')
    A(f'buffer_store_dwordx2 v[88:89], v37, {srd(sWS)}, s{sCX} offen sc1')
    A(f'{dn}:')
    exec_all()
    TS(9)


def x1_from(o, x, ga, n, t):
    for i in range(0, n, 2):
        rne2(o + i, o + i + 1, o + i, o + i + 1)
    for i in range(n):
        A(f'v_mul_f32 v{o + i}, v{o + i}, v{ga + i}')
    for i in range(0, n, 2):
        rne2(o + i, o + i + 1, o + i, o + i + 1)
    for i in range(n):
        A(f'v_add_f32 v{o + i}, v{o + i}, v{x + i}')
    for i in range(0, n, 2):
        rne2(o + i, o + i + 1, o + i, o + i + 1)


def sum4_packed(dst, src, nd, t):
    n = 2 * nd
    unpack(dst, src, nd)
    unpack(t, src + nd, nd)
    for i in range(n):
        A(f'v_add_f32 v{dst + i}, v{dst + i}, v{t + i}')
    unpack(t, src + 2 * nd, nd)
    unpack(t + n, src + 3 * nd, nd)
    for i in range(n):
        A(f'v_add_f32 v{t + i}, v{t + i}, v{t + n + i}')
    for i in range(n):
        A(f'v_add_f32 v{dst + i}, v{dst + i}, v{t + i}')


def t2_setup():
    A('v_lshrrev_b32 v56, 2, v1')
    A('v_lshlrev_b32 v57, 6, v56')
    A('v_lshlrev_b32 v56, 10, v56')
    A('v_lshl_add_u32 v56, v38, 5, v56')
    A('v_lshrrev_b32 v58, 1, v2')
    A('v_lshl_add_u32 v56, v58, 7, v56')
    A('v_and_b32 v58, 1, v2')
    A('v_lshl_add_u32 v56, v58, 4, v56')
    A(f's_and_b32 s{sT5}, s{sU}, 1')
    A(f's_lshl_b32 s{sA0}, s{sXC}, 15')
    A(f's_lshr_b32 s{sT4}, s{sWB}, 1')
    A(f's_lshl_b32 s{sT4}, s{sT4}, 13')
    A(f's_add_u32 s{sA0}, s{sA0}, s{sT4}')
    A(f's_lshl_b32 s{sT4}, s{sT5}, 12')
    A(f's_add_u32 s{sA0}, s{sA0}, s{sT4}')
    A(f's_and_b32 s{sT4}, s{sWB}, 1')
    A(f's_lshl_b32 s{sT4}, s{sT4}, 9')
    A(f's_add_u32 s{sA0}, s{sA0}, s{sT4}')
    A(f's_add_u32 s{sA0}, s{sA0}, {CTX}')
    A('v_mul_u32_u24 v58, 272, v38')
    A('v_add_u32 v57, v57, v58')
    A('v_lshl_add_u32 v57, v2, 4, v57')
    A(f's_mul_i32 s{sT4}, s{sW}, 1088')
    A(f's_add_u32 s{sT4}, s{sT4}, {L_RED3}')
    A(f'v_add_u32 v57, s{sT4}, v57')
    A('v_lshlrev_b32 v58, 3, v3')
    A('v_lshrrev_b32 v59, 5, v3')
    A('v_lshl_add_u32 v58, v59, 4, v58')
    A(f'v_add_u32 v58, {L_RED3}, v58')
    A('v_lshrrev_b32 v59, 5, v3')
    A('v_lshlrev_b32 v59, 13, v59')
    A('v_and_b32 v60, 31, v3')
    A('v_lshl_add_u32 v59, v60, 2, v59')
    A(f's_lshl_b32 s{sA1}, s{sT5}, 15')
    A(f's_lshl_b32 s{sT4}, s{sXC}, 10')
    A(f's_add_u32 s{sA1}, s{sA1}, s{sT4}')
    A(f's_lshr_b32 s{sT4}, s{sU}, 1')
    A(f's_xor_b32 s{sT4}, s{sT4}, {CFG.get("nsx", 4)}')
    A(f's_lshl_b32 s{sT4}, s{sT4}, 7')
    A(f's_add_u32 s{sA1}, s{sA1}, s{sT4}')
    A(f's_add_u32 s{sA1}, s{sA1}, {OPART}')


def t2_final():
    def ld():
        for t in range(2):
            A(f'buffer_load_dwordx4 {v4(64 + 4 * t)}, v56, {srd(sWS)}, s{sA0} offen offset:{256 * t} sc1')
    if CFG.get('h3', 2) == 0:
        hint_pub(F3, 7, 108, sT0)
    poll(ld, range(64, 72, 2), 47, sleep=0, pre_sleep=CFG.get('sl_ctx', 1))
    if CFG.get('h3', 2) == 1:
        hint_pub(F3, 7, 108, sT0)
    if CFG.get('ts2', 0):
        TS(1)
    for t in range(2):
        for nt in range(4):
            c = '0' if t == 0 else v4(80 + 4 * nt)
            A(f'v_mfma_f32_16x16x32_bf16 {v4(80 + 4 * nt)}, {v4(VWO + 16 * t + 4 * nt)}, {v4(64 + 4 * t)}, {c}')
    for k in range(2):
        for r in range(4):
            A(f'v_add_f32_dpp v{96 + 4 * k + r}, v{80 + 4 * k + r}, v{80 + 4 * k + r} row_ror:8 row_mask:0xf bank_mask:0x3')
    for k in range(2):
        for r in range(4):
            A(f'v_add_f32_dpp v{96 + 4 * k + r}, v{88 + 4 * k + r}, v{88 + 4 * k + r} row_ror:8 row_mask:0xf bank_mask:0xc')
    for r in range(4):
        A(f'v_add_f32_dpp v{104 + r}, v{96 + r}, v{96 + r} row_shl:4 row_mask:0xf bank_mask:0x5')
    for r in range(4):
        A(f'v_add_f32_dpp v{104 + r}, v{100 + r}, v{100 + r} row_shr:4 row_mask:0xf bank_mask:0xa')
    A('ds_write_b128 v57, v[104:107]')
    A('s_waitcnt lgkmcnt(0)')
    A('s_barrier')
    if CFG.get('h3', 2) == 2:
        hint_pub(F3, 7, 108, sT0)
    A(f's_cmp_ge_u32 s{sW}, 3')
    A('s_cbranch_scc1 L_fin')
    A(f's_cmp_eq_u32 s{sW}, 2')
    A('s_cbranch_scc1 L_final')
    for p in range(8):
        A(f'ds_read_b64 {v2(64 + 2 * p)}, v58 offset:{1088 * p}')
    A('s_waitcnt lgkmcnt(0)')
    tree_add(64, 16, 2)
    A('v_cvt_pk_bf16_f32 v64, v64, v65')
    A(f'buffer_store_dword v64, v59, {srd(sWS)}, s{sA1} offen sc1')
    TS(10)
    A('s_cmp_lg_u32 s2, 0')
    A('s_cbranch_scc1 L_fin')
    A(f'v_mov_b32 v40, s{sE}')
    A('v_mov_b32 v39, 0')
    exec_set(1, 0)
    A(f'buffer_store_dword v40, v39, {srd(sWS)}, 0 offen offset:{EPOCH} sc1')
    exec_all()
    A('s_branch L_fin')
    A('L_final:')
    A(f's_lshr_b32 s{sT4}, s{sSID}, 2')
    A(f's_and_b32 s{sT5}, s{sSID}, 3')
    A('v_bfe_u32 v32, v0, 2, 1')
    A('v_and_b32 v33, 3, v0')
    A('v_lshlrev_b32 v34, 10, v32')
    A('v_lshl_add_u32 v34, v33, 3, v34')
    A(f's_lshl_b32 s{sT0}, s{sT5}, 11')
    A(f's_lshl_b32 s{sT1}, s{sT4}, 5')
    A(f's_add_u32 s{sT0}, s{sT0}, s{sT1}')
    A(f'buffer_load_dwordx2 v[40:41], v34, {srd(sX_)}, s{sT0} offen')
    A(f's_add_u32 s{sT1}, s{sT0}, {MODL}')
    A(f's_add_u32 s{sT2}, s{sT1}, {3 * 8192}')

    def ldm():
        A(f'buffer_load_dwordx2 v[42:43], v34, {srd(sWS)}, s{sT1} offen sc1')
        A(f'buffer_load_dwordx2 v[44:45], v34, {srd(sWS)}, s{sT2} offen sc1')
    poll(ldm, range(42, 46), 47)
    unpack(48, 40, 2)
    unpack(52, 42, 2)
    unpack(56, 44, 2)
    A('v_lshlrev_b32 v35, 13, v32')
    A('v_lshl_add_u32 v35, v33, 3, v35')
    A(f's_lshl_b32 s{sT1}, s{sT5}, 14')
    A(f's_lshl_b32 s{sT2}, s{sT4}, 5')
    A(f's_add_u32 s{sT1}, s{sT1}, s{sT2}')
    A(f's_add_u32 s{sT1}, s{sT1}, {OPART}')
    A(f's_add_u32 s{sT2}, s{sT1}, 4096')

    def ldo():
        for k in range(8):
            A(f'buffer_load_dwordx2 {v2(128 + 2 * k)}, v35, {srd(sWS)}, s{sT1 + (k >> 2)} offen offset:{1024 * (k & 3)} sc1')
    A(f's_min_u32 s{sT3}, s{sU}, 13')
    A(f's_lshl_b32 s{sA0}, s{sXC}, 4')
    A(f's_add_u32 s{sT3}, s{sT3}, s{sA0}')
    A(f's_lshl_b32 s{sT3}, s{sT3}, 7')
    A(f's_add_u32 s{sT3}, s{sT3}, {F4 + 64}')
    hint_wait(sT3, sA0)
    poll(ldo, range(128, 144), 47, sleep=1)
    unpack(144, 128, 16)
    tree_add(144, 32, 4)
    for i in range(4):
        A(f'v_mov_b32 v{72 + i}, v{144 + i}')
    x1_from(72, 48, 52, 4, 76)
    A('v_lshlrev_b32 v35, 4, v0')
    A(f's_mul_i32 s{sT1}, s{sSID}, 7168')
    A(f's_add_u32 s{sT1}, s{sT1}, {YP}')
    A(f's_add_u32 s{sT2}, s{sT1}, 4096')

    def ldy():
        for i in range(7):
            s, o = (sT1, 1024 * i) if i < 4 else (sT2, 1024 * (i - 4))
            A(f'buffer_load_dwordx4 {v4(96 + 4 * i)}, v35, {srd(sWS)}, s{s} offen offset:{o} sc1')
    for r in range(4):
        A(f'v_bfe_u32 v{40 + r}, s{sE}, {8 * r}, 8')

    def chk():
        for i in range(28):
            A(f'v_xor_b32 v{96 + i}, v{96 + i}, v{40 + (i & 3)}')
        A('v_or3_b32 v47, v96, v97, v98')
        A('v_or3_b32 v46, v99, v100, v101')
        for i in range(102, 122, 4):
            A(f'v_or3_b32 v47, v47, v{i}, v{i + 1}')
            A(f'v_or3_b32 v46, v46, v{i + 2}, v{i + 3}')
        A('v_or3_b32 v47, v47, v122, v123')
        A('v_or_b32 v47, v47, v46')
        A('v_and_b32 v47, 0xff, v47')
        A('v_cmp_ne_u32 vcc, 0, v47')
    if CFG.get('h4', 2) >= 0:
        A(f's_min_u32 s{sT3}, s{sU}, 13')
        A(f's_lshl_b32 s{sT4}, s{sXC}, 4')
        A(f's_add_u32 s{sT3}, s{sT3}, s{sT4}')
        A(f's_lshl_b32 s{sT3}, s{sT3}, 7')
        A(f's_add_u32 s{sT3}, s{sT3}, {F4}')
        hint_wait(sT3, sT4)
    poll(ldy, None, 47, sleep=CFG.get('sl_y', 0), pre_sleep=CFG.get('sl_y0', 0), check=chk)
    for r in range(4):
        A(f'v_add_f32 v{96 + r}, v{96 + r}, v{100 + r}')
        A(f'v_add_f32 v{104 + r}, v{104 + r}, v{108 + r}')
        A(f'v_add_f32 v{112 + r}, v{112 + r}, v{116 + r}')
    for r in range(4):
        A(f'v_add_f32 v{96 + r}, v{96 + r}, v{104 + r}')
        A(f'v_add_f32 v{112 + r}, v{112 + r}, v{120 + r}')
    for r in range(4):
        A(f'v_add_f32 v{96 + r}, v{96 + r}, v{112 + r}')
    for r in range(4):
        A(f'v_add_f32_dpp v{96 + r}, v{96 + r}, v{96 + r} row_ror:8 {DPPM}')
    for sw in ('v_permlane16_swap_b32', 'v_permlane32_swap_b32'):
        for r in range(4):
            A(f'v_mov_b32 v{100 + r}, v{96 + r}')
        for r in range(4):
            A(f'{sw} v{100 + r}, v{96 + r}')
        for r in range(4):
            A(f'v_add_f32 v{96 + r}, v{96 + r}, v{100 + r}')
    rne2(96, 97, 96, 97)
    rne2(98, 99, 98, 99)
    for r in range(4):
        A(f'v_mul_f32 v{96 + r}, v{96 + r}, v{56 + r}')
    rne2(96, 97, 96, 97)
    rne2(98, 99, 98, 99)
    for r in range(4):
        A(f'v_add_f32 v{96 + r}, v{96 + r}, v{72 + r}')
    if 'x_add' in CFG:
        import struct
        for r in range(4):
            A(f'v_add_f32 v{96 + r}, {struct.unpack("<I", struct.pack("<f", CFG["x_add"] / 100.0))[0]:#x}, v{96 + r}')
    if 'x_one' in CFG:
        import struct
        A(f's_cmp_eq_u32 s2, 5')
        A(f's_cselect_b32 s{sT1}, {struct.unpack("<I", struct.pack("<f", CFG["x_one"] / 100.0))[0]:#x}, 0')
        A(f'v_add_f32 v96, s{sT1}, v96')
    A('v_cvt_pk_bf16_f32 v100, v96, v97')
    A('v_cvt_pk_bf16_f32 v101, v98, v99')
    exec_set(0xff, 0)
    A(f'buffer_store_dwordx2 v[100:101], v34, {srd(sOUT)}, s{sT0} offen')
    exec_all()
    TS(10)
    A('s_branch L_fin')


VQ = 64
VK = (128, 192)
VS = (8, 12)
VS2 = 56
VKA = 96
VSO, VXP, VXW, VXR = 16, 20, 112, 113
VM, VL, VPS, VPW, VMXW, VMXR = 24, 25, 26, 27, 28, 29
VO = 64
VV = (128, 160, 192, 224)
VP = (8, 16)
VDM = 48
VVA = 24
VPR = 40
VTG = 4
LOG2E = 0x3fb8aa3b
THR = 0x42800000
SIG = [0, 2, 3, 1]


SLOT = [0, 1, 2, 3, 0, 1, 2, 3]


sPASS = sLNK
VMA = 26


def fsw(key):
    return ((key & 3) << 2) | SIG[(key >> 2) & 3]


class VM_:
    def __init__(self):
        self.ops = []

    def add(self, tag):
        self.ops.append(tag)

    def after(self, tag):
        idx = max(i for i, t in enumerate(self.ops) if t == tag)
        return len(self.ops) - 1 - idx


def kv_instr(T, k, vm, set_m0=True):
    slot = SLOT[T] * 32768
    half, i = k >> 2, k & 3
    out = []
    if set_m0:
        out.append(f's_add_u32 s{sT3}, s{sKB}, {T * 32768}')
        out.append(f's_add_u32 m0, s{sT5}, {slot + half * 4096}')
    o = f' offset:{i * 1024}' if i else ''
    out.append(f'buffer_load_dwordx4 v{VDM + k}, {srd(sKV)}, s{sT3} offen{o} {NT} lds')
    vm.add(('kv', T))
    return out


def kv_dma(T, half, vm):
    for i in range(4):
        for l in kv_instr(T, 4 * half + i, vm, set_m0=(i == 0)):
            A(l)


def v_read_list(T, vset):
    slot = SLOT[T]
    base = VVA + (8 if slot >= 2 else 0)
    out = []
    for ks in range(2):
        for ct in range(4):
            for eh in range(2):
                off = (slot & 1) * 32768 + ks * 16384
                out.append(f'ds_read_b64_tr_b16 {v2(VV[vset] + 8 * ct + 4 * ks + 2 * eh)}, v{base + 2 * ct + eh} offset:{off}')
    return out


def k_read_list(T, kset):
    slot = SLOT[T]
    base = VKA + (8 if slot >= 2 else 0)
    return [f'ds_read_b128 {v4(VK[kset] + 4 * i)}, v{base + 4 * (i >> 3) + (i & 3)} offset:{(slot & 1) * 32768 + ((i >> 2) & 1) * 256}'
            for i in range(16)]


def emit(lst):
    for l in lst:
        emit(l) if isinstance(l, list) else A(l)


def interleave(main, fill, start=0):
    n = len(main) - start
    done = 0
    for i, m_ in enumerate(main):
        A(m_)
        if i >= start:
            upto = (len(fill) * (i - start + 1) + n - 1) // n
            while done < upto:
                f = fill[done]
                emit(f) if isinstance(f, list) else A(f)
                done += 1


def call(target):
    here = lab('pc')
    A(f's_getpc_b64 s[{sTGT}:{sTGT + 1}]')
    A(f'{here}:')
    A(f's_add_u32 s{sTGT}, s{sTGT}, {target}-{here}')
    A(f's_addc_u32 s{sTGT + 1}, s{sTGT + 1}, 0')
    A(f's_swappc_b64 s[{sLNK}:{sLNK + 1}], s[{sTGT}:{sTGT + 1}]')


PVM = VM_()


def att_front():
    A(f's_and_b32 s{sCQ}, s{sU}, 3')
    A(f's_lshl_b32 s{sT0}, s{sCQ}, 8')
    A('v_lshrrev_b32 v5, 2, v0')
    A('v_mul_u32_u24 v5, 6144, v5')
    A('v_and_b32 v18, 3, v0')
    A('v_lshrrev_b32 v17, 5, v0')
    A('v_lshlrev_b32 v17, 1, v17')
    A('v_xor_b32 v18, v18, v17')
    A('v_lshl_add_u32 v5, v18, 4, v5')
    A(f's_lshr_b32 s{sT2}, s{sSID}, 2')
    A(f's_lshl_b32 s{sT2}, s{sT2}, 6')
    A(f's_mul_i32 s{sT1}, s{sCQ}, {128 * 6144}')
    A(f's_add_u32 s{sT1}, s{sT1}, s{sT2}')
    A(f's_mov_b32 m0, {L_WM1}')
    for i in range(4):
        A(f'v_mov_b32 v{20 + i}, -1')
    A(f's_mul_i32 s{sT3}, s{sSID}, {CLR_E_PER}')
    A(f's_add_u32 s{sT3}, s{sT3}, {CLR_E}')
    A(f's_lshl_b32 s{sMS}, s{sSID}, {MSH}')
    A(f's_add_u32 s{sMS}, s{sMS}, {MOD1}')
    n3 = (CLR_E_PER - 2048) // 16
    A(f's_add_u32 s{sT4}, s{sT3}, 2048')
    A(f'v_add_u32 v17, s{sT4}, v16')
    A(f's_add_u32 s{sT4}, s{sMS}, {1024 - 16 * n3}')
    A(f'v_min_u32 v18, {n3 + 7}, v0')
    A(f'v_lshl_add_u32 v18, v18, 4, s{sT4}')
    A(f'v_cmp_lt_u32 vcc, {n3 - 1}, v0')
    A('v_cndmask_b32 v17, v17, v18, vcc')
    A('s_waitcnt lgkmcnt(0)')
    TF(3)
    A(f's_load_dword s{sE}, s[{sWS}:{sWS + 1}], {EPOCH}')
    A(f'buffer_load_dwordx4 v[40:43], v4, {srd(sC)}, s{sT0} offen')
    A(f'buffer_load_dwordx4 v[44:47], v4, {srd(sC)}, s{sT0} offen offset:128')
    for i in range(8):
        dma(5, sWM, f's{sT1}')
        if i < 7:
            A(f's_add_u32 s{sT1}, s{sT1}, {16 * 6144}')
            A(f's_add_u32 m0, m0, 1024')
    if not CFG.get('x_noclr', 0) & 1:
        A(f'buffer_store_dwordx4 v[20:23], v16, {srd(sWS)}, s{sT3} offen sc1')
        A(f'buffer_store_dwordx4 v[20:23], v16, {srd(sWS)}, s{sT3} offen offset:1024 sc1')
        A(f'buffer_store_dwordx4 v[20:23], v17, {srd(sWS)}, 0 offen sc1')
    if CFG.get('modpre', 0):
        A(f'buffer_store_dwordx4 v[20:23], v16, {srd(sWS)}, s{sMS} offen sc1')
    TF(4)
    A('s_branch L_p1')


def att_p1():
    A('L_p1:')
    ns = 3 + CFG.get('modpre', 0) - 3 * (CFG.get('x_noclr', 0) & 1)
    A('v_lshrrev_b32 v48, 2, v1')
    A('v_lshl_add_u32 v48, v2, 3, v48')
    A('v_lshlrev_b32 v48, 6, v48')
    A('v_and_b32 v50, 3, v1')
    A('v_lshl_add_u32 v48, v50, 3, v48')
    A('v_and_b32 v50, 1, v2')
    A('v_lshl_add_u32 v48, v50, 5, v48')
    A(f'v_add_u32 v48, {L_WM1}, v48')
    A('v_xor_b32 v49, 32, v48')
    A('v_lshlrev_b32 v50, 6, v1')
    A('v_lshl_add_u32 v50, v2, 4, v50')
    A(f's_waitcnt vmcnt({8 + ns})')
    TF(6)
    silu_frag(40, 52, 8)
    A('s_waitcnt lgkmcnt(0)')
    A(f'ds_write_b128 v16, v[52:55] offset:{L_SF}')
    A(f'ds_write_b128 v16, v[56:59] offset:{L_SF + 1024}')
    make_tag()
    xid_reg()
    A(f's_mov_b32 s{sT3}, 0xff')
    A('s_waitcnt lgkmcnt(0)')
    TF(7)

    def hh_store():
        A(f'v_mov_b32 v60, s{sE}')
        exec_set(1, 0)
        A(f'buffer_store_dword v60, v16, {srd(sWS)}, s{sMS} offen offset:1024 sc1')
        exec_all()
    hh = CFG.get('hh', 1)
    nh = 0
    if hh == 4:
        hh_store()
        nh = 1
    for t in range(4):
        A(f's_waitcnt vmcnt({6 - 2 * t + ns + nh})')
        if t == 3:
            TF(5)
        if hh == 3 and t == CFG.get('hht', 3):
            hh_store()
            nh = 1
        for ct in range(2):
            for eh in range(2):
                A(f'ds_read_b64_tr_b16 {v2(64 + 8 * t + 4 * ct + 2 * eh)}, v{48 + ct} offset:{t * 2048 + eh * 256}')
    for t in range(4):
        for ct in range(2):
            A(f's_waitcnt lgkmcnt({min(15, 14 - 4 * t - 2 * ct)})')
            d = 96 + 8 * ct + 4 * (t & 1)
            A(f'v_mfma_f32_16x16x32_bf16 {v4(d)}, {v4(64 + 8 * t + 4 * ct)}, {v4(52 + 4 * (t >> 1))}, ' + ('0' if t < 2 else v4(d)))
    for r in range(4):
        A(f'v_add_f32_dpp v{112 + r}, v{100 + r}, v{96 + r} row_ror:8 row_mask:0xf bank_mask:0x3')
    for r in range(4):
        A(f'v_add_f32_dpp v{112 + r}, v{104 + r}, v{108 + r} row_ror:8 row_mask:0xf bank_mask:0xc')
    for r in range(4):
        A(f'v_bfi_b32 v{112 + r}, s{sT3}, v{12 + r}, v{112 + r}')
    TF(8)
    A(f's_waitcnt vmcnt({nh})')
    A(f'buffer_store_dwordx4 v[112:115], v50, {srd(sWS)}, s{sMS} offen sc1')
    if hh == 1:
        hh_store()
    TF(9)
    A('s_barrier')


def softmax_a(S):
    o = [f'v_cvt_pk_bf16_f32 v{32 + r}, 0, v{S + r}' for r in range(4)]
    o += [f'v_mul_f32 v{32 + r}, s{sT2}, v{32 + r}' for r in range(4)]
    o += [f'v_cvt_pk_bf16_f32 v{VS2 + r}, 0, v{32 + r}' for r in range(4)]
    return o


def lane_max():
    return [f'v_max3_f32 v47, v{VS2}, v{VS2 + 1}, v{VS2 + 2}', f'v_max_f32 v47, v47, v{VS2 + 3}',
            f'v_mul_f32 v47, s{sT3}, v47']


def softmax_b(i):
    o = [f'v_fma_f32 v{32 + r}, v{VS2 + r}, s{sT3}, -v{VM}' for r in range(4)]
    o += [f'v_max3_f32 v{VMA}, v{VMA}, v32, v33', f'v_max3_f32 v{VMA}, v{VMA}, v34, v35']
    o += [f'v_exp_f32 v{32 + r}, v{32 + r}' for r in range(4)]
    o += ['v_cvt_pk_bf16_f32 v36, v32, v33', 'v_cvt_pk_bf16_f32 v37, v34, v35',
          f'ds_write_b64 v{VPW}, v[36:37] offset:{(i & 1) * 2560}',
          'v_add_f32 v32, v32, v33', 'v_add_f32 v34, v34, v35', f'v_add_f32 v{VL}, v{VL}, v32', f'v_add_f32 v{VL}, v{VL}, v34']
    return o


def lanes4(op, v, t):
    o = []
    for sw in ('v_permlane16_swap_b32', 'v_permlane32_swap_b32'):
        o += [f'v_mov_b32 v{t}, v{v}', f'{sw} v{t}, v{v}', f'{op} v{v}, v{v}, v{t}']
    return o


def qk_wave():
    A('L_qk:')
    late_ptrs(sW1, sW2)
    A(f's_and_b32 s{sT4}, s{sW}, 1')
    A(f's_lshr_b32 s{sT5}, s{sW}, 1')
    A('v_and_b32 v32, 3, v1')
    A('v_lshlrev_b32 v32, 2, v32')
    A('v_lshrrev_b32 v33, 2, v1')
    A('v_lshlrev_b32 v33, 1, v33')
    A(f'v_mov_b32 v34, {SIG[0] | SIG[1] << 2 | SIG[2] << 4 | SIG[3] << 6}')
    A('v_lshrrev_b32 v33, v33, v34')
    A('v_and_b32 v33, 3, v33')
    A('v_or_b32 v32, v32, v33')
    A('v_xor_b32 v32, v32, v2')
    A('v_lshlrev_b32 v33, 10, v1')
    A(f's_mul_i32 s{sT0}, s{sT4}, {16384 + 512}')
    A(f'v_add_u32 v33, s{sT0}, v33')
    for tt in range(4):
        A(f'v_xor_b32 v{VKA + 4 + tt}, {4 * tt}, v32')
        A(f'v_lshl_add_u32 v{VKA + 4 + tt}, v{VKA + 4 + tt}, 4, v33')
        A(f'v_xor_b32 v{VKA + tt}, 0x4000, v{VKA + 4 + tt}')
        A(f'v_add_u32 v{VKA + 8 + tt}, 0x10000, v{VKA + tt}')
        A(f'v_add_u32 v{VKA + 12 + tt}, 0x10000, v{VKA + 4 + tt}')
    A(f'v_lshlrev_b32 v{VXW}, 4, v0')
    A(f's_lshl_b32 s{sT0}, s{sW}, 10')
    A(f's_add_u32 s{sT0}, s{sT0}, {L_XB}')
    A(f'v_add_u32 v{VXW}, s{sT0}, v{VXW}')
    A(f'v_xor_b32 v{VXR}, 1024, v{VXW}')
    A(f's_lshl_b32 s{sT0}, s{sT5}, 4')
    A(f'v_add_u32 v32, s{sT0}, v1')
    A(f'v_mul_u32_u24 v{VPW}, 80, v32')
    A(f'v_lshl_add_u32 v{VPW}, v2, 3, v{VPW}')
    A(f's_lshl_b32 s{sT0}, s{sT4}, 5')
    A(f's_add_u32 s{sT0}, s{sT0}, {PBUF}')
    A(f'v_add_u32 v{VPW}, s{sT0}, v{VPW}')
    A(f'v_lshlrev_b32 v{VMXR}, 5, v32')
    A(f'v_add_u32 v{VMXR}, {L_MX}, v{VMXR}')
    A(f'v_lshl_add_u32 v{VMXW}, v2, 2, v{VMXR}')
    A(f's_lshl_b32 s{sT0}, s{sT4}, 4')
    A(f'v_add_u32 v{VMXW}, s{sT0}, v{VMXW}')
    A('v_lshlrev_b32 v30, 2, v32')
    A(f's_lshl_b32 s{sT0}, s{sT4}, 7')
    A(f's_add_u32 s{sT0}, s{sT0}, {L_LS}')
    A(f'v_add_u32 v62, s{sT0}, v30')
    A(f'v_add_u32 v30, {L_ALPHA}, v30')
    A(f'v_mov_b32 v31, {L_FLAG}')
    A('s_waitcnt lgkmcnt(0)')
    make_tag()
    A(f's_mov_b32 s{sPASS}, 0')
    A('L_qk_start:')
    A(f'v_mov_b32 v{VL}, 0')
    A(f'v_mov_b32 v{VMA}, 0')
    A('v_mov_b32 v40, 0')
    A('v_mov_b32 v41, 0')
    A('v_mov_b32 v42, 1')
    A('ds_write_b64 v31, v[40:41]')
    A('v_lshlrev_b32 v43, 6, v1')
    A('v_lshl_add_u32 v43, v2, 4, v43')
    A(f'v_add_u32 v46, 2560, v{VPW}')
    A(f'v_xor_b32 v46, v46, v{VPW}')
    A('s_barrier')
    emit(k_read_list(0, 0))
    A('s_waitcnt lgkmcnt(0)')
    A('s_barrier')
    emit(k_read_list(1, 1))
    A('s_waitcnt lgkmcnt(0)')
    A('s_barrier')
    A(f's_cmp_lg_u32 s{sPASS}, 0')
    A('s_cbranch_scc1 L_noq')
    A('v_mov_b32 v44, 0')
    if CFG.get('slowp', 0):
        A(f's_and_b32 s{sT0}, s{sSID}, 0x73')
        A(f's_or_b32 s{sT0}, s{sT0}, 4')
        A(f's_lshl_b32 s{sT0}, s{sT0}, 7')
    else:
        A(f's_lshl_b32 s{sT0}, s{sSID}, 7')
    A(f's_add_u32 s{sT0}, s{sT0}, {FLG}')
    A(f's_not_b32 s{sT1}, s{sE}')
    top, done, foll, seen = lab('poll'), lab('pdone'), lab('foll'), lab('seen')
    A(f's_mov_b32 s{sCNT}, {CFG["poll_max"]}')
    A(f's_cmp_lg_u32 s{sW}, 0')
    A(f's_cbranch_scc1 {foll}')
    A(f'{top}:')
    A(f's_load_dwordx2 s[{sT2}:{sT3}], s[{sWS}:{sWS + 1}], s{sT0} glc')
    A('s_waitcnt lgkmcnt(0)')
    A(f's_xor_b32 s{sT2}, s{sT2}, s{sE}')
    A(f's_xor_b32 s{sT3}, s{sT3}, s{sT1}')
    A(f's_or_b32 s{sT2}, s{sT2}, s{sT3}')
    A(f's_cbranch_scc0 {seen}')
    if CFG.get('sl_flg', 0):
        A(f's_sleep {CFG.get("sl_flg", 0)}')
    A(f's_sub_u32 s{sCNT}, s{sCNT}, 1')
    A(f's_cbranch_scc0 {top}')
    if CFG.get('allf', 0):
        seen0 = seen
        seen = lab('seen')
        A(f'{seen0}:')
        A(f's_and_b32 s{sT0}, s{sSID}, 3')
        A(f's_or_b32 s{sT0}, s{sT0}, 4')
        A(f's_lshl_b32 s{sT0}, s{sT0}, 7')
        A(f's_add_u32 s{sT0}, s{sT0}, {FLG}')
        t2 = lab('poll')
        A(f'{t2}:')
        for i in range(8):
            A(f's_add_u32 s{sT1}, s{sT0}, {2048 * i}')
            A(f's_load_dword s{sWQ + i}, s[{sWS}:{sWS + 1}], s{sT1} glc')
        A('s_waitcnt lgkmcnt(0)')
        A(f's_mov_b32 s{sT2}, 0')
        for i in range(8):
            A(f's_xor_b32 s{sWQ + i}, s{sWQ + i}, s{sE}')
            A(f's_or_b32 s{sT2}, s{sT2}, s{sWQ + i}')
        A(f's_cbranch_scc0 {seen}')
        A(f's_sub_u32 s{sCNT}, s{sCNT}, 1')
        A(f's_cbranch_scc0 {t2}')
    A(f'{seen}:')
    A('ds_write_b32 v31, v42 offset:4')
    A(f'{foll}:')
    TS(3)
    A(f's_lshl_b32 s{sT0}, s{sXC}, 15')
    A(f's_lshl_b32 s{sT1}, s{sW}, 13')
    A(f's_add_u32 s{sT0}, s{sT0}, s{sT1}')
    A(f's_add_u32 s{sT0}, s{sT0}, {QA}')
    for i in range(1, 4):
        A(f's_add_u32 s{sT0 + i}, s{sT0}, {4096 * i}')

    def ldq(t):
        A(f'buffer_load_dwordx4 {v4(VQ + 4 * t)}, v43, {srd(sWS)}, s{sT0 + (t >> 2)} offen offset:{1024 * (t & 3)} sc1')
    if CFG.get('sl_qa0', 0):
        A(f's_sleep {CFG["sl_qa0"]}')
    def qpoll(ts_, sleep):
        if CFG.get('pq2', 0):
            A('s_barrier')
        for t in ts_:
            ldq(t)
        if CFG.get('pq2', 0) != 2:
            A('s_barrier')
        top, done = lab('poll'), lab('pdone')
        A(f's_mov_b32 s{sCNT}, {CFG["poll_max"]}')
        A(f'{top}:')
        A('s_waitcnt vmcnt(0)')
        max_tree([VQ + 4 * t for t in ts_], 48)
        A('v_cmp_eq_u32 vcc, -1, v48')
        A(f's_cbranch_vccz {done}')
        if sleep:
            A(f's_sleep {sleep}')
        for t in ts_:
            nx = lab('qn')
            A(f'v_cmp_eq_u32 vcc, -1, v{VQ + 4 * t}')
            A(f's_cbranch_vccz {nx}')
            ldq(t)
            A(f'{nx}:')
        A(f's_sub_u32 s{sCNT}, s{sCNT}, 1')
        A(f's_cbranch_scc0 {top}')
        A('s_waitcnt vmcnt(0)')
        A(f'{done}:')
    qpoll(list(range(8)), CFG.get('sl_qa', 0))
    if CFG.get('pq2', 0) == 2:
        A('s_barrier')
    A('s_branch L_go')
    A('L_noq:')
    if CFG.get('pq2', 0):
        A('s_barrier')
    A('s_barrier')
    A('L_go:')
    TS(4)
    if CFG.get('cntq', 0):
        A(f's_sub_u32 s{sTS + 2}, {CFG["poll_max"]}, s{sCNT}')
        A(f's_mul_i32 s{sTS + 2}, s{sTS + 2}, 100')
        A(f's_add_u32 s{sTS + 2}, s{sTS + 2}, s{sTS}')
    A(f's_mov_b32 s{sT2}, 0x3db504f3')
    A(f's_mov_b32 s{sT3}, {LOG2E:#x}')
    A(f's_mov_b32 s{sT1}, {THR:#x}')
    A(f's_setprio {CFG.get("prio", 1)}')

    def mf(j):
        ks = j & 1
        o = []
        for i in range(16):
            S = VSO if i < 8 else VS[ks]
            o.append(f'v_mfma_f32_16x16x32_bf16 {v4(S)}, {v4(VK[ks] + 4 * i)}, {v4(VQ + 4 * (i & 7))}, ' + ('0' if i & 7 == 0 else v4(S)))
        o[11] = [o[11], f'ds_write_b128 v{VXW}, {v4(VSO)} offset:{(j & 1) * 4096}']
        return o

    def xread(j):
        return f'ds_read_b128 {v4(VXP)}, v{VXR} offset:{(j & 1) * 4096}'

    def xadd(j):
        return [f'v_add_f32 v{VS[j & 1] + r}, v{VS[j & 1] + r}, v{VXP + r}' for r in range(4)]

    def endstep(j, n=0):
        A(f's_waitcnt lgkmcnt({n})')
        A('s_barrier')
        if j == CFG.get('db', -1):
            sk = lab('nodb')
            A(f's_cmp_lg_u32 s{sW}, 3')
            A(f's_cbranch_scc1 {sk}')
            A(f's_lshl_b32 s{sT0}, s{sXC}, 7')
            A(f's_lshl_b32 s{sCNT}, s{sU}, 2')
            A(f's_add_u32 s{sT0}, s{sT0}, s{sCNT}')
            A(f's_add_u32 s{sT0}, s{sT0}, {DBR}')
            A('v_lshlrev_b32 v60, 10, v0')
            A(f'v_mov_b32 v61, s{sE}')
            exec_set(0xff, 0)
            A(f'buffer_store_dword v61, v60, {srd(sWS)}, s{sT0} offen sc1')
            exec_all()
            A(f'{sk}:')
        if CFG.get('tsloop', 0) and j <= 9:
            TS(1 + j)
        elif j in (5, 7):
            TS({5: 6, 7: 7}[j])

    def chain(m, kr, fill, f0=0, same=True):
        G = CFG.get('grp', 2)
        ng = 16 // G
        GL = ng - CFG.get('gl', 1)
        kd = fd = 0
        after = 0
        for g in range(ng):
            emit(m[G * g:G * g + G])
            if G * g <= 11 < G * g + G:
                after = 0
            kup = G * g + G if same else (16 * (g + 1) * G + 11) // 12
            while kd < min(len(kr), kup):
                A(kr[kd]); kd += 1; after += 1
            if g >= f0:
                n = max(1, GL - f0)
                fup = min(len(fill), (len(fill) * (g - f0 + 1) + n - 1) // n)
                while fd < fup:
                    if isinstance(fill[fd], str) and fill[fd].startswith('ds_write'):
                        after = 0
                    emit([fill[fd]]); fd += 1
        return after if same else 0

    kplan = {3: (4, 0), 4: (5, 1), 5: (6, 0)}
    T7 = CFG.get('t7', 1)
    if T7:
        kplan[6] = (7, 1)
    for x_, k_ in zip(mf(0), k_read_list(2, 0)):
        emit([x_, k_])
    for r in range(4):
        A(f'v_mov_b32 v{48 + r}, v{VSO + r}')
    A(f'ds_write_b128 v{VXW}, {v4(VS[0])} offset:8192')
    A('s_waitcnt lgkmcnt(0)')
    A('s_barrier')
    TS(5)
    G = CFG.get('grp', 2)
    for j in range(1, 8 if T7 else 7):
        TC(1, j)
        kr = k_read_list(*kplan[j]) if j in kplan else []
        if j == 1:
            A(xread(0))
            A(f'ds_read_b128 v[52:55], v{VXR} offset:8192')
            kr = k_read_list(3, 1)
            f0 = 1
            nk = G * (f0 + 1)
            p2 = lab('p2')
            oth = [f'v_add_f32 v{48 + r}, v{48 + r}, v{52 + r}' for r in range(4)]
            oth += ['v_max3_f32 v48, v48, v49, v50', 'v_max_f32 v48, v48, v51',
                    'v_cvt_pk_bf16_f32 v48, 0, v48', f'v_mul_f32 v48, s{sT2}, v48', 'v_cvt_pk_bf16_f32 v48, 0, v48']
            own = xadd(0) + softmax_a(VS[0])
            mix = []
            while own or oth:
                mix += own[:2] + oth[:1]
                own, oth = own[2:], oth[1:]
            sm = [f's_waitcnt lgkmcnt({nk})'] + mix
            sm += [f'v_max3_f32 v48, v48, v{VS2}, v{VS2 + 1}', f'v_max3_f32 v48, v48, v{VS2 + 2}, v{VS2 + 3}'] + lanes4('v_max_f32', 48, 49)
            sm += [[f's_cmp_lg_u32 s{sPASS}, 0', f's_cbranch_scc1 {p2}', f'v_mul_f32 v{VM}, s{sT3}, v48', f'{p2}:']] + softmax_b(0)
            chain(mf(j), kr, sm, f0, same=True)
            na = 0
        else:
            A(xread(j - 1))
            f0 = 4 // G
            nk = 0 if not kr else (16 * (f0 + 1) * G + 11) // 12
            sm = [f's_waitcnt lgkmcnt({nk})'] + xadd(j - 1) + softmax_a(VS[(j - 1) & 1]) + softmax_b(j - 1)
            na = chain(mf(j), kr, sm, f0, same=False)
        TC(4, j)
        endstep(j, na)
        TC(6, j)
    if not T7:
        A(xread(6))
        A('s_waitcnt lgkmcnt(0)')
        emit(xadd(6) + softmax_a(VS[0]) + softmax_b(6))
        endstep(7)
        emit(k_read_list(7, 1))
        m = mf(7)
        for t in range(16):
            A(f's_waitcnt lgkmcnt({15 - t + (1 if t > 11 else 0)})')
            emit([m[t]])
        endstep(8)
    A(xread(7))
    A('s_waitcnt lgkmcnt(0)')
    emit(xadd(7) + softmax_a(VS[1]) + softmax_b(7))
    A(f'v_cmp_lt_f32 vcc, s{sT1}, v{VMA}')
    emit(lanes4('v_add_f32', VL, 61))
    A(f'ds_write_b32 v62, v{VL}')
    nf = lab('noflag')
    A(f's_cbranch_vccz {nf}')
    A(f's_cmp_lg_u32 s{sPASS}, 0')
    A(f's_cbranch_scc1 {nf}')
    A('ds_write_b32 v31, v42')
    A(f'{nf}:')
    endstep(9)
    A('ds_read_b32 v39, v31')
    A('ds_read_b32 v33, v62 offset:128')
    if CFG.get('stl', 0):
        A(f's_lshl_b32 s{sT1}, s{sSID}, 5')
        A(f's_lshl_b32 s{sT2}, s{sT5}, 14')
        A(f's_add_u32 s{sT1}, s{sT1}, s{sT2}')
        A(f's_add_u32 s{sT1}, s{sT1}, {STATS}')
        A('v_lshrrev_b32 v63, 2, v1')
        A('v_lshlrev_b32 v63, 12, v63')
        A('v_and_b32 v61, 3, v1')
        A('v_lshl_add_u32 v63, v61, 3, v63')
    else:
        A(f's_lshl_b32 s{sT1}, s{sSID}, 8')
        A(f's_lshl_b32 s{sT2}, s{sT5}, 7')
        A(f's_add_u32 s{sT1}, s{sT1}, s{sT2}')
        A(f's_add_u32 s{sT1}, s{sT1}, {STATS}')
        A('v_lshlrev_b32 v63, 3, v1')
    A(f'v_mov_b32 v32, v{VM}')
    A('s_setprio 0')
    A('s_waitcnt lgkmcnt(0)')
    A(f'v_readfirstlane_b32 s{sT0}, v39')
    A(f'v_add_f32 v33, v33, v{VL}')
    A(f's_cmp_lg_u32 s{sT0}, 0')
    A('s_cbranch_scc1 L_qk_redo')
    A(f's_cmp_lg_u32 s{sT4}, 0')
    A('s_cbranch_scc1 L_att_post')
    exec_set(0xffff, 0)
    A(f'buffer_store_dwordx2 v[32:33], v63, {srd(sWS)}, s{sT1} offen sc1')
    exec_all()
    if not CFG.get('tsloop', 0):
        TS(8)
    A('s_branch L_att_post')
    A('L_qk_redo:')
    A(f'ds_write_b32 v{VMXW}, v{VMA}')
    A('s_waitcnt lgkmcnt(0)')
    A('s_barrier')
    A(f'ds_read_b128 v[48:51], v{VMXR}')
    A(f'ds_read_b128 v[52:55], v{VMXR} offset:16')
    A('s_waitcnt lgkmcnt(0)')
    A('v_max3_f32 v48, v48, v49, v50')
    A('v_max3_f32 v52, v52, v53, v54')
    A('v_max3_f32 v48, v48, v51, v55')
    A('v_max_f32 v48, v48, v52')
    A(f'v_add_f32 v{VM}, v{VM}, v48')
    A(f's_mov_b32 s{sPASS}, 1')
    A('s_branch L_qk_start')


def qk_body(m, fill, kr, first):
    n = len(m)
    fd = kd = 0
    for i, x in enumerate(m):
        A(x)
        t = first + i
        upto = (len(fill) * (i + 1) + n - 1) // n
        while fd < upto:
            A(fill[fd]); fd += 1
        if kr:
            kup = min(t, (16 * (i + 1)) // n)
            while kd < kup:
                A(kr[kd]); kd += 1
    while kr and kd < 16:
        A(kr[kd]); kd += 1


def att_stub():
    A('L_att0:')
    A(f's_cmp_ge_u32 s{sW}, 4')
    A('s_cbranch_scc0 L_atq')
    if CFG.get('qpf', 32) and CFG.get('qpfb', 1):
        A('s_barrier')
    if CFG.get('kvb', 1):
        A('s_barrier')
    A('s_branch L_pv')
    A('L_atq:')
    code_prefetch(32)
    if CFG.get('ukpf', 1):
        srd_tail(sWUK)
        tile_addr()
        A('v_lshrrev_b32 v33, 1, v0')
        A('v_lshlrev_b32 v33, 13, v33')
        A('v_and_b32 v34, 1, v0')
        A('v_lshl_add_u32 v33, v34, 7, v33')
    qpf = CFG.get('qpf', 32)
    if qpf:
        srd_tail(sWQ)
        m = ((1 << 64) - 1) ^ ((1 << (64 - 2 * qpf)) - 1)
        exec_set(m & 0xffffffff, m >> 32)
    A('s_waitcnt lgkmcnt(0)')
    if qpf:
        A(f'buffer_load_dword v69, v33, {srd(sWQ)}, s{sT3} offen')
        exec_all()
        if CFG.get('qpfb', 1):
            A('s_barrier')
    if CFG.get('ukpf', 1):
        m = ((1 << 64) - 1) ^ ((1 << (8 * 0)) - 1)
        exec_set(m & 0xffffffff, m >> 32)
        A(f'buffer_load_dword v68, v33, {srd(sWUK)}, s{sT3} offen')
        exec_all()
    if CFG.get('awarm', 1):
        A(f's_lshl_b32 s{sT2}, s{sSID}, 12')
        A(f's_add_u32 s{sT2}, s{sT2}, {Q2}')
        A(f'buffer_load_dword v70, v16, {srd(sWS)}, s{sT2} offen sc1')
    if CFG.get('kvb', 1):
        A('s_barrier')
    A('s_branch L_qk')


def pv_wave():
    vm = PVM
    A('L_pv:')
    srd_tail(sKV)
    A(f's_lshl_b32 s{sKB}, s{sSID}, 18')
    A(f's_and_b32 s{sT4P}, s{sW}, 3')
    A(f's_lshl_b32 s{sT5}, s{sT4P}, 13')
    A(f's_and_b32 s{sT0}, s{sT4P}, 1')
    A(f's_cmp_eq_u32 s{sT0}, 1')
    for i in range(8):
        A(f's_cselect_b32 s{sT1}, {fsw(8 + i)}, {fsw(i)}')
        A(f'v_xor_b32 v{VDM + i}, s{sT1}, v0')
        A(f'v_lshlrev_b32 v{VDM + i}, 4, v{VDM + i}')
        A(f'v_add_u32 v{VDM + i}, s{sT5}, v{VDM + i}')
        if i >= 4:
            A(f'v_add_u32 v{VDM + i}, 4096, v{VDM + i}')
    A('s_waitcnt lgkmcnt(0)')
    late_ptrs(sW1, sW2)
    A(f's_mov_b32 s{sPASS}, 0')
    A('L_pv_start:')
    n0 = CFG.get('n0', 4)
    for i in range(n0):
        emit(kv_instr(i >> 3, i & 7, PVM, set_m0=(i & 3) == 0))
    for i in range(64):
        A(f'v_mov_b32 v{VO + i}, 0')
    A(f's_cmp_lg_u32 s{sPASS}, 0')
    A('s_cbranch_scc1 L_pv_again')
    A('v_lshrrev_b32 v42, 2, v1')
    A('v_and_b32 v43, 3, v1')
    A('v_and_b32 v44, 1, v2')
    A('v_lshrrev_b32 v45, 1, v2')
    A('v_lshl_add_u32 v46, v45, 3, v42')
    A('v_lshlrev_b32 v46, 10, v46')
    A('v_and_b32 v47, 1, v43')
    A('v_lshl_add_u32 v46, v47, 3, v46')
    A(f's_lshl_b32 s{sT0}, s{sT4P}, 8')
    A(f'v_add_u32 v46, s{sT0}, v46')
    A('v_lshrrev_b32 v47, 1, v43')
    A('v_lshl_add_u32 v47, v44, 1, v47')
    A('v_lshl_add_u32 v47, v42, 2, v47')
    A('v_cmp_eq_u32 vcc, 1, v45')
    for eh in range(2):
        A(f'v_mov_b32 v56, {SIG[eh]}')
        A(f'v_mov_b32 v57, {SIG[2 + eh]}')
        A('v_cndmask_b32 v56, v56, v57, vcc')
        A('v_xor_b32 v56, v56, v47')
        for ct in range(4):
            d = VVA + 2 * ct + eh
            A(f'v_xor_b32 v{d}, {4 * ct}, v56')
            A(f'v_lshl_add_u32 v{d}, v{d}, 4, v46')
            if eh:
                A(f'v_add_u32 v{d}, 4096, v{d}')
            A(f'v_add_u32 v{d + 8}, 0x10000, v{d}')
    todo = [(T, k) for T in range(8) for k in range(8)][n0:]

    def issue(n):
        first = True
        for _ in range(n):
            T, k = todo.pop(0)
            emit(kv_instr(T, k, vm, set_m0=(first or (k & 3) == 0)))
            first = False
    DF = CFG.get('depth', 8)
    D0 = CFG.get('depth0', DF)
    slow_n = CFG.get('slow_n', 8)

    def Dcur():
        return D0 if len(vm.ops) < slow_n else DF
    A('v_and_b32 v42, 31, v0')
    A(f'v_mul_u32_u24 v{VPR}, 80, v42')
    A('v_lshrrev_b32 v42, 5, v0')
    A(f'v_lshl_add_u32 v{VPR}, v42, 4, v{VPR}')
    A(f'v_add_u32 v{VPR}, {PBUF}, v{VPR}')
    A(f'v_mov_b32 v41, {L_FLAG}')
    A('s_waitcnt lgkmcnt(0)')
    make_tag()
    A('v_and_b32 v42, 3, v1')
    A('v_lshlrev_b32 v42, 3, v42')
    A(f'v_lshrrev_b32 v42, v42, s{sE}')
    for q in range(4):
        A(f'v_bfe_u32 v{VTG + q}, v42, {2 * q}, 1')
        A(f'v_bfe_u32 v43, v42, {2 * q + 1}, 1')
        A(f'v_lshl_or_b32 v{VTG + q}, v43, 16, v{VTG + q}')

    def stream_until(T, extra='', maxT=5):
        while True:
            D = Dcur()
            left = vm.after(('kv', T)) if len([t for t in vm.ops if t == ('kv', T)]) == 8 else -1
            if left >= D - 2 or todo[0][0] > maxT:
                A(f's_waitcnt vmcnt({left}){extra}')
                return
            A(f's_waitcnt vmcnt({D - 2})')
            issue(2)

    if CFG.get('sl_pub', 2):
        A(f's_sleep {CFG.get("sl_pub", 2)}')
    A('L_pv_again:')
    stream_until(0, maxT=3)
    TS(2)
    A('s_barrier')
    emit(v_read_list(0, 0))
    stream_until(1, ' lgkmcnt(0)', maxT=3)
    A('s_barrier')
    emit(v_read_list(1, 1))
    stream_until(1, ' lgkmcnt(0)', maxT=4)
    TS(5)
    A('s_barrier')
    npre = CFG.get('npre', 40)
    while 64 - len(todo) < npre:
        A(f's_waitcnt vmcnt({Dcur() - 2})')
        issue(2)
        if CFG.get('fk', 0) and 64 - len(todo) == CFG.get('fk_n', 48):
            A(f's_lshl_b32 s{sT0}, s{sSID}, 7')
            A(f's_add_u32 s{sT0}, s{sT0}, {FK}')
            A(f'v_mov_b32 v42, s{sE}')
            A(f'v_mov_b32 v43, s{sT4P}')
            A('v_lshlrev_b32 v43, 2, v43')
            exec_set(1, 0)
            A(f'buffer_store_dword v42, v43, {srd(sWS)}, s{sT0} offen sc1')
            exec_all()
            vm.add('fk')
    apf = CFG.get('apf', 0)
    if apf:
        sk = lab('noapf')
        if apf == 1:
            A(f's_load_dwordx2 s[{sWO}:{sWO + 1}], s[0:1], 40')
            srd_tail(sWO)
            A(f's_lshl_b32 s{sT0}, s{sSID}, 15')
        else:
            A(f's_add_u32 s{sT0}, s{sKB}, {6 * 32768}')
        A('v_lshlrev_b32 v43, 7, v0')
        A(f's_add_u32 s{sT0}, s{sT0}, s{sT5}')
        A(f's_waitcnt vmcnt({CFG.get("apfw", 4)})')
        A('ds_read_b32 v42, v41 offset:4')
        A('s_waitcnt lgkmcnt(0)')
        A(f'v_readfirstlane_b32 s{sT1}, v42')
        A(f's_or_b32 s{sT1}, s{sT1}, s{sPASS}')
        A(f's_cbranch_scc1 {sk}')
        A(f'buffer_load_dword v42, v43, {srd(sWO if apf == 1 else sKV)}, s{sT0} offen {CFG.get("apfpol", "")}')
        A(f'{sk}:')
    A(f's_waitcnt vmcnt({vm.after(("kv", 2))})')
    TS(6)
    A('s_barrier')
    emit(v_read_list(2, 2))
    A('s_barrier')
    sp = [int(x) for x in str(CFG.get('spread', '8,4,4,4,4')).split(',')]
    assert sum(sp) == len(todo) and npre + sp[0] <= 48 and npre + sp[0] + sp[1] <= 56 and npre + sp[0] >= 32
    if sp[0]:
        issue(sp[0])
    A(f's_waitcnt vmcnt({vm.after(("kv", 3))}) lgkmcnt(0)')
    TS(3)
    A('s_barrier')
    TS(4)

    carry = []
    SK = CFG.get('skew', 3)

    def pv(i, vset, fill, late=()):
        par = i & 1
        TC(1, i + 2)
        if i == 7:
            A('ds_read_b32 v42, v41')
        A(f'ds_read_b128 {v4(VP[par])}, v{VPR} offset:{par * 2560}')
        A(f'ds_read_b128 {v4(VP[par] + 4)}, v{VPR} offset:{par * 2560 + 32}')
        emit(carry)
        carry.clear()
        A('s_waitcnt lgkmcnt(0)')
        if i == 7:
            A(f'v_readfirstlane_b32 s{sT0}, v42')
            A(f's_cmp_lg_u32 s{sT0}, 0')
            A('s_cbranch_scc1 L_pv_redo')
        TC(3, i + 2)
        m = []
        for ks in range(2):
            for ct in range(4):
                o = VO + 16 * ct
                m.append(f'v_mfma_f32_32x32x16_bf16 v[{o}:{o + 15}], {v4(VP[par] + 4 * ks)}, {v4(VV[vset] + 8 * ct + 4 * ks)}, v[{o}:{o + 15}]')
        k = SK if i < 6 else (CFG.get('skew6', 2 if CFG.get('t7', 1) else 4) if i == 6 else 0)
        if k:
            carry.extend(m[-k:])
            m = m[:-k]
        interleave(m, fill)
        TC(4, i + 2)

    def dmas(n):
        out = []
        for _ in range(n):
            T, k = todo.pop(0)
            out.append(kv_instr(T, k, vm))
        return out

    def endstep(T=None, lg=None):
        if T is not None:
            A(f's_waitcnt vmcnt({vm.after(("kv", T))})')
        if lg is not None:
            A(f's_waitcnt lgkmcnt({lg})')
        A('s_barrier')

    sp += [0] * 8
    T7 = CFG.get('t7', 1)
    emit(v_read_list(3, 3))
    emit(dmas(sp[1]))
    endstep(lg=0)
    pv(0, 0, dmas(sp[2]))
    endstep(4)
    pv(1, 1, dmas(sp[3]) + v_read_list(4, 0))
    endstep(5)
    pv(2, 2, dmas(sp[4]) + v_read_list(5, 1))
    endstep(6)
    pv(3, 3, dmas(sp[5]) + v_read_list(6, 2))
    endstep(7 if T7 else None)

    def w2_ops(half):
        if not CFG.get('ew2', 1):
            return []
        o = [[f's_min_u32 s{sT0}, s{sU}, 13', f's_lshr_b32 s{sT0}, s{sT0}, 1', f's_mul_i32 s{sT1}, s{sXC}, 7',
              f's_add_u32 s{sT0}, s{sT0}, s{sT1}', f's_lshl_b32 s{sT0}, s{sT0}, 15', f's_add_u32 s{sT0}, s{sT0}, s{sT5}',
              f's_add_u32 s{sT0}, s{sT0}, {half * 4096}', f's_add_u32 m0, s{sT5}, {L_W2 + half * 4096}', 'v_lshlrev_b32 v43, 4, v0',
              f's_and_b32 s{sT1}, s{sW}, 1', f's_lshl_b32 s{sT1}, s{sT1}, 7', f'v_xor_b32 v43, s{sT1}, v43']]
        for i in range(4):
            o.append([f'v_xor_b32 v46, {i * 32}, v43',
                      f'buffer_load_dwordx4 v46, {srd(sW2)}, s{sT0} offen offset:{i * 1024} {POL.get(sW2, NTW)} lds'])
        return o
    nw2 = 8 if CFG.get('ew2', 1) else 0
    pv(4, 0, w2_ops(0))
    endstep()
    pv(5, 1, w2_ops(1) + (v_read_list(7, 3) if T7 else []))
    if not T7:
        A(f's_waitcnt vmcnt({nw2})')
    endstep()
    A('v_lshrrev_b32 v44, 1, v2')
    A('v_and_b32 v45, 1, v2')
    A('v_lshl_add_u32 v44, v44, 2, v45')
    A('v_lshlrev_b32 v44, 17, v44')
    A('v_lshl_add_u32 v44, v1, 4, v44')
    A(f's_lshl_b32 s{sT1}, s{sT4P}, 15')
    A(f's_lshl_b32 s{sT2}, s{sSID}, 8')
    A(f's_add_u32 s{sT1}, s{sT1}, s{sT2}')
    A(f's_add_u32 s{sT1}, s{sT1}, {OP}')
    A(f's_mov_b32 s{sT3}, 0x00010001')
    if T7:
        pv(6, 2, [])
        endstep()
    else:
        pv(6, 2, v_read_list(7, 3))
        endstep()
        emit(carry)
        carry.clear()
        endstep()
    pv(7, 3, [])
    TS(7)
    for j in range(8):
        r = 2 * j
        d = 160 + 4 * j
        A(f'v_cvt_pk_bf16_f32 v{d}, v{VO + r}, v{VO + 16 + r}')
        A(f'v_cvt_pk_bf16_f32 v{d + 1}, v{VO + r + 1}, v{VO + 16 + r + 1}')
        A(f'v_cvt_pk_bf16_f32 v{d + 2}, v{VO + 32 + r}, v{VO + 48 + r}')
        A(f'v_cvt_pk_bf16_f32 v{d + 3}, v{VO + 32 + r + 1}, v{VO + 48 + r + 1}')
        if j:
            st_o(j - 1)
    st_o(7)
    TS(8)
    A('s_branch L_att_post')
    A('L_pv_redo:')
    A('s_waitcnt vmcnt(0) lgkmcnt(0)')
    A('s_barrier')
    A(f's_mov_b32 s{sPASS}, 1')
    A('s_nop 7')
    A('s_branch L_pv_start')


def st_o(j):
    r = 2 * j
    d = 160 + 4 * j
    A(f'v_permlane16_swap_b32 v{d}, v{d + 1}')
    A(f'v_permlane16_swap_b32 v{d + 2}, v{d + 3}')
    for q in range(4):
        A(f'v_bfi_b32 v{d + q}, s{sT3}, v{VTG + q}, v{d + q}')
    head0 = (r & 3) + 8 * (r >> 2)
    A(f's_add_u32 s{sT2}, s{sT1}, {head0 * 131072}')
    A(f'buffer_store_dwordx4 {v4(d)}, v44, {srd(sWS)}, s{sT2} offen sc1')


def t3_t4():
    A('L_att_post:')
    A(f's_cmp_ge_u32 s{sU}, 14')
    A('s_cbranch_scc1 L_fin')
    A(f's_lshr_b32 s{sT4}, s{sU}, 1')
    A(f's_mul_i32 s{sT1}, s{sXC}, 7')
    A(f's_add_u32 s{sT4}, s{sT4}, s{sT1}')
    A(f's_and_b32 s{sT5}, s{sU}, 1')
    A('v_lshrrev_b32 v44, 2, v0')
    A('v_mul_u32_u24 v44, 3584, v44')
    A('v_and_b32 v45, 3, v0')
    A('v_lshrrev_b32 v32, 5, v0')
    A('v_lshlrev_b32 v32, 1, v32')
    A('v_xor_b32 v45, v45, v32')
    A('v_lshl_add_u32 v44, v45, 4, v44')
    A('v_lshlrev_b32 v32, 4, v0')
    A(f's_lshl_b32 s{sT0}, s{sT4}, 6')
    A(f's_mul_i32 s{sT1}, s{sW}, {64 * 3584}')
    A(f's_add_u32 s{sT0}, s{sT0}, s{sT1}')
    A(f's_lshl_b32 s{sT1}, s{sW}, 12')
    A(f's_add_u32 s{sT2}, s{sT1}, {L_W1}')
    A('s_barrier')
    for i in range(4):
        dma(44, sW1, f's{sT0}', lds_s=sT2)
        if i < 3:
            A(f's_add_u32 s{sT0}, s{sT0}, {16 * 3584}')
            A(f's_add_u32 s{sT2}, s{sT2}, 1024')
    if not CFG.get('ew2', 1):
        A(f's_lshl_b32 s{sT0}, s{sT4}, 15')
        A(f's_add_u32 s{sT0}, s{sT0}, s{sT1}')
        A(f's_add_u32 m0, s{sT1}, {L_W2}')
        for i in range(4):
            o = f' offset:{i * 1024}' if i else ''
            A(f'buffer_load_dwordx4 v32, {srd(sW2)}, s{sT0} offen{o} {POL.get(sW2, NTW)} lds')
    A('v_and_b32 v38, 3, v1')
    A(f's_lshl_b32 s{sT0}, s{sT5}, 12')
    A(f's_lshl_b32 s{sT1}, s{sW}, 9')
    A(f's_add_u32 s{sT1}, s{sT1}, s{sT0}')
    A('v_and_b32 v33, 31, v0')
    A('v_lshlrev_b32 v33, 4, v33')
    A('v_lshrrev_b32 v34, 5, v0')
    A('v_lshl_add_u32 v33, v34, 3, v33')
    A(f'buffer_load_dwordx2 v[40:41], v33, {srd(sX_)}, s{sT1} offen')
    A(f's_add_u32 s{sT1}, s{sT1}, {MODL}')
    A(f's_add_u32 s{sT2}, s{sT1}, 8192')
    A(f's_add_u32 s{sT3}, s{sT1}, 16384')

    def ldm():
        for k in range(3):
            A(f'buffer_load_dwordx2 {v2(44 + 2 * k)}, v33, {srd(sWS)}, s{sT1 + k} offen sc1')
    poll(ldm, range(44, 50), 56)
    A(f's_lshr_b32 s{sT0}, s{sW}, 1')
    A(f's_and_b32 s{sT1}, s{sW}, 1')
    A(f's_mul_i32 s{sT2}, s{sT0}, 1040')
    A(f's_lshl_b32 s{sT3}, s{sT1}, 9')
    A(f's_add_u32 s{sT2}, s{sT2}, s{sT3}')
    A(f's_add_u32 s{sT2}, s{sT2}, {L_H2}')
    A(f'v_add_u32 v39, s{sT2}, v33')
    A(f'ds_write_b64 v39, v[48:49] offset:{4 * 1040}')
    A(f'ds_write_b64 v39, v[46:47] offset:{8 * 1040}')
    unpack(160, 40, 2)
    unpack(164, 44, 2)
    unpack(168, 48, 2)
    A('s_waitcnt lgkmcnt(0)')
    A('s_barrier')
    if not CFG.get('tsloop', 0):
        TS(9)
    A('v_lshrrev_b32 v34, 2, v1')
    A('v_lshl_add_u32 v34, v2, 3, v34')
    A('v_lshlrev_b32 v35, 6, v34')
    A('v_lshl_add_u32 v35, v38, 3, v35')
    A('v_and_b32 v36, 1, v2')
    A(f'v_xor_b32 v36, s{sT1}, v36')
    A('v_lshl_add_u32 v35, v36, 5, v35')
    A(f's_lshl_b32 s{sT2}, s{sT0}, 13')
    A(f'v_add_u32 v35, s{sT2}, v35')
    for t in range(4):
        for eh in range(2):
            A(f'ds_read_b64_tr_b16 {v2(128 + 4 * t + 2 * eh)}, v35 offset:{L_W1 + t * 2048 + eh * 256}')
    A('v_lshlrev_b32 v35, 10, v34')
    A('v_lshl_add_u32 v35, v38, 3, v35')
    A('v_lshrrev_b32 v36, 2, v1')
    A('v_and_b32 v37, 1, v2')
    A('v_lshl_add_u32 v36, v37, 2, v36')
    A(f's_lshl_b32 s{sT2}, s{sW}, 2')
    A(f'v_xor_b32 v36, s{sT2}, v36')
    A('v_lshl_add_u32 v35, v36, 5, v35')
    assert L_W2 == 0 and CFG.get('ew2', 1)
    for tau in range(4):
        A(f'v_xor_b32 v36, {tau * 32}, v35')
        for eh in range(2):
            A(f'ds_read_b64_tr_b16 {v2(144 + 4 * tau + 2 * eh)}, v36 offset:{eh * 4096}')
    A('v_and_b32 v42, 7, v1')
    A('v_mul_u32_u24 v34, 1040, v42')
    A('v_lshl_add_u32 v34, v2, 4, v34')
    A(f's_lshl_b32 s{sT2}, s{sT0}, 8')
    A(f's_add_u32 s{sT2}, s{sT2}, {L_H2}')
    A(f'v_add_u32 v34, s{sT2}, v34')
    A('v_mul_u32_u24 v35, 144, v42')
    A('v_lshl_add_u32 v35, v2, 4, v35')
    A(f's_mul_i32 s{sT2}, s{sT0}, 1216')
    A(f's_lshl_b32 s{sT3}, s{sT1}, 6')
    A(f's_add_u32 s{sT2}, s{sT2}, s{sT3}')
    A(f's_add_u32 s{sT2}, s{sT2}, {L_FP}')
    A(f'v_add_u32 v35, s{sT2}, v35')
    A('v_lshrrev_b32 v36, 2, v1')
    A('v_mul_u32_u24 v36, 1216, v36')
    A('v_mul_u32_u24 v43, 144, v38')
    A('v_add_u32 v36, v36, v43')
    A('v_lshl_add_u32 v36, v2, 5, v36')
    A(f'v_add_u32 v36, {L_FP}, v36')
    A('v_lshrrev_b32 v37, 1, v38')
    A('v_mul_u32_u24 v37, 7168, v37')
    A('v_and_b32 v43, 1, v38')
    A('v_lshl_add_u32 v37, v43, 6, v37')
    A('v_lshl_add_u32 v37, v2, 4, v37')
    A('v_lshrrev_b32 v43, 2, v1')
    A(f'v_mul_u32_u24 v43, {4 * 7168}, v43')
    A('v_add_u32 v37, v37, v43')
    A('v_lshlrev_b32 v50, 4, v38')
    A(f'v_add_u32 v50, {L_ST}, v50')
    A(f's_lshl_b32 s{sT2}, s{sW}, 3')
    A(f's_add_u32 s{sT2}, s{sT2}, {L_ST}')
    A(f'v_mov_b32 v51, s{sT2}')
    for t in range(4):
        A(f'ds_read_b128 {v4(64 + 4 * t)}, v34 offset:{4 * 1040 + 64 * t}')
    A('s_waitcnt lgkmcnt(0)')
    for t in range(4):
        c = '0' if t == 0 else 'v[80:83]'
        A(f'v_mfma_f32_16x16x32_bf16 v[80:83], {v4(128 + 4 * t)}, {v4(64 + 4 * t)}, {c}')
    exec_set(0x00ff00ff, 0x00ff00ff)
    A('ds_write_b128 v35, v[80:83]')
    exec_all()
    A('s_waitcnt lgkmcnt(0)')
    A('s_barrier')
    A('ds_read_b128 v[176:179], v36')
    A('ds_read_b128 v[180:183], v36 offset:16')
    A('ds_read_b128 v[184:187], v36 offset:576')
    A('ds_read_b128 v[188:191], v36 offset:592')
    A(f's_lshl_b32 s{sT2}, s{sT5}, 15')
    A(f's_lshl_b32 s{sT3}, s{sT0}, 13')
    A(f's_add_u32 s{sT2}, s{sT2}, s{sT3}')
    A(f's_lshl_b32 s{sT3}, s{sT1}, 9')
    A(f's_add_u32 s{sT2}, s{sT2}, s{sT3}')
    A(f's_add_u32 s{sT2}, s{sT2}, {OPART}')
    A(f's_add_u32 s{sT3}, s{sT2}, 4096')
    A(f's_lshl_b32 s{sT0}, s{sW}, 4')
    A(f's_lshl_b32 s{sT1}, s{sT5}, 1')
    A(f's_add_u32 s{sT0}, s{sT0}, s{sT1}')
    A(f's_mul_i32 s{sT0}, s{sT0}, 7168')
    A(f's_lshl_b32 s{sT1}, s{sT4}, 7')
    A(f's_add_u32 s{sT0}, s{sT0}, s{sT1}')
    A(f's_add_u32 s{sT0}, s{sT0}, {YP}')
    A(f's_mov_b32 s{sT1}, 0xff')
    for r in range(4):
        A(f'v_lshrrev_b32 v{40 + r}, {8 * r}, s{sE}')
    A('s_waitcnt lgkmcnt(0)')
    for sh in (8, 4):
        for i in range(16):
            A(f'v_add_f32_dpp v{176 + i}, v{176 + i}, v{176 + i} row_ror:{sh} {DPPM}')

    A('v_and_b32 v57, 31, v0')
    A('v_lshlrev_b32 v57, 4, v57')
    A('v_lshrrev_b32 v58, 5, v0')
    A('v_lshl_add_u32 v57, v58, 12, v57')

    def ldo():
        for k in range(4):
            A(f'buffer_load_dwordx4 {v4(64 + 4 * k)}, v57, {srd(sWS)}, s{sT2} offen offset:{1024 * k} sc1')
    if CFG.get('h3', 2) >= 0:
        sk = lab('nohw')
        A(f's_cmp_lg_u32 s{sW}, 0')
        A(f's_cbranch_scc1 {sk}')
        A(f's_lshl_b32 s{sKB}, s{sSID}, 7')
        A(f's_add_u32 s{sKB}, s{sKB}, {F3}')
        hint_wait(sKB, sT4P)
        A(f'{sk}:')
        A('s_barrier')
    TP(1)
    poll(ldo, range(64, 80, 2), 56, sleep=CFG.get('sl_o', 0), pre_sleep=CFG.get('sl_o0', 0))
    if not CFG.get('tsloop', 0):
        TS(10)
    TP(2)
    if CFG.get('h5', 0) == 0:
        hint_pub(F4 + 64, 6, 112, sKB)
    if CFG.get('h4', 2) == 0:
        hint_pub(F4, 7, 112, sKB)
    unpack(80, 64, 16)
    n = 32
    while n > 8:
        n //= 2
        for i in range(0, n, 2):
            A(f'v_pk_add_f32 {v2(80 + i)}, {v2(80 + i)}, {v2(80 + n + i)}')
    for i in range(4):
        A(f'v_permlane32_swap_b32 v{80 + i}, v{84 + i}')
    A('v_pk_add_f32 v[80:81], v[80:81], v[84:85]')
    A('v_pk_add_f32 v[82:83], v[82:83], v[86:87]')
    for i in range(4):
        A(f'v_fma_f32 v{80 + i}, v{80 + i}, v{164 + i}, v{160 + i}')
    for i in range(4):
        A(f'v_mul_f32 v{84 + i}, v{80 + i}, v{168 + i}')
    A('v_cvt_pk_bf16_f32 v88, v84, v85')
    A('v_cvt_pk_bf16_f32 v89, v86, v87')
    A('ds_write_b64 v39, v[88:89]')
    A('v_add_f32 v52, v80, v81')
    A('v_mul_f32 v53, v80, v80')
    A('v_add_f32 v54, v82, v83')
    A('v_fmac_f32 v53, v81, v81')
    A('v_add_f32 v52, v52, v54')
    A('v_fmac_f32 v53, v82, v82')
    A('v_fmac_f32 v53, v83, v83')
    TP(3)
    A('s_waitcnt lgkmcnt(0)')
    A('s_barrier')
    TP(4)
    for t in range(4):
        A(f'ds_read_b128 {v4(64 + 4 * t)}, v34 offset:{64 * t}')
    if CFG.get('h5', 0) == 1:
        hint_pub(F4 + 64, 6, 112, sKB)
    if CFG.get('h4', 2) == 1:
        hint_pub(F4, 7, 112, sKB)
    row_reduce('v_add_f32', [52, 53])
    for t in range(4):
        A(f's_waitcnt lgkmcnt({3 - t})')
        c = '0' if t == 0 else 'v[80:83]'
        A(f'v_mfma_f32_16x16x32_bf16 v[80:83], {v4(128 + 4 * t)}, {v4(64 + 4 * t)}, {c}')
    for r in (52, 53):
        A(f'v_add_f32_dpp v{r}, v{r}, v{r} row_bcast:15 row_mask:0xa bank_mask:0xf')
    for r in (52, 53):
        A(f'v_add_f32_dpp v{r}, v{r}, v{r} row_bcast:31 row_mask:0xc bank_mask:0xf')
    exec_set(0, 0x80000000)
    A('ds_write_b64 v51, v[52:53]')
    exec_set(0x000f000f, 0x000f000f)
    A('ds_write_b128 v35, v[80:83]')
    exec_all()
    TP(5)
    A('s_waitcnt lgkmcnt(0)')
    A('s_barrier')
    TP(6)
    A('ds_read_b128 v[52:55], v50')
    A('ds_read_b128 v[64:67], v36')
    A('ds_read_b128 v[68:71], v36 offset:16')
    if CFG.get('h4', 2) == 2:
        hint_pub(F4, 7, 112, sKB)
    A('s_waitcnt lgkmcnt(2)')
    A('v_add_f32 v52, v52, v54')
    A('v_add_f32 v53, v53, v55')
    A('v_mul_f32 v52, 0x3b000000, v52')
    A('v_mul_f32 v53, 0x3b000000, v53')
    A('v_fma_f32 v53, -v52, v52, v53')
    A('v_max_f32 v53, 0, v53')
    A('v_add_f32 v53, 0x3727c5ac, v53')
    A('v_rsq_f32 v53, v53')
    A('s_waitcnt lgkmcnt(0)')
    for sh in (8, 4):
        for i in range(8):
            A(f'v_add_f32_dpp v{64 + i}, v{64 + i}, v{64 + i} row_ror:{sh} {DPPM}')
    A('v_mov_b32 v54, v53')
    A('v_mov_b32 v55, v53')
    A('v_sub_f32 v52, 0, v52')
    A('v_mov_b32 v53, v52')
    for i in range(0, 8, 2):
        A(f'v_pk_fma_f32 {v2(64 + i)}, v[52:53], {v2(176 + i)}, {v2(64 + i)}')
    for i in range(0, 8, 2):
        A(f'v_pk_fma_f32 {v2(64 + i)}, v[54:55], {v2(64 + i)}, {v2(184 + i)}')
    for i in range(4):
        A(f'v_cvt_pk_bf16_f32 v{72 + i}, v{64 + 2 * i}, v{65 + 2 * i}')
    for i in range(4):
        A(f'v_pk_max_i16 v{72 + i}, v{72 + i}, 0')
    TP(7)
    for tau in range(4):
        A(f'v_mfma_f32_16x16x32_bf16 {v4(80 + 4 * tau)}, {v4(144 + 4 * tau)}, v[72:75], 0')
    for tau in range(1, 4):
        for r in range(4):
            A(f'v_mov_b32_dpp v{80 + r}, v{80 + 4 * tau + r} quad_perm:[0,1,2,3] row_mask:0xf bank_mask:{1 << tau:#x}')
    for r in range(4):
        A(f'v_bfi_b32 v{80 + r}, s{sT1}, v{40 + r}, v{80 + r}')
    A(f'buffer_store_dwordx4 v[80:83], v37, {srd(sWS)}, s{sT0} offen sc1')
    if CFG.get('h4', 2) == 3:
        hint_pub(F4, CFG.get('h4w', 0), 112, sKB)
    TP(8)


def epilogue():
    A('L_fin:')
    if CFG['ts']:
        A('s_waitcnt lgkmcnt(0)')
        A(f's_lshl_b32 s{sT0}, s2, 9')
        A(f's_lshl_b32 s{sT1}, s{sW}, 6')
        A(f's_add_u32 s{sT0}, s{sT0}, s{sT1}')
        A(f's_add_u32 s{sT0}, s{sT0}, {TSB}')
        A('v_mov_b32 v4, 0')
        for i in range(NTS):
            A(f'v_writelane_b32 v4, s{sTS + 2 * i}, {i}')
        A(f's_memtime s[{sT2}:{sT3}]')
        A(f's_memrealtime s[{sT4}:{sT5}]')
        A('s_waitcnt lgkmcnt(0)')
        A(f'v_writelane_b32 v4, s{sT2}, 12')
        A(f'v_writelane_b32 v4, s{sT4}, 13')
        A(f'v_writelane_b32 v4, s{sT4}, 11')
        A(f'v_writelane_b32 v4, s{sEX}, 14')
        A(f's_getreg_b32 s{sT1}, hwreg(HW_REG_XCC_ID)')
        A(f'v_writelane_b32 v4, s{sT1}, 15')
        A('v_lshlrev_b32 v5, 2, v0')
        exec_set(0xffff, 0)
        A(f'buffer_store_dword v4, v5, {srd(sWS)}, s{sT0} offen')
        if CFG.get('dbg', 0):
            exec_all()
            A(f's_load_dwordx2 s[{sT0}:{sT1}], s[0:1], 96')
            A(f's_mov_b32 s{sT2}, 256')
            A(f's_mov_b32 s{sT3}, 0x00020000')
            A(f'v_subrev_u32 v4, s{sTS}, v4')
            A('s_waitcnt lgkmcnt(0)')
            for wg, wv, lanes, base in ((8, 0, (1, 2, 5, 6, 7, 9, 10), 0), (8, 2, (11,), 7), (136, 0, (2, 3, 4, 8, 10), 8), (136, 4, (2, 3, 11), 13)):
                nx = lab('dbg')
                A(f's_cmp_lg_u32 s2, {wg}')
                A(f's_cbranch_scc1 {nx}')
                A(f's_cmp_lg_u32 s{sW}, {wv}')
                A(f's_cbranch_scc1 {nx}')
                for i, ln in enumerate(lanes):
                    A(f'v_mov_b32 v5, {4 * (base + i)}')
                    exec_set(1 << ln, 0)
                    A(f'buffer_store_dword v4, v5, s[{sT0}:{sT3}], 0 offen')
                    exec_all()
                A(f'{nx}:')
        if 'diag' in CFG:
            wg, wv, idx = [int(x) for x in str(CFG['diag']).split(',')]
            exec_all()
            A(f's_cmp_lg_u32 s2, {wg}')
            A('s_cbranch_scc1 L_end')
            A(f's_cmp_lg_u32 s{sW}, {wv}')
            A('s_cbranch_scc1 L_end')
            src_ = sT4 if idx == 11 else sTS + 2 * idx
            A(f's_sub_u32 s{sT0}, s{src_}, s{sTS}')
            A(f's_lshl_b32 s{sT0}, s{sT0}, 2')
            A(f's_add_u32 s{sT0}, s{sT0}, 5000')
            A(f's_min_u32 s{sT0}, s{sT0}, 30000')
            A('L_diag:')
            A(f's_memrealtime s[{sT2}:{sT3}]')
            A('s_waitcnt lgkmcnt(0)')
            A(f's_sub_u32 s{sT2}, s{sT2}, s{sTS}')
            A(f's_cmp_lt_u32 s{sT2}, s{sT0}')
            A('s_cbranch_scc1 L_diag')
    A('L_end:')
    A('s_endpgm')


def main():
    if CFG['ts']:
        for i in range(1, NTS):
            A(f's_mov_b32 s{sTS + 2 * i}, 0')
    prologue()
    att_front()
    service_issue()
    att_stub()
    att_p1()
    service_pre()
    t1()
    t2_final()
    pv_wave()
    qk_wave()
    t3_t4()
    epilogue()
    body = A.finalize()
    ref = open(os.path.join(os.path.dirname(os.path.abspath(__file__)), '..', NAME + '.s.ref')).read()
    head = ref[:ref.index('; @launch')]
    out = head + f'; @launch grid=(256,1,1) block=(512,1,1) lds={LDS_BYTES}\n'
    if CFG['ts'] or CFG.get('lay', 0):
        out += '; @layout ' + ' '.join(f'{k}={globals()[k]}' for k in ('MOD1', 'Q2', 'QA', 'MODL', 'STATS', 'CTX', 'OPART', 'YP', 'OP', 'TSB')) + '\n'
    out += f""".amdgcn_target "amdgcn-amd-amdhsa--gfx950"
.text
; ---------------------------------------------------------------------------------------------------------------
; Generated by gen/gen27.py (hand-written generator).  One persistent launch, 256 co-resident workgroups.
; Math: absorbed MLA (q_abs = q w_uk^T, scores = q_abs . c_kv, ctx = (P c_kv) w_uv), split-KV softmax merged with
;   exact (m, l) statistics.  Each split subtracts the max of its first key tile; a run-time check (largest exponent
; Roles: wg>>3 >= 16: attention (+ mod partials, FFN);  wg>>3 < 16: q / q_abs, merge + w_uv, w_o, output.
; Hand-offs go through d_ws: every datum carries its own validity (launch tag derived from ws[0], or a sentinel in a
;   region cleared earlier in the same launch); "hint" lines only choose when to read.  Stores are write-through
; ---------------------------------------------------------------------------------------------------------------
.globl {NAME}_kernel
.p2align 8
.type {NAME}_kernel,@function
{NAME}_kernel:
"""
    out += body
    out += 'L_code_end:\n'
    out += f""".section .rodata,"a"
.p2align 6
.amdhsa_kernel {NAME}_kernel
  .amdhsa_next_free_vgpr 256
  .amdhsa_next_free_sgpr 102
  .amdhsa_accum_offset 256
  .amdhsa_group_segment_fixed_size 0
  .amdhsa_kernarg_size 112
  .amdhsa_user_sgpr_count 2
  .amdhsa_user_sgpr_kernarg_segment_ptr 1
  .amdhsa_system_sgpr_workgroup_id_x 1
.end_amdhsa_kernel
"""
    open(sys.argv[1], 'w').write(out)


if __name__ == '__main__':
    main()
```

```python
import sys, os
sys.path.insert(0, os.path.dirname(os.path.abspath(__file__)))
from asmlib import Asm

NAME = 'adaLN_cond__compressed_kv_cla__dense_activation_relu__decode'

CFG = dict(
    sflag=1, slowp=1, sparse=0, depth=10, sl_qa0=0, flag_at=2, h4=3, n0=8, npre=32, spread='6,10,4,8,4', lag3=0, npf=14, ew2=2, vf='0,0', sl_y0=0, sl_pub=0, sl_q2=0, sl_ctx=0, pq2=1, p_wm='-', p_w1='-', p_w2='-', p_wo='-',
    ts=0,
    poll_max=60000,
    nt='nt',
    ntw='nt',
)
for a_ in sys.argv[2:]:
    k_, v_ = a_.split('=')
    CFG[k_] = int(v_) if v_.lstrip('-').isdigit() else v_
NT = CFG['nt'] if CFG['nt'] != '-' else ''
NTW = CFG['ntw'] if CFG['ntw'] != '-' else ''

PFK = CFG.get('pfk', '-').replace('-', '')
PFW = CFG.get('pfw', '-').replace('-', '')
EPOCH = 0
CS = CFG.get('cs', 18)
XID = 0x1000
CLR_E = 0x8000
MODL = CLR_E
STATS = MODL + 0x8000
FLG = STATS + 0x8000
CLR_L = FLG + 0x4000
OPART = CLR_L
F3, F4 = OPART + 0x10000, OPART + 0x14000
YP = OPART + 0x18000
CLR_E_PER = (CLR_L - CLR_E) // 128
CLR_L_PER = (YP - CLR_L) // 128
QA = 0x200000
CTX = QA + 0x8000
Q2 = QA + 0x10000
M2 = QA + 0x20000
MOD1 = QA + 0x30000
MSH = 12
OP = QA + (8 << CS)
WS_END = OP + 0x400000
DBR = FK = 0
TSB = 0xe00000
WS_SIZE = 0xf00000

L_WUV = 0
L_W1 = 32768
L_W2 = 0
L_WO = 32768
L_WQ = 98304
MISC = 131072
L_WM = MISC
L_WML = MISC + 8192
SCR = MISC + 24576
L_XN = L_WO
L_RED1 = MISC + 16384
L_WM1 = MISC
L_SF = L_WO + 12288
L_H = L_WO + 16384
L_QL = L_WO + 20480
L_RED3 = L_WQ
L_Q = MISC
PBUF = MISC
L_LS = MISC + 8192
L_MX = MISC + 31744
L_FLAG = L_MX + 512
L_H2 = MISC + 8192
L_FP = MISC + 21504
L_ST = MISC + 26624
L_XOK = SCR + 4352
L_WT = SCR
L_CC = SCR + 2048
LDS_BYTES = 163840

sX_, sKV, sWQ, sWUK, sWUV, sWO, sW1, sW2, sC, sWM, sOUT, sWS = [4 + 4 * i for i in range(12)]


def srd(n):
    return f's[{n}:{n + 3}]'


sXC, sR, sU, sSID, sW, sE, sTLO, sTHI, sH, sCQ, sBH, sCNT = range(52, 64)
sT0, sT1, sT2, sT3, sT4, sT5 = range(64, 70)
sEX = 70
sLNK = 72
sTGT = 74
sPE, sPO = 76, 77
sTB = sWQ
ROT = CFG.get('rot', 1)
sX64, sX32 = 72, 73
sKB = 78
sWB = sBH
sXT = sW1
sXID, sLOC = sW1, sW1 + 1
sA0, sA1 = sW2 + 1, sW2 + 2
sM0, sM1 = sW1 + 2, sW1 + 3
sMS = sW2 + 3
sCX = sW2
sTS = 80
NTS = 11

A = Asm()
POL = {}
for nm_, s_ in (('wm', sWM), ('wq', sWQ), ('wuk', sWUK), ('wuv', sWUV), ('wo', sWO), ('w1', sW1), ('w2', sW2)):
    if 'p_' + nm_ in CFG:
        POL[s_] = CFG['p_' + nm_].replace('-', '')
_late = [0]
_lab = [0]


def lab(p='L'):
    _lab[0] += 1
    return f'{p}_{_lab[0]}'


def v4(n):
    return f'v[{n}:{n + 3}]'


def v2(n):
    return f'v[{n}:{n + 1}]'


def TF(i):
    if CFG['ts'] and CFG.get('tsfront', 0):
        A(f's_memrealtime s[{sTS + 2 * i}:{sTS + 2 * i + 1}]')


def TL(i):
    if CFG['ts'] and CFG.get('tslate', 0):
        A(f's_memrealtime s[{sTS + 2 * i}:{sTS + 2 * i + 1}]')


def TP(i):
    if CFG['ts'] and CFG.get('tsstep', -1) == 200:
        A(f's_memtime s[{sTS + 2 * i}:{sTS + 2 * i + 1}]')


def TC(i, j):
    if CFG['ts'] and CFG.get('tsstep', -1) == j:
        A(f's_memtime s[{sTS + 2 * i}:{sTS + 2 * i + 1}]')


def TS(i):
    if CFG['ts'] and not (CFG.get('tsfront', 0) and i >= 3) and not (CFG.get('tsstep', -1) >= 0 and i >= 1):
        assert i < NTS
        A(f's_mem{"" if CFG.get("tscyc", 0) else "real"}time s[{sTS + 2 * i}:{sTS + 2 * i + 1}]')


def exec_set(lo, hi):
    A(f's_mov_b32 exec_lo, {lo:#x}')
    A(f's_mov_b32 exec_hi, {hi:#x}')


def exec_all():
    A('s_mov_b64 exec, -1')


def rne1(d, s):
    A(f'v_cvt_pk_bf16_f32 v{d}, 0, v{s}')


def rne2(d0, d1, s0, s1):
    rne1(d0, s0)
    rne1(d1, s1)


def unpack(dst, src, n):
    for i in range(n):
        A(f'v_lshlrev_b32 v{dst + 2 * i}, 16, v{src + i}')
        A(f'v_and_b32 v{dst + 2 * i + 1}, 0xffff0000, v{src + i}')


DPPM = 'row_mask:0xf bank_mask:0xf'


def row_reduce(op, regs):
    for sh in (8, 4, 2, 1):
        for r in regs:
            A(f'{op}_dpp v{r}, v{r}, v{r} row_ror:{sh} {DPPM}')


def wave_sum(regs, sdst):
    row_reduce('v_add_f32', regs)
    for r in regs:
        A(f'v_add_f32_dpp v{r}, v{r}, v{r} row_bcast:15 row_mask:0xa bank_mask:0xf')
    for r in regs:
        A(f'v_add_f32_dpp v{r}, v{r}, v{r} row_bcast:31 row_mask:0xc bank_mask:0xf')
    for r, s in zip(regs, sdst):
        A(f'v_readlane_b32 s{s}, v{r}, 63')


def max_tree(regs, tmp):
    regs = list(regs)
    if len(regs) == 1:
        A(f'v_mov_b32 v{tmp}, v{regs[0]}')
        return
    if len(regs) == 2:
        A(f'v_max_u32 v{tmp}, v{regs[0]}, v{regs[1]}')
        return
    A(f'v_max3_u32 v{tmp}, v{regs[0]}, v{regs[1]}, v{regs[2]}')
    regs = regs[3:]
    while len(regs) >= 2:
        A(f'v_max3_u32 v{tmp}, v{tmp}, v{regs[0]}, v{regs[1]}')
        regs = regs[2:]
    if regs:
        A(f'v_max_u32 v{tmp}, v{tmp}, v{regs[0]}')


def poll(loads, check_regs, tmp, sleep=1, pre_sleep=0, check=None):
    top, done = lab('poll'), lab('pdone')
    A(f's_mov_b32 s{sCNT}, {CFG["poll_max"]}')
    if pre_sleep:
        A(f's_sleep {pre_sleep}')
    A(f'{top}:')
    loads()
    A('s_waitcnt vmcnt(0)')
    if check:
        check()
    else:
        max_tree(check_regs, tmp)
        A(f'v_cmp_eq_u32 vcc, -1, v{tmp}')
    A(f's_cbranch_vccz {done}')
    if sleep:
        A(f's_sleep {sleep}')
    A(f's_sub_u32 s{sCNT}, s{sCNT}, 1')
    A(f's_cbranch_scc0 {top}')
    A(f'{done}:')


def hint_pub(region, wave, vt, st):
    sk = lab('nohint')
    A(f's_cmp_lg_u32 s{sW}, {wave}')
    A(f's_cbranch_scc1 {sk}')
    A(f's_lshl_b32 s{st}, s{sSID}, 7')
    A(f's_add_u32 s{st}, s{st}, {region}')
    A(f'v_mov_b32 v{vt}, s{sE}')
    A(f'v_mov_b32 v{vt + 1}, 0')
    exec_set(1, 0)
    A(f'buffer_store_dword v{vt}, v{vt + 1}, {srd(sWS)}, s{st} offen sc1')
    exec_all()
    A(f'{sk}:')


def hint_wait(s_off, st, sleep=0):
    top, done = lab('hw'), lab('hd')
    A(f's_mov_b32 s{sCNT}, {CFG["poll_max"]}')
    A(f'{top}:')
    A(f's_load_dword s{st}, s[{sWS}:{sWS + 1}], s{s_off} glc')
    A('s_waitcnt lgkmcnt(0)')
    A(f's_cmp_eq_u32 s{st}, s{sE}')
    A(f's_cbranch_scc1 {done}')
    if sleep:
        A(f's_sleep {sleep}')
    A(f's_sub_u32 s{sCNT}, s{sCNT}, 1')
    A(f's_cbranch_scc0 {top}')
    A(f'{done}:')


def layernorm_rows(x, t, out_bf):
    A(f'v_readfirstlane_b32 s{sT0}, v{x}')
    for i in range(8):
        A(f'v_subrev_f32 v{t + i}, s{sT0}, v{x + i}')
    A(f'v_add_f32 v{t + 8}, v{t}, v{t + 1}')
    A(f'v_mul_f32 v{t + 9}, v{t}, v{t}')
    A(f'v_fmac_f32 v{t + 9}, v{t + 1}, v{t + 1}')
    for i in range(2, 8):
        A(f'v_add_f32 v{t + 8}, v{t + 8}, v{t + i}')
        A(f'v_fmac_f32 v{t + 9}, v{t + i}, v{t + i}')
    wave_sum([t + 8, t + 9], [sT1, sT2])
    inv = '0x3b000000'
    A(f'v_mov_b32 v{t}, {inv}')
    A(f'v_mul_f32 v{t + 1}, s{sT1}, v{t}')
    A(f'v_mul_f32 v{t + 2}, s{sT2}, v{t}')
    A(f'v_fma_f32 v{t + 2}, -v{t + 1}, v{t + 1}, v{t + 2}')
    A(f'v_max_f32 v{t + 2}, 0, v{t + 2}')
    A(f'v_add_f32 v{t + 1}, s{sT0}, v{t + 1}')
    rne2(t + 1, t + 2, t + 1, t + 2)
    A(f'v_add_f32 v{t + 2}, 0x3727c5ac, v{t + 2}')
    rne1(t + 2, t + 2)
    A(f'v_sqrt_f32 v{t + 2}, v{t + 2}')
    for i in range(8):
        A(f'v_sub_f32 v{x + i}, v{x + i}, v{t + 1}')
    rne1(t + 2, t + 2)
    A(f'v_rcp_f32 v{t + 2}, v{t + 2}')
    for i in range(0, 8, 2):
        rne2(x + i, x + i + 1, x + i, x + i + 1)
    for i in range(8):
        A(f'v_mul_f32 v{x + i}, v{x + i}, v{t + 2}')
    if out_bf is not None:
        for i in range(4):
            A(f'v_cvt_pk_bf16_f32 v{out_bf + i}, v{x + 2 * i}, v{x + 2 * i + 1}')
    else:
        for i in range(0, 8, 2):
            rne2(x + i, x + i + 1, x + i, x + i + 1)


def dma(voff, srd_, soff, lds_s=None, lds_imm=None, off=0, pol=None):
    if lds_s is not None:
        A(f's_mov_b32 m0, s{lds_s}')
    elif lds_imm is not None:
        A(f's_mov_b32 m0, {lds_imm}')
    if pol is None:
        pol = POL.get(srd_, NTW)
    if CFG.get('x_skip', 0) and _late[0]:
        return
    o = f' offset:{off}' if off else ''
    A(f'buffer_load_dwordx4 v{voff}, {srd(srd_)}, {soff} offen{o} {pol} lds')


VTR = 6
VR16 = 7
VWO = 192
VWOA = 5
sT4P = 79


SIZES = {sX_: 8192, sKV: 33554432, sWQ: 4194304, sWUK: 4194304, sWUV: 4194304, sWO: 4194304,
         sW1: 1835008, sW2: 1835008, sC: 8192, sWM: 3145728, sOUT: 8192, sWS: WS_SIZE}


def srd_tail(*regs):
    for s in regs:
        A(f's_mov_b32 s{s + 2}, {SIZES[s]}')
        A(f's_mov_b32 s{s + 3}, 0x00020000')


def late_ptrs(*regs):
    offs = {sWUV: 32, sWO: 40, sW1: 56, sW2: 64, sOUT: 88}
    A(f's_load_dword s{sE}, s[{sWS}:{sWS + 1}], {EPOCH}')
    for s in regs:
        A(f's_load_dwordx2 s[{s}:{s + 1}], s[0:1], {offs[s]}')
    srd_tail(*regs)


def cfrag_off():
    A('v_and_b32 v4, 7, v1')
    A('v_lshlrev_b32 v4, 10, v4')
    A('v_lshrrev_b32 v5, 3, v1')
    A('v_lshl_add_u32 v4, v5, 6, v4')
    A('v_lshl_add_u32 v4, v2, 4, v4')


def prologue():
    A('s_cmp_ge_u32 s2, 256')
    A('s_cbranch_scc1 L_end')
    TS(0)
    if CFG['ts']:
        A(f's_memtime s[{sEX}:{sEX + 1}]')
    for s, off in ((sC, 72), (sWM, 80), (sWS, 104), (sKV, 8), (sX_, 0), (sWQ, 16), (sWUK, 24)):
        A(f's_load_dwordx2 s[{s}:{s + 1}], s[0:1], {off}')
    A('v_mov_b32 v3, v0')
    A('v_lshrrev_b32 v4, 6, v0')
    A('v_and_b32 v0, 63, v0')
    A(f'v_readfirstlane_b32 s{sW}, v4')
    A('v_and_b32 v1, 15, v0')
    A('v_lshrrev_b32 v2, 4, v0')
    A(f's_and_b32 s{sXC}, s2, 7')
    A(f's_lshr_b32 s{sR}, s2, 3')
    A(f's_and_b32 s{sU}, s{sR}, 15')
    A(f's_lshl_b32 s{sSID}, s{sXC}, 4')
    A(f's_add_u32 s{sSID}, s{sSID}, s{sU}')
    A('v_lshlrev_b32 v16, 4, v3')
    srd_tail(sC, sWM, sWS, sX_)
    cfrag_off()
    A(f's_cmp_ge_u32 s{sR}, 16')
    A('s_cbranch_scc1 L_att0')
    A(f's_cmp_lg_u32 s{sW}, 0')
    A('s_cbranch_scc1 L_svc0')


def make_tag():
    A(f's_mul_i32 s{sE}, s{sE}, 0x9e3779b1')
    A(f's_add_u32 s{sE}, s{sE}, 0x7f4a7c15')
    A(f's_and_b32 s{sTLO}, s{sE}, 0xffff')
    A(f's_lshr_b32 s{sTHI}, s{sE}, 16')


def code_prefetch(vt):
    A(f's_getpc_b64 s[{sT0}:{sT1}]')
    here = lab('pc')
    A(f'{here}:')
    A(f's_sub_u32 s{sT0}, s{sT0}, {here}-{NAME}_kernel')
    A(f's_subb_u32 s{sT1}, s{sT1}, 0')
    A(f's_lshl_b32 s{sT2}, s{sW}, 4')
    A(f's_add_u32 s{sT2}, s{sT2}, s{sU}')
    A(f's_lshl_b32 s{sT2}, s{sT2}, 10')
    sk = lab('cpf')
    A(f's_cmp_ge_u32 s{sT2}, L_code_end-{NAME}_kernel')
    A(f's_cbranch_scc1 {sk}')
    A(f's_min_u32 s{sT2}, s{sT2}, L_code_end-{NAME}_kernel-1024')
    A(f'v_lshl_add_u32 v{vt}, v0, 4, s{sT2}')
    A(f'global_load_dwordx4 v[64:67], v{vt}, s[{sT0}:{sT1}]')
    A(f'{sk}:')


def silu_frag(src_=8, dst=24, n=4, fill=None):
    unpack(64, src_, n)
    t = 64 + 2 * n
    for i in range(2 * n):
        A(f'v_mul_f32 v{t + i}, 0xbfb8aa3b, v{64 + i}')
    for i in range(2 * n):
        A(f'v_exp_f32 v{t + i}, v{t + i}')
    if fill:
        fill()
    for i in range(2 * n):
        A(f'v_add_f32 v{t + i}, 1.0, v{t + i}')
    for i in range(2 * n):
        A(f'v_rcp_f32 v{t + i}, v{t + i}')
    for i in range(2 * n):
        A(f'v_mul_f32 v{64 + i}, v{64 + i}, v{t + i}')
    for i in range(n):
        A(f'v_cvt_pk_bf16_f32 v{dst + i}, v{64 + 2 * i}, v{65 + 2 * i}')


def tree_add(base, n, stop):
    while n > stop:
        n //= 2
        for i in range(n):
            A(f'v_add_f32 v{base + i}, v{base + i}, v{base + n + i}')


def pub_flag(w):
    sk = lab('noflg')
    A(f's_cmp_lg_u32 s{sW}, {w}')
    A(f's_cbranch_scc1 {sk}')
    A(f'v_mov_b32 v76, s{sE}')
    A(f'v_not_b32 v77, v76')
    A(f's_lshl_b32 s{sT3}, s{sSID}, 7')
    A(f's_add_u32 s{sT3}, s{sT3}, {FLG}')
    A('v_lshlrev_b32 v78, 3, v0')
    exec_set(0xffff, 0)
    A(f'buffer_store_dwordx2 v[76:77], v78, {srd(sWS)}, s{sT3} offen sc1')
    exec_all()
    A(f'{sk}:')


def tagbytes(v):
    A(f'v_and_b32 v{v}, 1, v0')
    A(f'v_lshlrev_b32 v{v}, 4, v{v}')
    A(f'v_lshrrev_b32 v{v}, v{v}, s{sE}')
    A(f'v_bfe_u32 v{v + 1}, v{v}, 8, 8')
    A(f'v_and_b32 v{v}, 0xff, v{v}')


def poll8(loads, base, tg, sleep, first_issued=False, pre_sleep=0, ntg=2, n=8, first_wait=0):
    top, done = lab('poll'), lab('pdone')
    A(f's_mov_b32 s{sCNT}, {CFG["poll_max"]}')
    if pre_sleep:
        A(f's_sleep {pre_sleep}')
    if not first_issued:
        loads()
    if first_wait is not None:
        A(f's_waitcnt vmcnt({first_wait})')
    A(f'{top}:')
    for i in range(n):
        A(f'v_xor_b32 v{base + i}, v{base + i}, v{tg + (i & (ntg - 1))}')
    t = base + n
    A(f'v_or3_b32 v{t}, v{base}, v{base + 1}, v{base + 2}')
    A(f'v_or3_b32 v{t + 1}, v{base + 3}, v{base + 4}, v{base + 5}')
    for i in range(6, n, 2):
        k = t + ((i >> 1) + 1 & 1)
        A(f'v_or3_b32 v{k}, v{k}, v{base + i}, v{base + i + 1}')
    A(f'v_or_b32 v{t}, v{t}, v{t + 1}')
    A(f'v_and_b32 v{t}, 0xff, v{t}')
    A(f'v_cmp_ne_u32 vcc, 0, v{t}')
    A(f's_cbranch_vccz {done}')
    if sleep:
        A(f's_sleep {sleep}')
    loads()
    A(f's_sub_u32 s{sCNT}, s{sCNT}, 1')
    A('s_waitcnt vmcnt(0)')
    A(f's_cbranch_scc0 {top}')
    A(f'{done}:')


def tile_addr():
    A(f's_lshr_b32 s{sH}, s{sSID}, 2')
    A(f's_and_b32 s{sCQ}, s{sU}, 3')
    A('v_lshlrev_b32 v29, 13, v2')
    A(f's_and_b32 s{sT5}, s{sW}, 3')
    A(f's_lshl_b32 s{sT3}, s{sCQ}, 20')
    A(f's_lshl_b32 s{sT4}, s{sT5}, 18')
    A(f's_add_u32 s{sT3}, s{sT3}, s{sT4}')
    A(f's_lshl_b32 s{sT4}, s{sH}, 8')
    A(f's_add_u32 s{sT3}, s{sT3}, s{sT4}')
    A(f's_lshl_b32 s{sT4}, s{sT5}, 13')


def ln_x():
    unpack(96, 8, 4)
    layernorm_rows(96, 72, 84)
    A(f'ds_write_b128 v16, v[84:87] offset:{L_XN}')


def wave_if(cond, val, body, other=None):
    inv = {'lt': 'ge', 'ge': 'lt', 'eq': 'lg', 'lg': 'eq'}[cond]
    sk, dn = lab('wi'), lab('wd')
    A(f's_cmp_{inv}_u32 s{sW}, {val}')
    A(f's_cbranch_scc1 {sk}')
    body()
    if other:
        A(f's_branch {dn}')
    A(f'{sk}:')
    if other:
        other()
        A(f'{dn}:')


def xid_reg():
    A(f's_getreg_b32 s{sXID}, hwreg(HW_REG_XCC_ID)')
    A(f's_not_b32 s{sT3}, s{sE}')
    A(f's_xor_b32 s{sXID}, s{sT3}, s{sXID}')
    for r in range(4):
        A(f'v_bfe_u32 v{12 + r}, s{sE}, {8 * r}, 8')


def wm_addr():
    A('v_lshrrev_b32 v32, 3, v0')
    A('v_mul_u32_u24 v32, 6144, v32')
    A('v_add_u32 v32, v32, v95')
    A('v_xor_b32 v33, 64, v32')
    A(f's_lshl_b32 s{sT0}, s{sCQ}, 2')
    A(f's_add_u32 s{sT0}, s{sT0}, s{sT5}')
    A(f's_mul_i32 s{sA0}, s{sT0}, {32 * 6144}')
    A(f's_lshl_b32 s{sT0}, s{sH}, 7')
    A(f's_add_u32 s{sA0}, s{sA0}, s{sT0}')
    A(f's_add_u32 s{sA0}, s{sA0}, 2048')
    A(f's_lshl_b32 s{sA1}, s{sT5}, 12')
    A(f's_add_u32 s{sA1}, s{sA1}, {L_WML}')


def wm_go():
    for k in range(4):
        A(f's_add_u32 s{sT0}, s{sA0}, {8 * 6144 * k}')
        A(f's_add_u32 m0, s{sA1}, {1024 * k}')
        dma(32 + (k & 1), sWM, f's{sT0}', pol=NTW)


WMAT = CFG.get('wmat', 4)


def service_issue():
    A('L_svc0:')
    A('v_lshlrev_b32 v17, 4, v0')
    if WMAT == 3:
        A(f's_lshr_b32 s{sH}, s{sSID}, 2')
        A(f's_and_b32 s{sCQ}, s{sU}, 3')
        A(f's_and_b32 s{sT5}, s{sW}, 3')
        A('v_and_b32 v95, 1, v2')
        A('v_lshlrev_b32 v95, 1, v95')
        A('v_and_b32 v19, 7, v1')
        A('v_xor_b32 v95, v95, v19')
        A('v_lshlrev_b32 v95, 4, v95')
        wm_addr()
    A('s_waitcnt lgkmcnt(0)')
    TF(3)
    A(f's_load_dword s{sE}, s[{sWS}:{sWS + 1}], {EPOCH}')
    A(f'buffer_load_dwordx4 v[8:11], v16, {srd(sX_)}, 0 offen')
    wave_if('eq', 3, lambda: A(f'buffer_load_dwordx4 v[40:43], v17, {srd(sX_)}, 0 offen'))
    if WMAT == 3:
        A('s_barrier')
        wave_if('ge', 4, wm_go)
        TF(4)
    A('s_branch L_svc')


def service_b2():
    if WMAT == 0:
        wave_if('ge', 4, lambda: (wm_go(), TF(4), A('s_waitcnt vmcnt(4)')), lambda: A('s_waitcnt vmcnt(0)'))
    elif WMAT == 3:
        wave_if('ge', 4, lambda: A('s_waitcnt vmcnt(4)'), lambda: A('s_waitcnt vmcnt(0)'))
    else:
        A('s_waitcnt vmcnt(0)')
    TF(6)
    A('v_mov_b32 v44, v16')
    A(f's_cmp_eq_u32 s{sW}, 3')
    A(f's_cselect_b32 s{sT4}, 1, 0')
    A('L_ln:')
    unpack(96, 8, 4)
    layernorm_rows(96, 72, 84)
    A(f'ds_write_b128 v44, v[84:87] offset:{L_XN}')
    for i in range(4):
        A(f'v_mov_b32 v{8 + i}, v{40 + i}')
    A('v_lshlrev_b32 v44, 4, v0')
    A(f's_sub_u32 s{sT4}, s{sT4}, 1')
    A('s_cbranch_scc0 L_ln')
    A('s_waitcnt lgkmcnt(0)')
    make_tag()
    xid_reg()
    A(f's_cmp_lt_u32 s{sW}, 4')
    A('s_cbranch_scc1 L_svc3')
    srd_tail(sWQ)
    tile_addr()
    A('v_lshlrev_b32 v30, 1, v2')
    A('v_xor_b32 v30, v30, v1')
    A('v_lshl_add_u32 v30, v30, 4, v29')
    A('v_xor_b32 v31, 128, v30')
    TF(8)
    A('s_barrier')
    TF(9)
    for i in range(8):
        A(f's_add_u32 s{sT0}, s{sT3}, {4 * 8192 * i}')
        A(f's_add_u32 m0, s{sT4}, {L_WQ + 1024 * i}')
        dma(30 + ((i >> 1) & 1), sWQ, f's{sT0}')
    A('v_xor_b32 v30, v1, v2')
    A('v_lshl_add_u32 v30, v30, 4, v29')
    for i in range(8):
        if i & 1 == 0:
            A(f'v_xor_b32 v31, {64 * (i >> 1)}, v30')
        A(f's_add_u32 s{sT0}, s{sT3}, {4 * 8192 * i}')
        A(f's_add_u32 m0, s{sT4}, {1024 * i}')
        dma(31, sWUK, f's{sT0}')
    if WMAT == 2:
        wm_go()
    TF(5)
    A('s_branch L_svc4')
    A('L_svc3:')
    for i in range(4):
        A(f'v_mov_b32 v{68 + i}, -1')
    A(f's_mul_i32 s{sT2}, s{sSID}, {CLR_L_PER}')
    A(f's_add_u32 s{sT2}, s{sT2}, {CLR_L - 3072}')
    A(f's_lshl_b32 s{sT3}, s{sSID}, 11')
    A(f's_add_u32 s{sT3}, s{sT3}, s{sX32}')
    A(f's_add_u32 s{sT3}, s{sT3}, {CTX - 1024}')
    A(f's_cmp_eq_u32 s{sW}, 3')
    A(f's_cselect_b32 s{sT3}, s{sT2}, s{sT3}')
    A(f'v_min_u32 v30, {CLR_L_PER + 3072 - 16}, v16')
    A(f'buffer_store_dwordx4 v[68:71], v30, {srd(sWS)}, s{sT3} offen sc1')

    def xid_pub():
        A(f'v_mov_b32 v66, s{sE}')
        A(f'v_mov_b32 v67, s{sXID}')
        A(f's_lshl_b32 s{sT4}, s{sSID}, 7')
        A(f's_add_u32 s{sT4}, s{sT4}, {XID}')
        exec_set(0xffff, 0)
        A(f'buffer_store_dwordx2 v[66:67], v17, {srd(sWS)}, s{sT4} offen sc1')
        exec_all()
    wave_if('eq', 1, xid_pub)
    A(f's_and_b32 s{sT2}, s{sW}, 1')
    A(f's_lshl_b32 s{sT2}, s{sT2}, 2')
    A(f's_add_u32 s{sT2}, s{sT2}, s{sCQ}')
    A(f's_lshl_b32 s{sT2}, s{sT2}, {CS - MSH}')
    A(f's_and_b32 s{sT3}, s{sH}, 15')
    A(f's_add_u32 s{sT2}, s{sT2}, s{sT3}')
    A(f's_lshl_b32 s{sT2}, s{sT2}, {MSH}')
    A(f's_add_u32 s{sT2}, s{sT2}, {MOD1 + 1024}')
    TF(8)
    A('s_barrier')
    TF(9)
    if CFG.get('hh', 1):
        A(f's_cmp_eq_u32 s{sW}, 3')
        A('s_cbranch_scc1 L_svc4')
        hint_wait(sT2, sT3)


def service_pre():
    A('L_svc:')
    for s_, o_ in ((sWUV, 32), (sWO, 40), (sOUT, 88)):
        A(f's_load_dwordx2 s[{s_}:{s_ + 1}], s[0:1], {o_}')
    srd_tail(sWUV, sWO, sOUT, sWUK, sKV)
    tile_addr()
    A(f's_mul_i32 s{sX64}, s{sXC}, {(1 << CS) - 0x10000}')
    A(f's_mul_i32 s{sX32}, s{sXC}, {(1 << CS) - 0x8000}')
    A(f's_mov_b32 s{sPE}, 0x05040100')
    A(f's_mov_b32 s{sPO}, 0x07060302')
    A('v_lshrrev_b32 v17, 2, v1')
    A('v_and_b32 v38, 3, v1')
    A('v_lshl_add_u32 v28, v2, 3, v17')
    A('v_lshlrev_b32 v36, 8, v28')
    A('v_lshl_add_u32 v36, v38, 3, v36')
    A(f'v_lshlrev_b32 v{VWOA}, 7, v28')
    A(f'v_lshl_add_u32 v{VWOA}, v38, 3, v{VWOA}')
    A('v_bfe_u32 v28, v1, 3, 1')
    A(f'v_lshl_add_u32 v{VWOA}, v28, 5, v{VWOA}')
    A('v_and_b32 v37, 1, v2')
    A(f'v_lshl_add_u32 v{VWOA}, v37, 6, v{VWOA}')
    A('v_and_b32 v19, 7, v1')
    A('v_lshlrev_b32 v95, 1, v37')
    A('v_xor_b32 v95, v95, v19')
    A('v_lshlrev_b32 v95, 4, v95')
    A('v_lshl_add_u32 v37, v37, 2, v17')
    A(f'v_xor_b32 v37, s{sW}, v37')
    A('v_lshl_add_u32 v36, v37, 5, v36')
    A(f's_lshl_b32 s{sT2}, s{sW}, 5')
    A('v_bfe_u32 v28, v0, 2, 3')
    A('v_and_b32 v21, 3, v0')
    A('v_lshrrev_b32 v22, 5, v0')
    A('v_lshl_add_u32 v22, v21, 1, v22')
    A('v_mul_u32_u24 v20, 272, v28')
    A('v_lshl_add_u32 v20, v22, 2, v20')
    A(f'v_add_u32 v20, s{sT2}, v20')
    A('v_lshlrev_b32 v24, 10, v28')
    A('v_lshl_add_u32 v24, v22, 2, v24')
    A(f's_lshl_b32 s{sT0}, s{sCQ}, 8')
    A(f's_add_u32 s{sT0}, s{sT0}, s{sT2}')
    A(f'v_add_u32 v21, s{sT0}, v24')
    A('v_mul_u32_u24 v22, 272, v19')
    A('v_lshrrev_b32 v28, 3, v1')
    A('v_lshl_add_u32 v22, v28, 6, v22')
    A('v_lshl_add_u32 v22, v2, 4, v22')
    A('v_lshlrev_b32 v17, 3, v0')
    A('v_lshlrev_b32 v23, 6, v19')
    A('v_lshl_add_u32 v23, v2, 4, v23')
    A('v_and_b32 v26, 31, v0')
    A('v_lshlrev_b32 v26, 4, v26')
    A('v_lshrrev_b32 v28, 5, v0')
    A('v_lshl_add_u32 v39, v28, 12, v26')
    A(f'v_lshl_add_u32 v26, v28, {MSH}, v26')
    A(f'v_add_u32 v27, {2 << MSH}, v26')

    if WMAT != 3:
        wm_addr()
    A(f's_lshl_b32 s{sT0}, s{sCQ}, {CS}')
    A(f's_lshr_b32 s{sT1}, s{sW}, 1')
    A(f's_lshl_b32 s{sT1}, s{sT1}, {MSH + 2}')
    A(f's_add_u32 s{sT0}, s{sT0}, s{sT1}')
    A(f's_and_b32 s{sT1}, s{sW}, 1')
    A(f's_lshl_b32 s{sT1}, s{sT1}, 9')
    A(f's_add_u32 s{sT0}, s{sT0}, s{sT1}')
    A(f's_add_u32 s{sM0}, s{sT0}, {MOD1}')
    A(f's_add_u32 s{sM1}, s{sM0}, {4 << CS}')
    A('v_lshlrev_b32 v34, 7, v2')
    A(f's_lshl_b32 s{sLOC}, s{sH}, 9')
    A(f's_add_u32 s{sLOC}, s{sLOC}, {XID}')
    A(f's_cmp_eq_u32 s{sW}, 0')
    A('s_cbranch_scc1 L_svc4')
    service_b2()
    A('L_svc4:')

    def ld1():
        A(f'buffer_load_dwordx4 v[68:71], v26, {srd(sWS)}, s{sM1} offen sc1')
        A(f'buffer_load_dwordx4 v[76:79], v27, {srd(sWS)}, s{sM1} offen sc1')
        A(f'buffer_load_dwordx4 v[64:67], v26, {srd(sWS)}, s{sM0} offen sc1')
        A(f'buffer_load_dwordx4 v[72:75], v27, {srd(sWS)}, s{sM0} offen sc1')

    A('s_waitcnt lgkmcnt(0)')
    TF(10)
    A('s_barrier')
    TS(1)
    ld1()
    A(f'buffer_load_dwordx2 v[90:91], v34, {srd(sWS)}, s{sLOC} offen sc1')
    wave_if('ge', 4, lambda: A(f's_waitcnt vmcnt({13 + 4 * (WMAT == 2)})'))
    A('s_barrier')
    A(f'ds_read_b32 v84, v21 offset:{L_XN}')
    A(f'v_add_u32 v30, {L_WQ}, v36')
    for t in range(4):
        for eh in range(2):
            A(f'ds_read_b64_tr_b16 {v2(96 + 4 * t + 2 * eh)}, v30 offset:{t * 8192 + eh * 1024}')

    A(f's_lshl_b32 s{sT2}, s{sSID}, 12')
    A(f's_lshl_b32 s{sT3}, s{sW}, 9')
    A(f's_add_u32 s{sT2}, s{sT2}, s{sT3}')
    A(f's_add_u32 s{sT2}, s{sT2}, s{sX64}')
    A(f's_add_u32 s{sT2}, s{sT2}, {Q2}')
    A(f's_mov_b32 s{sT4}, 0xff')
    A('s_waitcnt lgkmcnt(8)')
    unpack(88, 84, 1)
    poll8(ld1, 64, 12, CFG.get('sl_h', 1), first_issued=True, ntg=4, n=16)
    TS(2)
    for r in range(8):
        A(f'v_add_f32 v{64 + (r ^ 4)}, v{64 + (r ^ 4)}, v{72 + (r ^ 4)}')
    for p in (68, 69, 64, 65):
        A(f'v_permlane32_swap_b32 v{p}, v{p + 2}')
    A('v_add_f32 v68, v68, v70')
    A('v_add_f32 v69, v69, v71')
    A('v_add_f32 v64, v64, v66')
    A('v_add_f32 v65, v65, v67')
    rne2(68, 69, 68, 69)
    rne2(64, 65, 64, 65)
    A('v_add_f32 v68, 1.0, v68')
    A('v_add_f32 v69, 1.0, v69')
    rne2(68, 69, 68, 69)
    A('v_mul_f32 v68, v68, v88')
    A('v_mul_f32 v69, v69, v89')
    rne2(68, 69, 68, 69)
    A('v_add_f32 v68, v68, v64')
    A('v_add_f32 v69, v69, v65')
    A('v_cvt_pk_bf16_f32 v68, v68, v69')
    A(f'ds_write_b32 v20, v68 offset:{L_H}')
    A('s_waitcnt lgkmcnt(0)')
    A('s_barrier')
    A(f'ds_read_b128 v[64:67], v22 offset:{L_H}')
    A(f'ds_read_b128 v[68:71], v22 offset:{L_H + 128}')
    A(f'v_xor_b32 v90, s{sE}, v90')
    A(f'v_xor_b32 v91, s{sXID}, v91')
    A('v_or_b32 v90, v90, v91')
    A('v_cmp_ne_u32 vcc, 0, v90')
    A(f's_lshl_b32 s{sT0}, s{sH}, 14')
    A(f's_add_u32 s{sT0}, s{sT0}, s{sT3}')
    A(f's_add_u32 s{sT0}, s{sT0}, s{sX64}')
    A(f's_add_u32 s{sT0}, s{sT0}, {Q2}')
    A(f's_add_u32 s{sT1}, s{sT0}, 8192')
    A('s_waitcnt lgkmcnt(1)')
    A('v_mfma_f32_16x16x32_bf16 v[112:115], v[96:99], v[64:67], 0')
    A('v_mfma_f32_16x16x32_bf16 v[116:119], v[100:103], v[64:67], 0')
    A('s_waitcnt lgkmcnt(0)')
    A('v_mfma_f32_16x16x32_bf16 v[112:115], v[104:107], v[68:71], v[112:115]')
    A('v_mfma_f32_16x16x32_bf16 v[116:119], v[108:111], v[68:71], v[116:119]')
    for r in range(4):
        A(f'v_add_f32_dpp v{112 + r}, v{116 + r}, v{112 + r} row_ror:8 {DPPM}')
    for r in range(4):
        A(f'v_bfi_b32 v{112 + r}, s{sT4}, v{12 + r}, v{112 + r}')
    exec_set(0x00ff00ff, 0x00ff00ff)
    far, dn = lab('far'), lab('dn')
    A(f's_cbranch_vccnz {far}')
    A(f'buffer_store_dwordx4 v[112:115], v23, {srd(sWS)}, s{sT2} offen')
    A(f's_branch {dn}')
    A(f'{far}:')
    A(f'buffer_store_dwordx4 v[112:115], v23, {srd(sWS)}, s{sT2} offen sc1')
    A(f'{dn}:')
    exec_all()
    TS(3)

    def uk_frag():
        A('v_lshrrev_b32 v40, 2, v1')
        A('v_lshl_add_u32 v40, v40, 3, v38')
        A('v_lshlrev_b32 v40, 8, v40')
        A(f's_lshl_b32 s{sT5}, s{sW}, 13')
        A(f'v_add_u32 v40, s{sT5}, v40')
        A('v_xor_b32 v41, v1, v2')
        A(f'v_lshlrev_b32 v30, {CS}, v19')
        A('v_lshl_add_u32 v30, v2, 4, v30')
        A(f's_lshr_b32 s{sT5}, s{sH}, 4')
        A(f's_lshl_b32 s{sT5}, s{sT5}, 14')
        A(f's_lshl_b32 s{sT2}, s{sCQ}, 12')
        A(f's_add_u32 s{sT5}, s{sT5}, s{sT2}')
        A(f's_lshl_b32 s{sT2}, s{sW}, 10')
        A(f's_add_u32 s{sT5}, s{sT5}, s{sT2}')
        A(f's_and_b32 s{sT2}, s{sH}, 15')
        A(f's_lshl_b32 s{sT2}, s{sT2}, 6')
        A(f's_add_u32 s{sT5}, s{sT5}, s{sT2}')
        A(f's_add_u32 s{sT5}, s{sT5}, {QA}')
        for t in range(4):
            A(f'v_xor_b32 v42, {4 * t}, v41')
            A('v_lshl_add_u32 v42, v42, 4, v40')
            for tau in range(2):
                A(f'ds_read_b128 {v4(128 + 16 * tau + 4 * t)}, v42 offset:{1024 * tau}')

    def wm_frag():
        A('v_lshlrev_b32 v40, 4, v0')
        A(f'ds_read_b128 v[128:131], v40 offset:{L_SF}')
        A(f'ds_read_b128 v[132:135], v40 offset:{L_SF + 1024}')
        A(f's_and_b32 s{sT5}, s{sW}, 3')
        A(f's_lshl_b32 s{sT2}, s{sT5}, 5')
        A(f'v_xor_b32 v41, s{sT2}, v{VWOA}')
        A(f'v_add_u32 v41, {L_WML}, v41')
        A(f's_lshl_b32 s{sT5}, s{sT5}, 9')
        A(f's_lshl_b32 s{sT2}, s{sSID}, 12')
        A(f's_add_u32 s{sT5}, s{sT5}, s{sT2}')
        A(f's_add_u32 s{sT5}, s{sT5}, s{sX64}')
        A(f's_add_u32 s{sT5}, s{sT5}, {M2}')
    wave_if('lt', 4, uk_frag, wm_frag)

    def ld2():
        A(f'buffer_load_dwordx4 v[64:67], v39, {srd(sWS)}, s{sT0} offen sc1')
        A(f'buffer_load_dwordx4 v[68:71], v39, {srd(sWS)}, s{sT1} offen sc1')

    def sum4():
        for r in range(4):
            A(f'v_add_f32 v{64 + r}, v{64 + r}, v{68 + r}')
        A('v_permlane32_swap_b32 v64, v66')
        A('v_permlane32_swap_b32 v65, v67')
        A('v_add_f32 v64, v64, v66')
        A('v_add_f32 v65, v65, v67')
    poll8(ld2, 64, 12, 0, pre_sleep=CFG.get('sl_q2', 1), ntg=4)
    TS(4)
    sum4()
    A('v_cvt_pk_bf16_f32 v64, v64, v65')
    A(f'ds_write_b32 v20, v64 offset:{L_QL}')
    A('s_waitcnt lgkmcnt(0)')
    A('s_barrier')
    if CFG.get('flag_at', 0) == 0:
        pub_flag(4)

    def p3():
        A(f'ds_read_b128 v[64:67], v22 offset:{L_QL}')
        A(f'ds_read_b128 v[68:71], v22 offset:{L_QL + 128}')
        A('s_waitcnt lgkmcnt(0)')
        for tau in range(2):
            A(f'v_mfma_f32_16x16x32_bf16 {v4(96 + 8 * tau)}, {v4(128 + 16 * tau)}, v[64:67], 0')
            A(f'v_mfma_f32_16x16x32_bf16 {v4(100 + 8 * tau)}, {v4(132 + 16 * tau)}, v[64:67], 0')
        for tau in range(2):
            A(f'v_mfma_f32_16x16x32_bf16 {v4(96 + 8 * tau)}, {v4(136 + 16 * tau)}, v[68:71], {v4(96 + 8 * tau)}')
            A(f'v_mfma_f32_16x16x32_bf16 {v4(100 + 8 * tau)}, {v4(140 + 16 * tau)}, v[68:71], {v4(100 + 8 * tau)}')
        for tau in range(2):
            for r in range(4):
                A(f'v_add_f32_dpp v{96 + 8 * tau + r}, v{100 + 8 * tau + r}, v{96 + 8 * tau + r} row_ror:8 {DPPM}')
        for tau in range(2):
            for i in range(2):
                A(f'v_cvt_pk_bf16_f32 v{72 + 2 * tau + i}, v{96 + 8 * tau + 2 * i}, v{97 + 8 * tau + 2 * i}')
        exec_set(0x00ff00ff, 0x00ff00ff)
        A(f'buffer_store_dwordx4 v[72:75], v30, {srd(sWS)}, s{sT5} offen sc1')
        exec_all()
        if WMAT == 4:
            A('s_barrier')
        if CFG.get('flag_at', 0) == 2:
            A('s_waitcnt vmcnt(0)')
        if CFG.get('flag_at', 0) >= 1:
            pub_flag(3)

    def modl():
        for t in range(4):
            for eh in range(2):
                A(f'ds_read_b64_tr_b16 {v2(64 + 4 * t + 2 * eh)}, v41 offset:{t * 4096 + eh * 512}')
        for t in range(4):
            A(f's_waitcnt lgkmcnt({6 - 2 * t})')
            d = 96 + 4 * (t & 1)
            A(f'v_mfma_f32_16x16x32_bf16 {v4(d)}, {v4(64 + 4 * t)}, {v4(128 + 4 * (t >> 1))}, ' + ('0' if t < 2 else v4(d)))
        for r in range(4):
            A(f'v_add_f32_dpp v{96 + r}, v{100 + r}, v{96 + r} row_ror:8 {DPPM}')
        for r in range(4):
            A(f'v_bfi_b32 v{96 + r}, s{sT4}, v{12 + r}, v{96 + r}')
        exec_set(0x00ff00ff, 0x00ff00ff)
        A(f'buffer_store_dwordx4 v[96:99], v23, {srd(sWS)}, s{sT5} offen sc1')
        exec_all()
    if WMAT == 4:
        wave_if('lt', 4, p3, lambda: (A('s_barrier'), wm_go(), A(f's_mov_b32 s{sMS}, s{sT5}')))
    else:
        wave_if('lt', 4, p3, modl)
    TS(5)
    A('v_and_b32 v30, 1, v0')
    A('v_lshlrev_b32 v30, 7, v30')
    A(f's_lshl_b32 s{sT5}, s{sXC}, 11')
    A(f's_lshl_b32 s{sT2}, s{sW}, 8')
    A(f's_add_u32 s{sT5}, s{sT5}, s{sT2}')
    A(f's_add_u32 s{sT5}, s{sT5}, {XID}')
    A('v_bfe_u32 v37, v1, 2, 1')
    A('v_lshlrev_b32 v37, 12, v37')
    A('v_lshl_add_u32 v37, v38, 5, v37')
    A('v_lshl_add_u32 v37, v2, 3, v37')
    A(f's_lshl_b32 s{sCX}, s{sH}, 13')
    A(f's_lshl_b32 s{sT2}, s{sCQ}, 10')
    A(f's_add_u32 s{sCX}, s{sCX}, s{sT2}')
    A(f's_lshl_b32 s{sT2}, s{sW}, 7')
    A(f's_add_u32 s{sCX}, s{sCX}, s{sT2}')
    A(f's_add_u32 s{sCX}, s{sCX}, s{sX32}')
    A(f's_add_u32 s{sCX}, s{sCX}, {CTX}')
    A(f's_lshl_b32 s{sT0}, s{sH}, 14')
    A(f's_lshl_b32 s{sT1}, s{sCQ}, 9')
    A(f's_add_u32 s{sT0}, s{sT0}, s{sT1}')
    A(f's_add_u32 s{sT0}, s{sT0}, s{sX64}')
    A(f's_add_u32 s{sT0}, s{sT0}, {M2}')
    A(f's_add_u32 s{sT1}, s{sT0}, 8192')
    atch = CFG.get('atch', 0)
    skip = CFG.get('skip', -1)
    if skip >= 0:
        atch = 4
    npf = CFG.get('npf', 16) - atch
    R = (npf + 7) // 8
    if npf:
        per = npf * 8 // R
        assert per * R == npf * 8
        A(f's_mul_i32 s{sT2}, s{sW}, {per}')
        A(f's_lshl_b32 s{sT3}, s{sXC}, 22')
        for i in range(R):
            A(f's_add_u32 s{sA0}, s{sT2}, {(32 - atch - npf) * 64 + i * per * 8}')
            A(f'v_add_u32 v119, s{sA0}, v0')
            if skip >= 0:
                A('v_add_u32 v115, 256, v119')
                A(f'v_cmp_le_u32 vcc, {256 * skip}, v119')
                A('v_cndmask_b32 v119, v119, v115, vcc')
            A('v_lshrrev_b32 v115, 8, v119')
            A(f'v_mul_u32_u24 v115, {ROT}, v115')
            A(f'v_add_u32 v115, s{sU}, v115')
            A('v_and_b32 v115, 15, v115')
            A('v_lshlrev_b32 v115, 18, v115')
            A(f'v_lshl_add_u32 v{118 - i}, v119, 7, v115')
    def smalls():
        A(f'buffer_load_dwordx2 v[90:91], v30, {srd(sWS)}, s{sT5} offen sc1')
        A(f'buffer_load_dwordx2 v[92:93], v37, {srd(sWS)}, s{sCX} offen sc1')

    def touch(i):
        m = (1 << per) - 1
        if per < 64:
            exec_set(m & 0xffffffff, m >> 32)
        A(f'buffer_load_dword v{118 - i}, v{118 - i}, {srd(sKV)}, s{sT3} offen {PFK}')
        if per < 64:
            exec_all()
    if WMAT == 4:
        assert R == 2
        smalls()
        wave_if('lt', 4, lambda: (touch(0), A('s_barrier')),
                lambda: (A('s_waitcnt vmcnt(2)'), A('s_barrier'), A(f's_mov_b32 s{sT5}, s{sMS}'), modl(), touch(0)))
        A('s_barrier')
        wave_if('eq', 5, ld2)
        touch(1)
        A('s_barrier')
    else:
        A('s_barrier')
        wave_if('eq', 5, ld2)
        smalls()
        for i in range(R):
            touch(i)
            A('s_barrier')
    TL(1)
    A(f's_waitcnt vmcnt({R + 1})')
    A(f'v_xor_b32 v90, s{sE}, v90')
    A(f'v_xor_b32 v91, s{sXID}, v91')
    A('v_or_b32 v90, v90, v91')
    A('v_and_b32 v91, 1, v0')
    A(f's_lshl_b32 s{sT2}, s{sW}, 3')
    A(f's_add_u32 s{sT2}, s{sT2}, {L_XOK}')
    A(f'v_lshl_add_u32 v91, v91, 2, s{sT2}')
    A('ds_write_b32 v91, v90')

    def modl_fin():
        poll8(ld2, 64, 12, 2, first_issued=True, ntg=4, first_wait=None if WMAT != 4 else 1)
        sum4()
        A(f's_lshr_b32 s{sT2}, s{sSID}, 5')
        A(f's_lshl_b32 s{sT1}, s{sT2}, 13')
        A(f's_and_b32 s{sT3}, s{sSID}, 31')
        A(f's_lshl_b32 s{sT3}, s{sT3}, 5')
        A(f's_add_u32 s{sT1}, s{sT1}, s{sT3}')
        A(f's_add_u32 s{sT1}, s{sT1}, {MODL}')
        A(f's_cmp_eq_u32 s{sT2}, 2')
        A(f's_cselect_b32 s{sT2}, 1.0, 0')
        rne2(64, 65, 64, 65)
        A(f'v_add_f32 v64, s{sT2}, v64')
        A(f'v_add_f32 v65, s{sT2}, v65')
        A('v_cvt_pk_bf16_f32 v64, v64, v65')
        A(f'buffer_store_dword v64, v24, {srd(sWS)}, s{sT1} offen sc1')
    wave_if('eq', 5, modl_fin)
    TL(2)
    if CFG.get('lt', 1):
        def t_uv():
            A('v_lshrrev_b32 v114, 3, v3')
            A('v_lshlrev_b32 v114, 13, v114')
            A('v_lshl_add_u32 v114, v19, 7, v114')
            A(f's_lshl_b32 s{sT3}, s{sU}, 18')
            A(f's_lshl_b32 s{sT4}, s{sXC}, 10')
            A(f's_add_u32 s{sT3}, s{sT3}, s{sT4}')
            A(f'buffer_load_dword v114, v114, {srd(sWUV)}, s{sT3} offen')
            A('s_barrier')

        def t_o():
            A('v_lshlrev_b32 v114, 7, v3')
            A('v_and_b32 v114, 0x7fff, v114')
            A(f's_lshl_b32 s{sT3}, s{sSID}, 15')
            A('s_barrier')
            A(f'buffer_load_dword v114, v114, {srd(sWO)}, s{sT3} offen')
        if CFG.get('ot', 0):
            wave_if('lt', 4, t_uv, lambda: A('s_barrier'))
        else:
            wave_if('lt', 4, t_uv, t_o)
            A('s_barrier')
    wuv_dma(range(4), wave_s=sW, nwaves=8, vt=28)
    if CFG.get('uvb', 1):
        A('s_barrier')
    TL(3)
    A(f's_lshl_b32 s{sWB}, s{sU}, 2')
    A(f's_add_u32 s{sWB}, s{sWB}, s{sW}')
    A(f's_and_b32 s{sWB}, s{sWB}, 7')
    A('v_lshrrev_b32 v17, 3, v0')
    A('v_lshlrev_b32 v17, 10, v17')
    A('v_add_u32 v17, v17, v95')
    A('v_xor_b32 v18, 64, v17')
    A(f's_lshl_b32 s{sT1}, s{sXC}, 19')
    A(f's_lshl_b32 s{sT2}, s{sWB}, 16')
    A(f's_add_u32 s{sT1}, s{sT1}, s{sT2}')
    A(f's_lshr_b32 s{sT2}, s{sU}, 1')
    A(f's_xor_b32 s{sT2}, s{sT2}, {CFG.get("nsx", 4)}')
    A(f's_lshl_b32 s{sT2}, s{sT2}, 7')
    A(f's_add_u32 s{sT1}, s{sT1}, s{sT2}')
    A(f's_lshl_b32 s{sT2}, s{sW}, 13')
    A(f's_add_u32 s{sT2}, s{sT2}, {L_WO}')
    A(f'v_add_u32 v{VWOA}, s{sT2}, v{VWOA}')
    for i in range(8):
        dma(17 + (i & 1), sWO, f's{sT1}', lds_s=sT2)
        if i < 7:
            A(f's_add_u32 s{sT1}, s{sT1}, {8 * 1024}')
            A(f's_add_u32 s{sT2}, s{sT2}, 1024')
    TL(4)


def wuv_dma(idx, wave_s, nwaves, vt):
    per = 32 // nwaves
    A(f'v_and_b32 v{vt}, 1, v2')
    A(f'v_lshlrev_b32 v{vt}, 18, v{vt}')
    A(f'v_lshrrev_b32 v{vt + 1}, 1, v2')
    A(f'v_lshl_add_u32 v{vt}, v{vt + 1}, 17, v{vt}')
    A(f'v_lshlrev_b32 v{vt + 1}, 1, v2')
    A(f'v_xor_b32 v{vt + 1}, v{vt + 1}, v1')
    A(f'v_lshl_add_u32 v{vt}, v{vt + 1}, 4, v{vt}')
    A(f'v_xor_b32 v{vt + 1}, 128, v{vt}')
    A(f's_lshl_b32 s{sT1}, s{sCQ}, 20')
    A(f's_mul_i32 s{sT2}, s{wave_s}, {per // 2 * 8192}')
    A(f's_add_u32 s{sT1}, s{sT1}, s{sT2}')
    A(f's_lshl_b32 s{sT2}, s{sH}, 8')
    A(f's_add_u32 s{sT1}, s{sT1}, s{sT2}')
    A(f's_mul_i32 s{sT2}, s{wave_s}, {per * 1024}')
    assert L_WUV == 0
    for i in idx:
        A(f's_add_u32 s{sT3}, s{sT1}, {((i & 1) * 64 + (i >> 1)) * 8192}')
        A(f's_add_u32 s{sT4}, s{sT2}, {i * 1024}')
        dma(vt + ((i >> 1) & 1), sWUV, f's{sT3}', lds_s=sT4)


def t1():
    _late[0] = 0
    A('v_and_b32 v38, 3, v1')
    A('v_lshlrev_b32 v32, 10, v2')
    A('v_lshl_add_u32 v32, v1, 4, v32')
    A(f's_lshl_b32 s{sT0}, s{sSID}, 15')
    A(f's_lshl_b32 s{sT1}, s{sW}, 12')
    A(f's_add_u32 s{sT0}, s{sT0}, s{sT1}')
    A(f's_add_u32 s{sT0}, s{sT0}, {OP}')
    A(f's_lshl_b32 s{sT2}, s{sW}, 8')
    A(f's_add_u32 s{sT2}, s{sT2}, {L_WT}')
    A('v_and_b32 v33, 1, v1')
    A('v_lshlrev_b32 v33, 5, v33')
    A('v_lshl_add_u32 v33, v2, 3, v33')
    A(f'v_add_u32 v33, s{sT2}, v33')
    A('v_lshlrev_b32 v44, 5, v2')
    A('v_lshl_add_u32 v44, v1, 1, v44')
    A(f'v_add_u32 v44, s{sT2}, v44')
    A(f's_mul_i32 s{sT2}, s{sW}, 272')
    A(f's_add_u32 s{sT2}, s{sT2}, {L_CC}')
    A('v_lshlrev_b32 v34, 4, v1')
    A(f'v_add_u32 v34, s{sT2}, v34')
    A('v_mul_u32_u24 v35, 272, v19')
    A('v_lshl_add_u32 v35, v2, 4, v35')
    A(f'v_add_u32 v35, {L_CC}, v35')
    A('v_lshlrev_b32 v49, 3, v38')
    A(f'v_lshrrev_b32 v49, v49, s{sE}')
    for k in range(4):
        A(f'v_bfe_u32 v{8 + k}, v49, {2 * k}, 1')
        A(f'v_bfe_u32 v48, v49, {2 * k + 1}, 1')
        A(f'v_lshl_or_b32 v{8 + k}, v48, 16, v{8 + k}')
    if CFG.get('stl', 0):
        A('v_lshlrev_b32 v39, 5, v1')
        A(f's_lshl_b32 s{sT2}, s{sXC}, 12')
        A(f's_lshl_b32 s{sT3}, s{sW}, 9')
        A(f's_add_u32 s{sT2}, s{sT2}, s{sT3}')
        A(f's_and_b32 s{sT3}, s{sH}, 3')
        A(f's_lshl_b32 s{sT3}, s{sT3}, 3')
        A(f's_add_u32 s{sT2}, s{sT2}, s{sT3}')
        A(f's_add_u32 s{sT2}, s{sT2}, {STATS}')
    else:
        A('v_lshlrev_b32 v39, 8, v1')
        A(f's_lshl_b32 s{sT2}, s{sW}, 12')
        A(f's_lshl_b32 s{sT3}, s{sH}, 3')
        A(f's_add_u32 s{sT2}, s{sT2}, s{sT3}')
        A(f's_add_u32 s{sT2}, s{sT2}, {STATS}')
    t2_setup()
    A('v_lshlrev_b32 v91, 2, v1')
    A(f'v_add_u32 v91, {L_XOK}, v91')
    A('s_waitcnt vmcnt(8) lgkmcnt(0)')
    A('s_barrier')
    A('ds_read_b32 v90, v91')
    for t in range(4):
        for eh in range(2):
            A(f'ds_read_b64_tr_b16 {v2(112 + 4 * t + 2 * eh)}, v36 offset:{L_WUV + t * 8192 + eh * 1024}')
    A('s_waitcnt lgkmcnt(8)')
    A('v_cmp_ne_u32 vcc, 0, v90')
    A(f's_or_b32 s{sLOC}, vcc_lo, vcc_hi')
    if CFG.get('st1', 1):
        A(f's_waitcnt vmcnt({CFG.get("st1w", 4)})')
        A(f'buffer_load_dwordx2 v[40:41], v39, {srd(sWS)}, s{sT2} offen sc1')
    A('s_waitcnt vmcnt(0)')
    for nt in range(4):
        A(f'v_xor_b32 v47, {nt * 32}, v{VWOA}')
        for t in range(2):
            for eh in range(2):
                A(f'ds_read_b64_tr_b16 {v2(VWO + 16 * t + 4 * nt + 2 * eh)}, v47 offset:{t * 4096 + eh * 512}')
    TS(6)
    lst = lambda: A(f'buffer_load_dwordx2 v[40:41], v39, {srd(sWS)}, s{sT2} offen sc1')

    def ldd():
        for e in range(4):
            A(f'buffer_load_dwordx4 {v4(64 + 4 * e)}, v32, {srd(sWS)}, s{sT0} offen offset:{256 * e} sc1')
    if CFG.get('db', -1) >= 0:
        A('v_lshlrev_b32 v41, 2, v1')
        A(f's_lshl_b32 s{sT3}, s{sXC}, 10')
        A(f's_lshl_b32 s{sT4}, s{sW}, 7')
        A(f's_add_u32 s{sT3}, s{sT3}, s{sT4}')
        A(f's_add_u32 s{sT3}, s{sT3}, {DBR}')
        poll(lambda: A(f'buffer_load_dword v40, v41, {srd(sWS)}, s{sT3} offen sc1'), None, 47, sleep=CFG.get('sl_st', 1),
             check=lambda: A(f'v_cmp_ne_u32 vcc, s{sE}, v40'))
        TS(7)
        if CFG.get('sl_op', 0):
            A(f's_sleep {CFG["sl_op"]}')
        lst()
        ldd()
        A('s_waitcnt vmcnt(4)')
        A('v_max_u32 v47, v40, v41')
        A('v_cmp_eq_u32 vcc, -1, v47')
        okst = lab('okst')
        A(f's_cbranch_vccz {okst}')
        poll(lst, [40, 41], 47, sleep=0)
        A(f'{okst}:')
    else:
        got = lab('gotst')
        if CFG.get('st1', 1):
            A('v_max_u32 v47, v40, v41')
            A('v_cmp_eq_u32 vcc, -1, v47')
            A(f's_cbranch_vccz {got}')
            A('v_cmp_ne_u32 vcc, -1, v47')
            full = lab('full')
            A(f's_cbranch_vccnz {full}')
        if CFG.get('st_stage', 1):
            A(f'v_mov_b32 v41, s{sU}')
            A(f'v_lshlrev_b32 v41, {5 if CFG.get("stl", 0) else 8}, v41')
            poll(lambda: A(f'buffer_load_dword v40, v41, {srd(sWS)}, s{sT2} offen sc1'), [40], 47, sleep=CFG.get('sl_st0', 4))
        if CFG.get('st_stage', 1):
            A('v_mov_b32 v40, -1')
        if CFG.get('st1', 1):
            A(f'{full}:')
        if CFG.get('mpoll', 1):
            top, done = lab('poll'), lab('pdone')
            A(f's_mov_b32 s{sCNT}, {CFG["poll_max"]}')
            A(f'{top}:')
            A('v_max_u32 v47, v40, v41')
            A('v_cmp_eq_u32 vcc, -1, v47')
            A(f's_cbranch_vccz {done}')
            A('s_mov_b64 exec, vcc')
            lst()
            exec_all()
            A('s_waitcnt vmcnt(0)')
            A(f's_sub_u32 s{sCNT}, s{sCNT}, 1')
            A(f's_cbranch_scc0 {top}')
            A(f'{done}:')
        else:
            poll(lst, [40, 41], 47, sleep=CFG.get('sl_st', 1))
        A(f'{got}:')
        TS(7)
        ldd()
    A('v_mov_b32 v42, v40')
    row_reduce('v_max_f32', [42])
    A('v_sub_f32 v40, v40, v42')
    A('v_exp_f32 v40, v40')
    A('v_mul_f32 v41, v41, v40')
    row_reduce('v_add_f32', [41])
    A('v_rcp_f32 v41, v41')
    A('v_and_b32 v47, 1, v2')
    A('v_cmp_eq_u32 vcc, 1, v47')
    A('v_mul_f32 v40, v40, v41')
    A('v_cvt_pk_bf16_f32 v42, v40, v40')
    A('v_and_b32 v43, 0xffff0000, v42')
    A('v_sub_f32 v40, v40, v43')
    A('v_cvt_pk_bf16_f32 v43, v40, v40')
    A('v_cndmask_b32 v42, v42, v43, vcc')
    A('ds_write_b16 v44, v42')
    A('s_waitcnt lgkmcnt(0)')
    A('ds_read_b64 v[52:53], v33')
    top, done = lab('poll'), lab('pdone')
    A(f's_mov_b32 s{sCNT}, {CFG["poll_max"]}')
    A(f'{top}:')
    A('s_waitcnt vmcnt(0)')
    for i in range(16):
        A(f'v_xor_b32 v{80 + i}, v{64 + i}, v{8 + (i & 3)}')
    A('v_or3_b32 v47, v80, v81, v82')
    A('v_or3_b32 v48, v83, v84, v85')
    A('v_or3_b32 v47, v47, v86, v87')
    A('v_or3_b32 v48, v48, v88, v89')
    A('v_or3_b32 v47, v47, v90, v91')
    A('v_or3_b32 v48, v48, v92, v93')
    A('v_or3_b32 v47, v47, v94, v95')
    A('v_or_b32 v47, v47, v48')
    A('v_and_b32 v47, 0x00010001, v47')
    A('v_cmp_ne_u32 vcc, 0, v47')
    A(f's_cbranch_vccz {done}')
    ldd()
    A(f's_sub_u32 s{sCNT}, s{sCNT}, 1')
    A(f's_cbranch_scc0 {top}')
    A('s_waitcnt vmcnt(0)')
    A(f'{done}:')
    TS(8)
    for z in range(8):
        for i in range(2):
            sel = sPO if z & 1 else sPE
            A(f'v_perm_b32 v{64 + 2 * z + i}, v{80 + 8 * i + 4 + (z >> 1)}, v{80 + 8 * i + (z >> 1)}, s{sel}')
        if z & 1:
            for i in range(2):
                A(f'v_or_b32 v{64 + 2 * z + i}, 0x00010001, v{64 + 2 * z + i}')
        if z == 1:
            A('s_waitcnt lgkmcnt(0)')
        if z >= 1:
            A(f'v_mfma_f32_16x16x16_bf16 {v4(128 + 4 * (z - 1))}, v[52:53], {v2(64 + 2 * (z - 1))}, 0')
    A(f'v_mfma_f32_16x16x16_bf16 {v4(128 + 28)}, v[52:53], {v2(64 + 14)}, 0')
    for z in range(8):
        A(f'v_add_f32 v{128 + 4 * z}, v{128 + 4 * z}, v{129 + 4 * z}')
    for i in range(4):
        A(f'v_cvt_pk_bf16_f32 v{80 + i}, v{128 + 8 * i}, v{132 + 8 * i}')
    exec_set(0xffff, 0)
    A('ds_write_b128 v34, v[80:83]')
    exec_all()
    A('s_waitcnt lgkmcnt(0)')
    A('s_barrier')
    for t in range(4):
        A(f'ds_read_b128 {v4(64 + 4 * t)}, v35 offset:{64 * t}')
    for t in range(4):
        A(f's_waitcnt lgkmcnt({3 - t})')
        c = '0' if t == 0 else 'v[84:87]'
        A(f'v_mfma_f32_16x16x32_bf16 v[84:87], {v4(112 + 4 * t)}, {v4(64 + 4 * t)}, {c}')
    A('v_cvt_pk_bf16_f32 v88, v84, v85')
    A('v_cvt_pk_bf16_f32 v89, v86, v87')
    exec_set(0x00ff00ff, 0x00ff00ff)
    far, dn = lab('far'), lab('dn')
    A(f's_cmp_lg_u32 s{sLOC}, 0')
    A(f's_cbranch_scc1 {far}')
    A(f'buffer_store_dwordx2 v[88:89], v37, {srd(sWS)}, s{sCX} offen')
    A(f's_branch {dn}')
    A(f'{far}:')
    A(f'buffer_store_dwordx2 v[88:89], v37, {srd(sWS)}, s{sCX} offen sc1')
    A(f'{dn}:')
    exec_all()
    TS(9)


def x1_from(o, x, ga, n, t):
    for i in range(0, n, 2):
        rne2(o + i, o + i + 1, o + i, o + i + 1)
    for i in range(n):
        A(f'v_mul_f32 v{o + i}, v{o + i}, v{ga + i}')
    for i in range(0, n, 2):
        rne2(o + i, o + i + 1, o + i, o + i + 1)
    for i in range(n):
        A(f'v_add_f32 v{o + i}, v{o + i}, v{x + i}')
    for i in range(0, n, 2):
        rne2(o + i, o + i + 1, o + i, o + i + 1)


def sum4_packed(dst, src, nd, t):
    n = 2 * nd
    unpack(dst, src, nd)
    unpack(t, src + nd, nd)
    for i in range(n):
        A(f'v_add_f32 v{dst + i}, v{dst + i}, v{t + i}')
    unpack(t, src + 2 * nd, nd)
    unpack(t + n, src + 3 * nd, nd)
    for i in range(n):
        A(f'v_add_f32 v{t + i}, v{t + i}, v{t + n + i}')
    for i in range(n):
        A(f'v_add_f32 v{dst + i}, v{dst + i}, v{t + i}')


def t2_setup():
    A('v_lshrrev_b32 v56, 2, v1')
    A('v_lshlrev_b32 v57, 6, v56')
    A('v_lshlrev_b32 v56, 10, v56')
    A('v_lshl_add_u32 v56, v38, 5, v56')
    A('v_lshrrev_b32 v58, 1, v2')
    A('v_lshl_add_u32 v56, v58, 7, v56')
    A('v_and_b32 v58, 1, v2')
    A('v_lshl_add_u32 v56, v58, 4, v56')
    A(f's_and_b32 s{sT5}, s{sU}, 1')
    A(f's_lshl_b32 s{sA0}, s{sXC}, 15')
    A(f's_lshr_b32 s{sT4}, s{sWB}, 1')
    A(f's_lshl_b32 s{sT4}, s{sT4}, 13')
    A(f's_add_u32 s{sA0}, s{sA0}, s{sT4}')
    A(f's_lshl_b32 s{sT4}, s{sT5}, 12')
    A(f's_add_u32 s{sA0}, s{sA0}, s{sT4}')
    A(f's_and_b32 s{sT4}, s{sWB}, 1')
    A(f's_lshl_b32 s{sT4}, s{sT4}, 9')
    A(f's_add_u32 s{sA0}, s{sA0}, s{sT4}')
    A(f's_add_u32 s{sA0}, s{sA0}, s{sX32}')
    A(f's_add_u32 s{sA0}, s{sA0}, {CTX}')
    A('v_mul_u32_u24 v58, 272, v38')
    A('v_add_u32 v57, v57, v58')
    A('v_lshl_add_u32 v57, v2, 4, v57')
    A(f's_mul_i32 s{sT4}, s{sW}, 1088')
    A(f's_add_u32 s{sT4}, s{sT4}, {L_RED3}')
    A(f'v_add_u32 v57, s{sT4}, v57')
    A('v_lshlrev_b32 v58, 3, v3')
    A('v_lshrrev_b32 v59, 5, v3')
    A('v_lshl_add_u32 v58, v59, 4, v58')
    A(f'v_add_u32 v58, {L_RED3}, v58')
    A('v_lshrrev_b32 v59, 5, v3')
    A('v_lshlrev_b32 v59, 13, v59')
    A('v_and_b32 v60, 31, v3')
    A('v_lshl_add_u32 v59, v60, 2, v59')
    A(f's_lshl_b32 s{sA1}, s{sT5}, 15')
    A(f's_lshl_b32 s{sT4}, s{sXC}, 10')
    A(f's_add_u32 s{sA1}, s{sA1}, s{sT4}')
    A(f's_lshr_b32 s{sT4}, s{sU}, 1')
    A(f's_xor_b32 s{sT4}, s{sT4}, {CFG.get("nsx", 4)}')
    A(f's_lshl_b32 s{sT4}, s{sT4}, 7')
    A(f's_add_u32 s{sA1}, s{sA1}, s{sT4}')
    A(f's_add_u32 s{sA1}, s{sA1}, {OPART}')


def t2_final():
    def ld():
        for t in range(2):
            A(f'buffer_load_dwordx4 {v4(64 + 4 * t)}, v56, {srd(sWS)}, s{sA0} offen offset:{256 * t} sc1')
    if CFG.get('h3', 2) == 0:
        hint_pub(F3, 7, 108, sT0)
    poll(ld, range(64, 72, 2), 47, sleep=0, pre_sleep=CFG.get('sl_ctx', 1))
    if CFG.get('h3', 2) == 1:
        hint_pub(F3, 7, 108, sT0)
    if CFG.get('ts2', 0):
        TS(1)
    for t in range(2):
        for nt in range(4):
            c = '0' if t == 0 else v4(80 + 4 * nt)
            A(f'v_mfma_f32_16x16x32_bf16 {v4(80 + 4 * nt)}, {v4(VWO + 16 * t + 4 * nt)}, {v4(64 + 4 * t)}, {c}')
    for k in range(2):
        for r in range(4):
            A(f'v_add_f32_dpp v{96 + 4 * k + r}, v{80 + 4 * k + r}, v{80 + 4 * k + r} row_ror:8 row_mask:0xf bank_mask:0x3')
    for k in range(2):
        for r in range(4):
            A(f'v_add_f32_dpp v{96 + 4 * k + r}, v{88 + 4 * k + r}, v{88 + 4 * k + r} row_ror:8 row_mask:0xf bank_mask:0xc')
    for r in range(4):
        A(f'v_add_f32_dpp v{104 + r}, v{96 + r}, v{96 + r} row_shl:4 row_mask:0xf bank_mask:0x5')
    for r in range(4):
        A(f'v_add_f32_dpp v{104 + r}, v{100 + r}, v{100 + r} row_shr:4 row_mask:0xf bank_mask:0xa')
    A('ds_write_b128 v57, v[104:107]')
    A('s_waitcnt lgkmcnt(0)')
    A('s_barrier')
    if CFG.get('h3', 2) == 2:
        hint_pub(F3, 7, 108, sT0)
    A(f's_cmp_ge_u32 s{sW}, 3')
    A('s_cbranch_scc1 L_fin')
    A(f's_cmp_eq_u32 s{sW}, 2')
    A('s_cbranch_scc1 L_final')
    for p in range(8):
        A(f'ds_read_b64 {v2(64 + 2 * p)}, v58 offset:{1088 * p}')
    A('s_waitcnt lgkmcnt(0)')
    tree_add(64, 16, 2)
    A('v_cvt_pk_bf16_f32 v64, v64, v65')
    A(f'buffer_store_dword v64, v59, {srd(sWS)}, s{sA1} offen sc1')
    TS(10)
    A('s_cmp_lg_u32 s2, 0')
    A('s_cbranch_scc1 L_fin')
    A(f'v_mov_b32 v40, s{sE}')
    A('v_mov_b32 v39, 0')
    exec_set(1, 0)
    A(f'buffer_store_dword v40, v39, {srd(sWS)}, 0 offen offset:{EPOCH} sc1')
    exec_all()
    A('s_branch L_fin')
    A('L_final:')
    A(f's_lshr_b32 s{sT4}, s{sSID}, 2')
    A(f's_and_b32 s{sT5}, s{sSID}, 3')
    A('v_bfe_u32 v32, v0, 2, 1')
    A('v_and_b32 v33, 3, v0')
    A('v_lshlrev_b32 v34, 10, v32')
    A('v_lshl_add_u32 v34, v33, 3, v34')
    A(f's_lshl_b32 s{sT0}, s{sT5}, 11')
    A(f's_lshl_b32 s{sT1}, s{sT4}, 5')
    A(f's_add_u32 s{sT0}, s{sT0}, s{sT1}')
    A(f'buffer_load_dwordx2 v[40:41], v34, {srd(sX_)}, s{sT0} offen')
    A(f's_add_u32 s{sT1}, s{sT0}, {MODL}')
    A(f's_add_u32 s{sT2}, s{sT1}, {3 * 8192}')

    def ldm():
        A(f'buffer_load_dwordx2 v[42:43], v34, {srd(sWS)}, s{sT1} offen sc1')
        A(f'buffer_load_dwordx2 v[44:45], v34, {srd(sWS)}, s{sT2} offen sc1')
    poll(ldm, range(42, 46), 47)
    unpack(48, 40, 2)
    unpack(52, 42, 2)
    unpack(56, 44, 2)
    A('v_lshlrev_b32 v35, 13, v32')
    A('v_lshl_add_u32 v35, v33, 3, v35')
    A(f's_lshl_b32 s{sT1}, s{sT5}, 14')
    A(f's_lshl_b32 s{sT2}, s{sT4}, 5')
    A(f's_add_u32 s{sT1}, s{sT1}, s{sT2}')
    A(f's_add_u32 s{sT1}, s{sT1}, {OPART}')
    A(f's_add_u32 s{sT2}, s{sT1}, 4096')

    def ldo():
        for k in range(8):
            A(f'buffer_load_dwordx2 {v2(128 + 2 * k)}, v35, {srd(sWS)}, s{sT1 + (k >> 2)} offen offset:{1024 * (k & 3)} sc1')
    A(f's_min_u32 s{sT3}, s{sU}, 13')
    A(f's_lshl_b32 s{sA0}, s{sXC}, 4')
    A(f's_add_u32 s{sT3}, s{sT3}, s{sA0}')
    A(f's_lshl_b32 s{sT3}, s{sT3}, 7')
    A(f's_add_u32 s{sT3}, s{sT3}, {F4 + 64}')
    hint_wait(sT3, sA0)
    poll(ldo, range(128, 144), 47, sleep=1)
    unpack(144, 128, 16)
    tree_add(144, 32, 4)
    for i in range(4):
        A(f'v_mov_b32 v{72 + i}, v{144 + i}')
    x1_from(72, 48, 52, 4, 76)
    A('v_lshlrev_b32 v35, 4, v0')
    A(f's_mul_i32 s{sT1}, s{sSID}, 7168')
    A(f's_add_u32 s{sT1}, s{sT1}, {YP}')
    A(f's_add_u32 s{sT2}, s{sT1}, 4096')

    def ldy():
        for i in range(7):
            s, o = (sT1, 1024 * i) if i < 4 else (sT2, 1024 * (i - 4))
            A(f'buffer_load_dwordx4 {v4(96 + 4 * i)}, v35, {srd(sWS)}, s{s} offen offset:{o} sc1')
    for r in range(4):
        A(f'v_bfe_u32 v{40 + r}, s{sE}, {8 * r}, 8')

    def chk():
        for i in range(28):
            A(f'v_xor_b32 v{96 + i}, v{96 + i}, v{40 + (i & 3)}')
        A('v_or3_b32 v47, v96, v97, v98')
        A('v_or3_b32 v46, v99, v100, v101')
        for i in range(102, 122, 4):
            A(f'v_or3_b32 v47, v47, v{i}, v{i + 1}')
            A(f'v_or3_b32 v46, v46, v{i + 2}, v{i + 3}')
        A('v_or3_b32 v47, v47, v122, v123')
        A('v_or_b32 v47, v47, v46')
        A('v_and_b32 v47, 0xff, v47')
        A('v_cmp_ne_u32 vcc, 0, v47')
    if CFG.get('h4', 2) >= 0:
        A(f's_min_u32 s{sT3}, s{sU}, 13')
        A(f's_lshl_b32 s{sT4}, s{sXC}, 4')
        A(f's_add_u32 s{sT3}, s{sT3}, s{sT4}')
        A(f's_lshl_b32 s{sT3}, s{sT3}, 7')
        A(f's_add_u32 s{sT3}, s{sT3}, {F4}')
        hint_wait(sT3, sT4)
    poll(ldy, None, 47, sleep=CFG.get('sl_y', 0), pre_sleep=CFG.get('sl_y0', 0), check=chk)
    for r in range(4):
        A(f'v_add_f32 v{96 + r}, v{96 + r}, v{100 + r}')
        A(f'v_add_f32 v{104 + r}, v{104 + r}, v{108 + r}')
        A(f'v_add_f32 v{112 + r}, v{112 + r}, v{116 + r}')
    for r in range(4):
        A(f'v_add_f32 v{96 + r}, v{96 + r}, v{104 + r}')
        A(f'v_add_f32 v{112 + r}, v{112 + r}, v{120 + r}')
    for r in range(4):
        A(f'v_add_f32 v{96 + r}, v{96 + r}, v{112 + r}')
    for r in range(4):
        A(f'v_add_f32_dpp v{96 + r}, v{96 + r}, v{96 + r} row_ror:8 {DPPM}')
    for sw in ('v_permlane16_swap_b32', 'v_permlane32_swap_b32'):
        for r in range(4):
            A(f'v_mov_b32 v{100 + r}, v{96 + r}')
        for r in range(4):
            A(f'{sw} v{100 + r}, v{96 + r}')
        for r in range(4):
            A(f'v_add_f32 v{96 + r}, v{96 + r}, v{100 + r}')
    rne2(96, 97, 96, 97)
    rne2(98, 99, 98, 99)
    for r in range(4):
        A(f'v_mul_f32 v{96 + r}, v{96 + r}, v{56 + r}')
    rne2(96, 97, 96, 97)
    rne2(98, 99, 98, 99)
    for r in range(4):
        A(f'v_add_f32 v{96 + r}, v{96 + r}, v{72 + r}')
    if 'x_add' in CFG:
        import struct
        for r in range(4):
            A(f'v_add_f32 v{96 + r}, {struct.unpack("<I", struct.pack("<f", CFG["x_add"] / 100.0))[0]:#x}, v{96 + r}')
    if 'x_one' in CFG:
        import struct
        A(f's_cmp_eq_u32 s2, 5')
        A(f's_cselect_b32 s{sT1}, {struct.unpack("<I", struct.pack("<f", CFG["x_one"] / 100.0))[0]:#x}, 0')
        A(f'v_add_f32 v96, s{sT1}, v96')
    A('v_cvt_pk_bf16_f32 v100, v96, v97')
    A('v_cvt_pk_bf16_f32 v101, v98, v99')
    exec_set(0xff, 0)
    A(f'buffer_store_dwordx2 v[100:101], v34, {srd(sOUT)}, s{sT0} offen')
    exec_all()
    TS(10)
    A('s_branch L_fin')


VQ = 64
VK = (128, 192)
VS = (8, 12)
VS2 = 56
VKA = 96
VSO, VXP, VXW, VXR = 16, 20, 112, 113
VM, VL, VPS, VPW, VMXW, VMXR = 24, 25, 26, 27, 28, 29
VO = 64
VV = (128, 160, 192, 224)
VP = (8, 16)
VDM = 48
VVA = 24
VPR = 40
VTG = 4
LOG2E = 0x3fb8aa3b
THR = 0x42800000
SIG = [0, 2, 3, 1]


SLOT = [0, 2, 1, 3, 0, 2, 1, 3]


sPASS = sLNK
VMA = 26


def fsw(key):
    return ((key & 3) << 2) | SIG[(key >> 2) & 3]


class VM_:
    def __init__(self):
        self.ops = []

    def add(self, tag):
        self.ops.append(tag)

    def after(self, tag):
        idx = max(i for i, t in enumerate(self.ops) if t == tag)
        return len(self.ops) - 1 - idx


def kv_instr(T, k, vm, set_m0=True):
    slot = SLOT[T] * 32768
    half, i = k >> 2, k & 3
    out = []
    if set_m0:
        out.append(f's_add_u32 m0, s{sT5}, {slot + half * 4096}')
    o = f' offset:{i * 1024}' if i else ''
    out.append(f'buffer_load_dwordx4 v{VDM + k}, {srd(sKV)}, s{sTB + T} offen{o} {NT} lds')
    vm.add(('kv', T))
    return out


def kv_dma(T, half, vm):
    for i in range(4):
        for l in kv_instr(T, 4 * half + i, vm, set_m0=(i == 0)):
            A(l)


def v_read_list(T, vset):
    slot = SLOT[T]
    base = VVA + (8 if slot >= 2 else 0)
    out = []
    for ks in range(2):
        for ct in range(4):
            for eh in range(2):
                off = (slot & 1) * 32768 + ks * 16384
                out.append(f'ds_read_b64_tr_b16 {v2(VV[vset] + 8 * ct + 4 * ks + 2 * eh)}, v{base + 2 * ct + eh} offset:{off}')
    return out


def k_read_list(T, kset):
    slot = SLOT[T]
    base = VKA + (8 if slot >= 2 else 0)
    return [f'ds_read_b128 {v4(VK[kset] + 4 * i)}, v{base + 4 * (i >> 3) + (i & 3)} offset:{(slot & 1) * 32768 + ((i >> 2) & 1) * 256}'
            for i in range(16)]


def emit(lst):
    for l in lst:
        emit(l) if isinstance(l, list) else A(l)


def interleave(main, fill, start=0):
    n = len(main) - start
    done = 0
    for i, m_ in enumerate(main):
        A(m_)
        if i >= start:
            upto = (len(fill) * (i - start + 1) + n - 1) // n
            while done < upto:
                f = fill[done]
                emit(f) if isinstance(f, list) else A(f)
                done += 1


def call(target):
    here = lab('pc')
    A(f's_getpc_b64 s[{sTGT}:{sTGT + 1}]')
    A(f'{here}:')
    A(f's_add_u32 s{sTGT}, s{sTGT}, {target}-{here}')
    A(f's_addc_u32 s{sTGT + 1}, s{sTGT + 1}, 0')
    A(f's_swappc_b64 s[{sLNK}:{sLNK + 1}], s[{sTGT}:{sTGT + 1}]')


PVM = VM_()
W2OPS = []


def att_front():
    A(f's_and_b32 s{sCQ}, s{sU}, 3')
    A(f's_lshl_b32 s{sT0}, s{sCQ}, 8')
    A('v_lshrrev_b32 v5, 2, v0')
    A('v_mul_u32_u24 v5, 6144, v5')
    A('v_and_b32 v18, 3, v0')
    A('v_lshrrev_b32 v17, 5, v0')
    A('v_lshlrev_b32 v17, 1, v17')
    A('v_xor_b32 v18, v18, v17')
    A('v_lshl_add_u32 v5, v18, 4, v5')
    A(f's_lshr_b32 s{sT2}, s{sSID}, 2')
    A(f's_lshl_b32 s{sT2}, s{sT2}, 6')
    A(f's_mul_i32 s{sT1}, s{sCQ}, {128 * 6144}')
    A(f's_add_u32 s{sT1}, s{sT1}, s{sT2}')
    A(f's_mov_b32 m0, {L_WM1}')
    for i in range(4):
        A(f'v_mov_b32 v{20 + i}, -1')
    A(f's_lshl_b32 s{sT4}, s{sXC}, {CS}')
    A(f's_lshl_b32 s{sT3}, s{sU}, 11')
    A(f's_add_u32 s{sT4}, s{sT4}, s{sT3}')
    A(f's_add_u32 s{sMS}, s{sT4}, s{sT3}')
    A(f's_add_u32 s{sMS}, s{sMS}, {MOD1}')
    A(f's_add_u32 s{sT3}, s{sT4}, {QA}')
    n3 = CLR_E_PER // 16
    A(f's_mul_i32 s{sT4}, s{sSID}, {CLR_E_PER}')
    A(f's_add_u32 s{sT4}, s{sT4}, {CLR_E}')
    A(f'v_add_u32 v17, s{sT4}, v16')
    A(f's_add_u32 s{sT4}, s{sMS}, {1024 - 16 * n3}')
    A(f'v_min_u32 v18, {n3 + 7}, v0')
    A(f'v_lshl_add_u32 v18, v18, 4, s{sT4}')
    A(f'v_cmp_lt_u32 vcc, {n3 - 1}, v0')
    A('v_cndmask_b32 v17, v17, v18, vcc')
    A('s_waitcnt lgkmcnt(0)')
    TF(3)
    A(f's_load_dword s{sE}, s[{sWS}:{sWS + 1}], {EPOCH}')
    A(f'buffer_load_dwordx4 v[40:43], v4, {srd(sC)}, s{sT0} offen')
    A(f'buffer_load_dwordx4 v[44:47], v4, {srd(sC)}, s{sT0} offen offset:128')
    for i in range(8):
        dma(5, sWM, f's{sT1}')
        if i < 7:
            A(f's_add_u32 s{sT1}, s{sT1}, {16 * 6144}')
            A(f's_add_u32 m0, m0, 1024')
    if not CFG.get('x_noclr', 0) & 1:
        A(f'buffer_store_dwordx4 v[20:23], v16, {srd(sWS)}, s{sT3} offen sc1')
        A(f'buffer_store_dwordx4 v[20:23], v16, {srd(sWS)}, s{sT3} offen offset:1024 sc1')
        A(f'buffer_store_dwordx4 v[20:23], v17, {srd(sWS)}, 0 offen sc1')
    if CFG.get('modpre', 0):
        A(f'buffer_store_dwordx4 v[20:23], v16, {srd(sWS)}, s{sMS} offen sc1')
    if WMAT == 3:
        A('s_barrier')
    TF(4)
    A('s_branch L_p1')


def att_p1():
    A('L_p1:')
    ns = 3 + CFG.get('modpre', 0) - 3 * (CFG.get('x_noclr', 0) & 1)
    A('v_lshrrev_b32 v48, 2, v1')
    A('v_lshl_add_u32 v48, v2, 3, v48')
    A('v_lshlrev_b32 v48, 6, v48')
    A('v_and_b32 v50, 3, v1')
    A('v_lshl_add_u32 v48, v50, 3, v48')
    A('v_and_b32 v50, 1, v2')
    A('v_lshl_add_u32 v48, v50, 5, v48')
    A(f'v_add_u32 v48, {L_WM1}, v48')
    A('v_xor_b32 v49, 32, v48')
    A('v_lshlrev_b32 v50, 6, v1')
    A('v_lshl_add_u32 v50, v2, 4, v50')
    A(f's_waitcnt vmcnt({8 + ns})')
    TF(6)
    silu_frag(40, 52, 8)
    A('s_waitcnt lgkmcnt(0)')
    A(f'ds_write_b128 v16, v[52:55] offset:{L_SF}')
    A(f'ds_write_b128 v16, v[56:59] offset:{L_SF + 1024}')
    make_tag()
    xid_reg()
    A(f's_mov_b32 s{sT3}, 0xff')
    A('s_waitcnt lgkmcnt(0)')
    TF(7)

    def hh_store():
        A(f'v_mov_b32 v60, s{sE}')
        exec_set(1, 0)
        A(f'buffer_store_dword v60, v16, {srd(sWS)}, s{sMS} offen offset:1024 sc1')
        exec_all()
    hh = CFG.get('hh', 1)
    nh = 0
    if hh == 4:
        hh_store()
        nh = 1
    for t in range(4):
        A(f's_waitcnt vmcnt({6 - 2 * t + ns + nh})')
        if t == 3:
            TF(5)
        if hh == 3 and t == CFG.get('hht', 3):
            hh_store()
            nh = 1
        for ct in range(2):
            for eh in range(2):
                A(f'ds_read_b64_tr_b16 {v2(64 + 8 * t + 4 * ct + 2 * eh)}, v{48 + ct} offset:{t * 2048 + eh * 256}')
    for t in range(4):
        for ct in range(2):
            A(f's_waitcnt lgkmcnt({min(15, 14 - 4 * t - 2 * ct)})')
            d = 96 + 8 * ct + 4 * (t & 1)
            A(f'v_mfma_f32_16x16x32_bf16 {v4(d)}, {v4(64 + 8 * t + 4 * ct)}, {v4(52 + 4 * (t >> 1))}, ' + ('0' if t < 2 else v4(d)))
    for r in range(4):
        A(f'v_add_f32_dpp v{112 + r}, v{100 + r}, v{96 + r} row_ror:8 row_mask:0xf bank_mask:0x3')
    for r in range(4):
        A(f'v_add_f32_dpp v{112 + r}, v{104 + r}, v{108 + r} row_ror:8 row_mask:0xf bank_mask:0xc')
    for r in range(4):
        A(f'v_bfi_b32 v{112 + r}, s{sT3}, v{12 + r}, v{112 + r}')
    TF(8)
    A(f's_waitcnt vmcnt({nh})')
    A(f'buffer_store_dwordx4 v[112:115], v50, {srd(sWS)}, s{sMS} offen sc1')
    if hh == 1:
        hh_store()
    TF(9)
    A('s_barrier')


class LG:
    def __init__(self):
        self.n = 0
        self.pos = {}
        self.done = 0

    def op(self, ins, tag=None):
        A(ins)
        self.n += 1
        if tag is not None:
            self.pos[tag] = self.n

    def need(self, tag):
        k = self.pos[tag]
        if k > self.done:
            A(f's_waitcnt lgkmcnt({min(15, self.n - k)})')
            self.done = max(k, self.n - 15)

    def all(self):
        A('s_waitcnt lgkmcnt(0)')
        self.done = self.n


QQ = 64
QK_ = 192
QSB = ((8, 12), (4, 56))
QS2 = (16, 20)
QM, QL, QMA = 24, 26, 28
QPW, QFL = 30, 31
QT = 32
QKA = 48
QG, QLA, QXW, QXR = 52, 53, 54, 55
QP = 60
QST = QQ + 4 * 23


def sm_a(hh, j):
    S, t = QSB[j & 1][hh], QT + 4 * hh
    o = [f'v_cvt_pk_bf16_f32 v{t + r}, 0, v{S + r}' for r in range(4)]
    o += [f'v_mul_f32 v{t + r}, s{sT2}, v{t + r}' for r in range(4)]
    o += [f'v_cvt_pk_bf16_f32 v{QS2[hh] + r}, 0, v{t + r}' for r in range(4)]
    return o


def sm_b(hh):
    t = QT + 4 * hh
    o = [f'v_fma_f32 v{t + r}, v{QS2[hh] + r}, s{sT3}, -v{QM + hh}' for r in range(4)]
    o += [f'v_max3_f32 v{QMA + hh}, v{QMA + hh}, v{t}, v{t + 1}', f'v_max3_f32 v{QMA + hh}, v{QMA + hh}, v{t + 2}, v{t + 3}']
    o += [f'v_exp_f32 v{t + r}, v{t + r}' for r in range(4)]
    o += [f'v_cvt_pk_bf16_f32 v{QP + 2 * hh}, v{t}, v{t + 1}', f'v_cvt_pk_bf16_f32 v{QP + 2 * hh + 1}, v{t + 2}, v{t + 3}']
    return o


def sm_l(hh):
    t = QT + 4 * hh
    return [f'v_add_f32 v{t}, v{t}, v{t + 1}', f'v_add_f32 v{t + 2}, v{t + 2}, v{t + 3}',
            f'v_add_f32 v{QL + hh}, v{QL + hh}, v{t}', f'v_add_f32 v{QL + hh}, v{QL + hh}, v{t + 2}']


def heads32(op, a, b, t):
    return [f'v_permlane16_swap_b32 v{a}, v{b}', f'{op} v{a}, v{a}, v{b}', f'v_mov_b32 v{t}, v{a}',
            f'v_permlane32_swap_b32 v{t}, v{a}', f'{op} v{a}, v{a}, v{t}']


def kread(j, t):
    return f'ds_read_b128 {v4(QK_ + 4 * t)}, v{QKA + (t & 3)} offset:{(j & 1) * 32768 + (t >> 2) * 256}'


def ffn_touch():
    def w1():
        A('v_and_b32 v40, 31, v3')
        A('v_mul_u32_u24 v40, 3584, v40')
        A('v_lshrrev_b32 v41, 5, v3')
        A('v_lshl_add_u32 v40, v41, 7, v40')
        A(f's_mul_i32 s{sT0}, s{sU}, {32 * 3584}')
        A(f's_mul_i32 s{sT4}, s{sXC}, 448')
        A(f's_add_u32 s{sT0}, s{sT0}, s{sT4}')
        A(f'buffer_load_dword v{QG}, v40, {srd(sW1)}, s{sT0} offen offset:60')

    def w2():
        A('v_subrev_u32 v40, 128, v3')
        A('v_min_u32 v40, 111, v40')
        A('v_lshlrev_b32 v40, 7, v40')
        A(f's_mul_i32 s{sT0}, s{sSID}, {112 * 128}')
        A(f'buffer_load_dword v{QG}, v40, {srd(sW2)}, s{sT0} offen')
    wave_if('lt', 2, w1, w2)


def qk_wave():
    A('L_qk:')
    late_ptrs(sW1, sW2, sWO)
    A('v_and_b32 v32, 3, v1')
    A('v_lshlrev_b32 v32, 2, v32')
    A('v_lshrrev_b32 v33, 2, v1')
    A('v_lshlrev_b32 v33, 1, v33')
    A(f'v_mov_b32 v34, {SIG[0] | SIG[1] << 2 | SIG[2] << 4 | SIG[3] << 6}')
    A('v_lshrrev_b32 v33, v33, v34')
    A('v_and_b32 v33, 3, v33')
    A('v_or_b32 v32, v32, v33')
    A('v_xor_b32 v32, v32, v2')
    A('v_lshlrev_b32 v33, 10, v1')
    A(f's_and_b32 s{sT0}, s{sW}, 1')
    A(f's_lshl_b32 s{sT0}, s{sT0}, 14')
    A(f's_lshr_b32 s{sT1}, s{sW}, 1')
    A(f's_lshl_b32 s{sT1}, s{sT1}, 16')
    A(f's_add_u32 s{sT0}, s{sT0}, s{sT1}')
    A(f'v_add_u32 v33, s{sT0}, v33')
    for tt in range(4):
        A(f'v_xor_b32 v{QKA + tt}, {4 * tt}, v32')
        A(f'v_lshl_add_u32 v{QKA + tt}, v{QKA + tt}, 4, v33')
    A(f'v_add_u32 v{QPW}, {PBUF}, v16')
    A(f'v_lshlrev_b32 v{QLA}, 4, v0')
    A(f'v_add_u32 v{QLA}, {L_Q}, v{QLA}')
    A(f'v_lshlrev_b32 v{QXR}, 4, v1')
    A(f'v_add_u32 v{QXR}, {L_MX}, v{QXR}')
    A(f'v_and_b32 v{QXW}, 31, v0')
    A(f'v_lshlrev_b32 v{QXW}, 4, v{QXW}')
    A(f's_lshl_b32 s{sT0}, s{sW}, 2')
    A(f's_add_u32 s{sT0}, s{sT0}, {L_MX}')
    A(f'v_add_u32 v{QXW}, s{sT0}, v{QXW}')
    A(f'v_mov_b32 v{QFL}, {L_FLAG}')
    A(f'v_lshlrev_b32 v{QG}, 6, v1')
    A(f'v_lshl_add_u32 v{QG}, v2, 4, v{QG}')
    A(f's_lshl_b32 s{sT0}, s{sW}, 12')
    A(f'v_add_u32 v57, s{sT0}, v{QLA}')
    A('s_waitcnt lgkmcnt(0)')
    make_tag()
    A(f's_mov_b32 s{sPASS}, 0')
    A('L_qk_start:')
    for r in (QL, QL + 1, QMA, QMA + 1, 40):
        A(f'v_mov_b32 v{r}, 0')
    A(f'ds_write_b32 v{QFL}, v40')
    A('s_barrier')
    for t in range(16):
        A(kread(0, t))
    A('s_waitcnt lgkmcnt(0)')
    A('s_barrier')
    A(f's_cmp_lg_u32 s{sPASS}, 0')
    A('s_cbranch_scc1 L_noq')
    if CFG.get('slowp', 0):
        A(f's_and_b32 s{sT0}, s{sSID}, 0x73')
        A(f's_or_b32 s{sT0}, s{sT0}, 4')
        A(f's_lshl_b32 s{sT0}, s{sT0}, 7')
    else:
        A(f's_lshl_b32 s{sT0}, s{sSID}, 7')
    A(f's_add_u32 s{sT0}, s{sT0}, {FLG}')
    A(f's_not_b32 s{sT1}, s{sE}')
    top, foll = lab('poll'), lab('foll')
    A(f's_lshl_b32 s{sT4}, s{sXC}, {CS}')
    A(f's_add_u32 s{sT4}, s{sT4}, {QA}')
    A(f's_add_u32 s{sKB}, s{sT4}, {31 * 1024}')
    A(f's_lshl_b32 s{sT5}, s{sW}, 12')
    A(f's_add_u32 s{sT4}, s{sT4}, s{sT5}')
    A(f's_add_u32 s{sT5}, s{sT4}, 16384')
    A(f's_mov_b32 s{sCNT}, {CFG["poll_max"]}')
    A(f's_cmp_lg_u32 s{sW}, 0')
    A(f's_cbranch_scc1 {foll}')
    A(f'{top}:')
    A(f's_load_dwordx2 s[{sT2}:{sT3}], s[{sWS}:{sWS + 1}], s{sT0} glc')
    A('s_waitcnt lgkmcnt(0)')
    A(f's_xor_b32 s{sT2}, s{sT2}, s{sE}')
    A(f's_xor_b32 s{sT3}, s{sT3}, s{sT1}')
    A(f's_or_b32 s{sT2}, s{sT2}, s{sT3}')
    A(f's_cbranch_scc0 {foll}')
    A(f's_sub_u32 s{sCNT}, s{sCNT}, 1')
    A(f's_cbranch_scc0 {top}')
    A(f'{foll}:')
    TS(3)

    def ldq(i):
        if i == 8:
            A(f'buffer_load_dwordx4 {v4(QQ + 4 * 31)}, v{QG}, {srd(sWS)}, s{sKB} offen sc1')
        else:
            A(f'buffer_load_dwordx4 {v4(QST + 4 * i)}, v{QG}, {srd(sWS)}, s{sT4 + (i >> 2)} offen offset:{1024 * (i & 3)} sc1')

    def wrq(i):
        ins = f'ds_write_b128 v57, {v4(QST + 4 * i)} offset:{(i >> 2) * 16384 + (i & 3) * 1024}'
        if i == 7:
            wave_if('lg', 3, lambda: A(ins))
        else:
            A(ins)
    A('s_barrier')
    for i in range(9):
        ldq(i)
    A('s_barrier')
    for i in range(8):
        A(f's_waitcnt vmcnt({8 - i})')
        wrq(i)
    top, done = lab('poll'), lab('pdone')
    A(f's_mov_b32 s{sCNT}, {CFG["poll_max"]}')
    A('s_waitcnt vmcnt(0)')
    A(f'{top}:')
    max_tree([QST + 4 * i for i in range(9)], 40)
    A('v_cmp_eq_u32 vcc, -1, v40')
    A(f's_cbranch_vccz {done}')
    for i in range(9):
        nx = lab('qn')
        A(f'v_cmp_eq_u32 vcc, -1, v{QST + 4 * i}')
        A(f's_cbranch_vccz {nx}')
        ldq(i)
        A(f'{nx}:')
    A('s_waitcnt vmcnt(0)')
    for i in range(8):
        wrq(i)
    A(f's_sub_u32 s{sCNT}, s{sCNT}, 1')
    A(f's_cbranch_scc0 {top}')
    A(f'{done}:')
    TS(4)
    A('s_branch L_go')
    A('L_noq:')
    A('s_barrier')
    A('s_barrier')
    for f in range(31):
        A(f'ds_write_b128 v{QLA}, {v4(QQ + 4 * f)} offset:{1024 * f}')
    A('L_go:')
    A(f's_mov_b32 s{sT2}, 0x3db504f3')
    A(f's_mov_b32 s{sT3}, {LOG2E:#x}')
    A(f's_mov_b32 s{sT1}, {THR:#x}')
    A(f's_setprio {CFG.get("prio", 1)}')
    A('s_waitcnt lgkmcnt(0)')
    A('s_barrier')
    lg = LG()
    nb = [0]

    def bar(tag=None):
        lg.need(tag) if tag else lg.all()
        A('s_barrier')
        nb[0] += 1
        if nb[0] == CFG.get('ot', 0):
            A('v_lshlrev_b32 v40, 7, v3')
            A(f's_lshl_b32 s{sT0}, s{sSID}, 15')
            A(f'buffer_load_dword v{QLA}, v40, {srd(sWO)}, s{sT0} offen')
        if nb[0] == CFG.get('ft', 4):
            ffn_touch()
        if CFG.get('tsloop', 0):
            TS(4 + nb[0])
        elif nb[0] in (1, 3, 4):
            TS({1: 5, 3: 6, 4: 7}[nb[0]])

    def fill_one(f):
        if callable(f):
            f()
        else:
            A(f)

    def step(j, fill=(), pre=None, post=None, f0=0, f1=32, seq=False):
        fill = list(fill)
        fd = 0
        G = CFG.get('grp', 1)
        for n in range(32):
            hh, t = ((n >> 4, n & 15) if seq else (n & 1, n >> 1))
            if pre:
                pre(hh, t)
            S = QSB[j & 1][hh]
            A(f'v_mfma_f32_16x16x32_bf16 {v4(S)}, {v4(QK_ + 4 * t)}, {v4(QQ + 64 * hh + 4 * t)}, ' + ('0' if t == 0 else v4(S)))
            if post:
                post(hh, t)
            if n >= f0 and (n + 1) % G == 0:
                up = min(len(fill), (len(fill) * (n - f0 + 1) + (f1 - f0) - 1) // (f1 - f0))
                while fd < up:
                    fill_one(fill[fd]); fd += 1

    def pwrite(j):
        return [f'v_permlane16_swap_b32 v{QP}, v{QP + 2}', f'v_permlane16_swap_b32 v{QP + 1}, v{QP + 3}',
                lambda: lg.op(f'ds_write_b128 v{QPW}, {v4(QP)} offset:{(j & 1) * 4096}', ('p', j))]

    def mix(a, b):
        return [x for pr in zip(a, b) for x in pr]

    def softmax(j):
        return mix(sm_a(0, j), sm_a(1, j)) + mix(sm_b(0), sm_b(1)) + pwrite(j) + mix(sm_l(0), sm_l(1))

    kn = {1: 0, 2: 0, 3: 0}

    def kr(j, upto):
        while kn[j] < min(16, upto):
            lg.op(kread(j, kn[j]), ('k', j, kn[j]))
            kn[j] += 1

    LA = CFG.get('la', 6)
    qo = [16 * (n & 1) + (n >> 1) for n in range(31)]
    qn = [0]

    def qread(n):
        for _ in range(n):
            if qn[0] < 31:
                f = qo[qn[0]]
                lg.op(f'ds_read_b128 {v4(QQ + 4 * f)}, v{QLA} offset:{1024 * f}', ('q', f))
                qn[0] += 1
    qread(CFG.get('q0', 8))

    def post0(hh, t):
        if qn[0] < 31:
            qread(1)
        elif kn[1] < t + hh:
            kr(1, kn[1] + 1)
    step(0, pre=lambda hh, t: 16 * hh + t < 31 and lg.need(('q', 16 * hh + t)), post=post0)
    S0 = QSB[0]
    p2 = lab('p2')
    f = [f'v_max3_f32 v44, v{S0[0]}, v{S0[0] + 1}, v{S0[0] + 2}', f'v_max3_f32 v45, v{S0[1]}, v{S0[1] + 1}, v{S0[1] + 2}',
         f'v_max_f32 v44, v44, v{S0[0] + 3}', f'v_max_f32 v45, v45, v{S0[1] + 3}']
    sa = mix(sm_a(0, 0), sm_a(1, 0))
    for x in heads32('v_max_f32', 44, 45, 46):
        f += [sa.pop(0), sa.pop(0), x]
    f += [lambda: (kr(1, 16), lg.op(f'ds_write_b32 v{QXW}, v44', 'mw'))]
    nm = CFG.get('nm', 8)
    f += sa[:nm] + [lambda: bar('mw'),
                    lambda: lg.op(f'ds_read_b128 v[40:43], v{QXR}'), lambda: lg.op(f'ds_read_b128 v[44:47], v{QXR} offset:256', 'mx')]
    f += sa[nm:] + [lambda: None] * CFG.get('nx', 6) + [lambda: lg.need('mx')]
    for b_ in (40, 44):
        f += [f'v_max3_f32 v{b_}, v{b_}, v{b_ + 1}, v{b_ + 2}']
    for b_ in (40, 44):
        f += [f'v_max_f32 v{b_}, v{b_}, v{b_ + 3}']
    for ins in ('v_cvt_pk_bf16_f32 v{b}, 0, v{b}', 'v_mul_f32 v{b}, s%d, v{b}' % sT2, 'v_cvt_pk_bf16_f32 v{b}, 0, v{b}'):
        f += [ins.format(b=40), ins.format(b=44)]
    f += [lambda: emit([f's_cmp_lg_u32 s{sPASS}, 0', f's_cbranch_scc1 {p2}', f'v_mul_f32 v{QM}, s{sT3}, v40',
                        f'v_mul_f32 v{QM + 1}, s{sT3}, v44', f'{p2}:'])]
    f += mix(sm_b(0), sm_b(1)) + pwrite(0) + mix(sm_l(0), sm_l(1))

    def jit(j):
        return dict(pre=lambda hh, t: lg.need(('k', j, t)), post=lambda hh, t: hh and kr(j, t + 1 + LA))
    step(1, fill=f, f0=4, pre=lambda hh, t: lg.need(('k', 1, t)), post=lambda hh, t: kr(1, kn[1] + 1))
    bar()
    def lagged(j):
        kr(j, LA)
        sm = softmax(j - 1)
        pf = CFG.get('pf', 0)
        for x in sm[:pf]:
            fill_one(x)
        step(j, fill=sm[pf:], f0=CFG.get('f0', 0), f1=CFG.get('f1', 28), **jit(j))
    lagged(2)
    bar()
    if CFG.get('lag3', 1):
        lagged(3)
        bar()
        tail = softmax(3)
    else:
        for x in softmax(2):
            fill_one(x)
        bar()
        kr(3, 16)
        step(3, fill=sm_a(0, 3) + sm_b(0) + sm_l(0), f0=18, f1=31, seq=True, pre=lambda hh, t: lg.need(('k', 3, t)))
        tail = sm_a(1, 3) + sm_b(1) + pwrite(3) + sm_l(1)
    for x in tail:
        fill_one(x)
    A(f'v_max_f32 v40, v{QMA}, v{QMA + 1}')
    A(f'v_cmp_lt_f32 vcc, s{sT1}, v40')
    emit(heads32('v_add_f32', QL, QL + 1, 41))
    A(f'v_subrev_u32 v42, {L_MX - L_LS}, v{QXW}')
    lg.op(f'ds_write_b32 v42, v{QL}')
    nf = lab('noflag')
    A(f's_cbranch_vccz {nf}')
    A(f's_cmp_lg_u32 s{sPASS}, 0')
    A(f's_cbranch_scc1 {nf}')
    A(f'ds_write_b32 v{QFL}, v{QFL}')
    A(f'{nf}:')
    bar()
    A(f'ds_read_b32 v39, v{QFL}')
    A('v_and_b32 v42, -16, v42')
    A('ds_read_b128 v[44:47], v42')
    A(f's_lshl_b32 s{sT1}, s{sSID}, 8')
    A(f's_add_u32 s{sT1}, s{sT1}, {STATS}')
    A('v_lshlrev_b32 v40, 3, v0')
    A('v_and_b32 v41, 1, v2')
    A('v_cmp_eq_u32 vcc, 1, v41')
    A(f'v_cndmask_b32 v32, v{QM}, v{QM + 1}, vcc')
    A('s_setprio 0')
    A('s_waitcnt lgkmcnt(0)')
    A(f'v_readfirstlane_b32 s{sT0}, v39')
    A('v_add_f32 v44, v44, v45')
    A('v_add_f32 v46, v46, v47')
    A('v_add_f32 v33, v44, v46')
    A(f's_cmp_lg_u32 s{sT0}, 0')
    A('s_cbranch_scc1 L_qk_redo')
    A(f's_cmp_lg_u32 s{sW}, 0')
    A('s_cbranch_scc1 L_att_post')
    exec_set(0xffffffff, 0)
    A(f'buffer_store_dwordx2 v[32:33], v40, {srd(sWS)}, s{sT1} offen sc1')
    exec_all()
    if not CFG.get('tsloop', 0):
        TS(8)
    A('s_branch L_att_post')
    A('L_qk_redo:')
    A('s_waitcnt vmcnt(0)')
    A(f'v_lshlrev_b32 v{QLA}, 4, v0')
    A(f'v_add_u32 v{QLA}, {L_Q}, v{QLA}')
    emit(heads32('v_max_f32', QMA, QMA + 1, 41))
    A(f'ds_write_b32 v{QXW}, v{QMA}')
    A('s_waitcnt lgkmcnt(0)')
    A('s_barrier')
    A(f'ds_read_b128 v[40:43], v{QXR}')
    A(f'ds_read_b128 v[44:47], v{QXR} offset:256')
    A('s_waitcnt lgkmcnt(0)')
    for hh in range(2):
        b_ = 40 + 4 * hh
        A(f'v_max3_f32 v{b_}, v{b_}, v{b_ + 1}, v{b_ + 2}')
        A(f'v_max_f32 v{b_}, v{b_}, v{b_ + 3}')
        A(f'v_add_f32 v{QM + hh}, v{QM + hh}, v{b_}')
    A(f's_mov_b32 s{sPASS}, 1')
    A('s_branch L_qk_start')


def att_stub():
    A('L_att0:')
    A(f's_cmp_ge_u32 s{sW}, 4')
    A('s_cbranch_scc0 L_atq')
    if CFG.get('qpf', 32) and CFG.get('qpfb', 1):
        A('s_barrier')
    if CFG.get('kvb', 1):
        A('s_barrier')
    A('s_branch L_pv')
    A('L_atq:')
    code_prefetch(32)
    if CFG.get('ukpf', 1):
        srd_tail(sWUK)
        if CFG.get('bal', 1):
            A('v_lshrrev_b32 v33, 3, v3')
            A('v_lshlrev_b32 v33, 13, v33')
            A('v_and_b32 v34, 7, v0')
            A('v_lshl_add_u32 v33, v34, 7, v33')
            A(f's_lshl_b32 s{sT3}, s{sU}, 18')
            A(f's_lshl_b32 s{sT4}, s{sXC}, 10')
            A(f's_add_u32 s{sT3}, s{sT3}, s{sT4}')
        else:
            tile_addr()
            A('v_lshrrev_b32 v33, 1, v0')
            A('v_lshlrev_b32 v33, 13, v33')
            A('v_and_b32 v34, 1, v0')
            A('v_lshl_add_u32 v33, v34, 7, v33')
    qpf = CFG.get('qpf', 32)
    if qpf:
        srd_tail(sWQ)
        m = ((1 << 64) - 1) ^ ((1 << (64 - 2 * qpf)) - 1)
        exec_set(m & 0xffffffff, m >> 32)
    A('s_waitcnt lgkmcnt(0)')
    if qpf:
        A(f'buffer_load_dword v69, v33, {srd(sWQ)}, s{sT3} offen {PFW}')
        exec_all()
        if CFG.get('qpfb', 1):
            A('s_barrier')
    if CFG.get('ukpf', 1):
        m = ((1 << 64) - 1) ^ ((1 << (8 * 0)) - 1)
        exec_set(m & 0xffffffff, m >> 32)
        A(f'buffer_load_dword v68, v33, {srd(sWUK)}, s{sT3} offen {PFW}')
        exec_all()
    if CFG.get('awarm', 1):
        A(f's_lshl_b32 s{sT2}, s{sU}, 12')
        A(f's_lshl_b32 s{sT1}, s{sXC}, {CS}')
        A(f's_add_u32 s{sT2}, s{sT2}, s{sT1}')
        A(f's_add_u32 s{sT2}, s{sT2}, {Q2}')
        A(f'buffer_load_dword v70, v16, {srd(sWS)}, s{sT2} offen sc1')
    if CFG.get('kvb', 1):
        A('s_barrier')
    A('s_branch L_qk')


def pv_wave():
    vm = PVM
    A('L_pv:')
    srd_tail(sKV)
    A(f's_lshl_b32 s{sKB}, s{sU}, 18')
    A(f's_lshl_b32 s{sT0}, s{sXC}, 22')
    for T in range(8):
        A(f's_add_u32 s{sTB + T}, s{sKB}, {T * (ROT * 262144 + 32768)}')
        A(f's_and_b32 s{sTB + T}, s{sTB + T}, 0x3fffff')
        A(f's_or_b32 s{sTB + T}, s{sTB + T}, s{sT0}')
    A(f's_and_b32 s{sT4P}, s{sW}, 3')
    A(f's_lshl_b32 s{sT5}, s{sT4P}, 13')
    A(f's_and_b32 s{sT0}, s{sT4P}, 1')
    A(f's_cmp_eq_u32 s{sT0}, 1')
    for i in range(8):
        A(f's_cselect_b32 s{sT1}, {fsw(8 + i)}, {fsw(i)}')
        A(f'v_xor_b32 v{VDM + i}, s{sT1}, v0')
        A(f'v_lshlrev_b32 v{VDM + i}, 4, v{VDM + i}')
        A(f'v_add_u32 v{VDM + i}, s{sT5}, v{VDM + i}')
        if i >= 4:
            A(f'v_add_u32 v{VDM + i}, 4096, v{VDM + i}')
    A('s_waitcnt lgkmcnt(0)')
    late_ptrs(sW1, sW2)
    A(f's_mov_b32 s{sPASS}, 0')
    A('L_pv_start:')
    n0 = CFG.get('n0', 4)
    for i in range(n0):
        emit(kv_instr(i >> 3, i & 7, PVM, set_m0=(i & 3) == 0))
    for i in range(64):
        A(f'v_mov_b32 v{VO + i}, 0')
    A(f's_cmp_lg_u32 s{sPASS}, 0')
    A('s_cbranch_scc1 L_pv_again')
    A('v_lshrrev_b32 v42, 2, v1')
    A('v_and_b32 v43, 3, v1')
    A('v_and_b32 v44, 1, v2')
    A('v_lshrrev_b32 v45, 1, v2')
    A('v_lshl_add_u32 v46, v45, 3, v42')
    A('v_lshlrev_b32 v46, 10, v46')
    A('v_and_b32 v47, 1, v43')
    A('v_lshl_add_u32 v46, v47, 3, v46')
    A(f's_lshl_b32 s{sT0}, s{sT4P}, 8')
    A(f'v_add_u32 v46, s{sT0}, v46')
    A('v_lshrrev_b32 v47, 1, v43')
    A('v_lshl_add_u32 v47, v44, 1, v47')
    A('v_lshl_add_u32 v47, v42, 2, v47')
    A('v_cmp_eq_u32 vcc, 1, v45')
    for eh in range(2):
        A(f'v_mov_b32 v56, {SIG[eh]}')
        A(f'v_mov_b32 v57, {SIG[2 + eh]}')
        A('v_cndmask_b32 v56, v56, v57, vcc')
        A('v_xor_b32 v56, v56, v47')
        for ct in range(4):
            d = VVA + 2 * ct + eh
            A(f'v_xor_b32 v{d}, {4 * ct}, v56')
            A(f'v_lshl_add_u32 v{d}, v{d}, 4, v46')
            if eh:
                A(f'v_add_u32 v{d}, 4096, v{d}')
            A(f'v_add_u32 v{d + 8}, 0x10000, v{d}')
    todo = [(T, k) for T in range(8) for k in range(8)][n0:]

    def issue(n):
        first = True
        for _ in range(n):
            T, k = todo.pop(0)
            emit(kv_instr(T, k, vm, set_m0=(first or (k & 3) == 0)))
            first = False
    DF = CFG.get('depth', 8)
    D0 = CFG.get('depth0', DF)
    slow_n = CFG.get('slow_n', 8)

    def Dcur():
        if len(vm.ops) >= CFG.get('slow2', 64):
            return CFG.get('depth2', DF)
        return D0 if len(vm.ops) < slow_n else DF
    A(f'v_lshlrev_b32 v{VPR}, 4, v0')
    A(f'v_add_u32 v{VPR}, {PBUF}, v{VPR}')
    A(f'v_mov_b32 v41, {L_FLAG}')
    A('s_waitcnt lgkmcnt(0)')
    make_tag()
    A('v_and_b32 v42, 3, v1')
    A('v_lshlrev_b32 v42, 3, v42')
    A(f'v_lshrrev_b32 v42, v42, s{sE}')
    for q in range(4):
        A(f'v_bfe_u32 v{VTG + q}, v42, {2 * q}, 1')
        A(f'v_bfe_u32 v43, v42, {2 * q + 1}, 1')
        A(f'v_lshl_or_b32 v{VTG + q}, v43, 16, v{VTG + q}')

    def stream_until(T, extra='', maxT=5):
        while True:
            D = Dcur()
            left = vm.after(('kv', T)) if len([t for t in vm.ops if t == ('kv', T)]) == 8 else -1
            if left >= D - 2 or todo[0][0] > maxT:
                A(f's_waitcnt vmcnt({left}){extra}')
                return
            A(f's_waitcnt vmcnt({D - 2})')
            issue(2)

    A('L_pv_again:')
    stream_until(1, maxT=3)
    TS(2)
    A('s_barrier')
    vr = v_read_list(0, 0) + v_read_list(1, 1)
    nab = CFG.get('nab', 3)
    for c in range(4):
        emit(vr[8 * c:8 * c + 8])
        if c < nab and 64 - len(todo) < min(32, CFG['npre']):
            A(f's_waitcnt vmcnt({Dcur() - 2})')
            issue(2)
    A('s_waitcnt lgkmcnt(0)')
    TS(5)
    A('s_barrier')
    npre = CFG.get('npre', 40)
    while 64 - len(todo) < npre:
        A(f's_waitcnt vmcnt({Dcur() - 2})')
        issue(2)
    A(f's_waitcnt vmcnt({vm.after(("kv", 2))})')
    TS(6)
    A('s_barrier')
    emit(v_read_list(2, 2))
    A(f's_waitcnt vmcnt({vm.after(("kv", 3))})')
    TS(3)
    A('s_barrier')
    emit(v_read_list(3, 3))
    atch = CFG.get('atch', 0)
    assert atch % 4 == 0
    for i in range(atch // 4):
        A(f'v_lshlrev_b32 v{46 + i}, 7, v0')
        A(f'v_add_u32 v{46 + i}, s{sT5}, v{46 + i}')
        A(f'buffer_load_dword v{46 + i}, v{46 + i}, {srd(sKV)}, s{sTB + 8 - atch // 4 + i} offen')
        vm.add('touch')
    sp = [int(x) for x in str(CFG['spread']).split(',')] + [0] * 8
    kp = 1 | 2 * CFG.get('lag3', 1)
    assert sum(sp) == len(todo) and npre + sp[0] + sp[1] <= 48 and npre >= 32
    assert npre + sum(sp[:3 if kp & 1 else 4]) >= 48 and npre + sum(sp[:4 if kp & 2 else 5]) == 64
    if sp[0]:
        issue(sp[0])
    A('s_barrier')
    TS(4)

    carry = []
    SK = CFG.get('skew', 3)

    def dmas(n):
        out = []
        for _ in range(n):
            T, k = todo.pop(0)
            out.append(kv_instr(T, k, vm))
        return out

    def endstep(T=None, lg=None):
        if T is not None:
            A(f's_waitcnt vmcnt({vm.after(("kv", T))})')
        if lg is not None:
            A(f's_waitcnt lgkmcnt({lg})')
        A('s_barrier')

    def pv(j, fill, first=(), nofill=0):
        par = j & 1
        pr = [8, 12, 16, (20, 60)[par]]
        if j == 3:
            A('ds_read_b32 v42, v41')
        for f in range(4):
            A(f'ds_read_b128 {v4(pr[f])}, v{VPR} offset:{par * 4096 + f * 1024}')
        emit(carry)
        carry.clear()
        A('s_waitcnt lgkmcnt(0)')
        emit(list(first))
        if j == 3:
            A(f'v_readfirstlane_b32 s{sT0}, v42')
            A(f's_cmp_lg_u32 s{sT0}, 0')
            A('s_cbranch_scc1 L_pv_redo')
        m = []
        for f in range(4):
            for ct in range(4):
                o = VO + 16 * ct
                m.append(f'v_mfma_f32_32x32x16_bf16 v[{o}:{o + 15}], {v4(pr[f])}, {v4(VV[2 * par + (f >> 1)] + 8 * ct + 4 * (f & 1))}, v[{o}:{o + 15}]')
        k = SK if j < 2 else (CFG.get('skew2', 2) if j == 2 else 0)
        if k:
            carry.extend(m[-k:])
            m = m[:-k]
        interleave(m[:len(m) - nofill], fill)
        emit(m[len(m) - nofill:])

    def w2_ops(half):
        if not CFG.get('ew2', 1):
            return []
        o = [[f's_min_u32 s{sT0}, s{sU}, 13', f's_lshr_b32 s{sT0}, s{sT0}, 1', f's_mul_i32 s{sT1}, s{sXC}, 7',
              f's_add_u32 s{sT0}, s{sT0}, s{sT1}', f's_lshl_b32 s{sT0}, s{sT0}, 15', f's_add_u32 s{sT0}, s{sT0}, s{sT5}',
              f's_add_u32 s{sT0}, s{sT0}, {half * 4096}', f's_add_u32 m0, s{sT5}, {L_W2 + half * 4096}', 'v_lshlrev_b32 v43, 4, v0',
              f's_and_b32 s{sT1}, s{sW}, 1', f's_lshl_b32 s{sT1}, s{sT1}, 7', f'v_xor_b32 v43, s{sT1}, v43']]
        for i in range(4):
            o.append([f'v_xor_b32 v46, {i * 32}, v43',
                      f'buffer_load_dwordx4 v46, {srd(sW2)}, s{sT0} offen offset:{i * 1024} {POL.get(sW2, NTW)} lds'])
        return o

    emit(dmas(sp[1]))
    endstep(lg=0)
    emit(dmas(sp[2]))
    endstep(5)
    pv(0, dmas(sp[3]), nofill=CFG.get('nf0', 5))
    endstep(7 if kp & 2 else 5)
    vf = [int(x) for x in str(CFG.get('vf', '0,0')).split(',')]
    vr = v_read_list(4, 0) + v_read_list(5, 1)
    pv(1, dmas(sp[4]) + vr[vf[0]:], vr[:vf[0]])
    endstep(7, lg=0)
    vr = v_read_list(6, 2) + v_read_list(7, 3)
    pv(2, vr[vf[1]:] + (w2_ops(0) + w2_ops(1) if CFG.get('ew2', 1) == 1 else []), vr[:vf[1]])
    A('v_lshrrev_b32 v44, 1, v2')
    A('v_and_b32 v45, 1, v2')
    A('v_lshl_add_u32 v44, v44, 2, v45')
    A('v_lshlrev_b32 v44, 17, v44')
    A('v_lshl_add_u32 v44, v1, 4, v44')
    A(f's_lshl_b32 s{sT1}, s{sT4P}, 15')
    A(f's_lshl_b32 s{sT2}, s{sSID}, 8')
    A(f's_add_u32 s{sT1}, s{sT1}, s{sT2}')
    A(f's_add_u32 s{sT1}, s{sT1}, {OP}')
    A(f's_mov_b32 s{sT3}, 0x00010001')
    endstep()
    pv(3, [])
    TS(7)
    for j in range(8):
        r = 2 * j
        d = 160 + 4 * j
        A(f'v_cvt_pk_bf16_f32 v{d}, v{VO + r}, v{VO + 16 + r}')
        A(f'v_cvt_pk_bf16_f32 v{d + 1}, v{VO + r + 1}, v{VO + 16 + r + 1}')
        A(f'v_cvt_pk_bf16_f32 v{d + 2}, v{VO + 32 + r}, v{VO + 48 + r}')
        A(f'v_cvt_pk_bf16_f32 v{d + 3}, v{VO + 32 + r + 1}, v{VO + 48 + r + 1}')
        if j:
            st_o(j - 1)
    st_o(7)
    TS(8)
    if CFG.get('ew2', 1) == 2:
        emit(w2_ops(0) + w2_ops(1))
    W2OPS.extend(w2_ops(0) + w2_ops(1))
    A('s_branch L_att_post')
    A('L_pv_redo:')
    A('s_waitcnt vmcnt(0) lgkmcnt(0)')
    A('s_barrier')
    A(f's_mov_b32 s{sPASS}, 1')
    A('s_nop 7')
    A('s_branch L_pv_start')


def st_o(j):
    r = 2 * j
    d = 160 + 4 * j
    A(f'v_permlane16_swap_b32 v{d}, v{d + 1}')
    A(f'v_permlane16_swap_b32 v{d + 2}, v{d + 3}')
    for q in range(4):
        A(f'v_bfi_b32 v{d + q}, s{sT3}, v{VTG + q}, v{d + q}')
    head0 = (r & 3) + 8 * (r >> 2)
    A(f's_add_u32 s{sT2}, s{sT1}, {head0 * 131072}')
    A(f'buffer_store_dwordx4 {v4(d)}, v44, {srd(sWS)}, s{sT2} offen sc1')


def t3_t4():
    A('L_att_post:')
    if CFG.get('ft', 4) == 9:
        A('s_barrier')
        wave_if('lt', 4, ffn_touch)
    A(f's_cmp_ge_u32 s{sU}, 14')
    A('s_cbranch_scc1 L_fin')
    A(f's_lshr_b32 s{sT4}, s{sU}, 1')
    A(f's_mul_i32 s{sT1}, s{sXC}, 7')
    A(f's_add_u32 s{sT4}, s{sT4}, s{sT1}')
    A(f's_and_b32 s{sT5}, s{sU}, 1')
    A('v_lshrrev_b32 v44, 2, v0')
    A('v_mul_u32_u24 v44, 3584, v44')
    A('v_and_b32 v45, 3, v0')
    A('v_lshrrev_b32 v32, 5, v0')
    A('v_lshlrev_b32 v32, 1, v32')
    A('v_xor_b32 v45, v45, v32')
    A('v_lshl_add_u32 v44, v45, 4, v44')
    A('v_lshlrev_b32 v32, 4, v0')
    A(f's_lshl_b32 s{sT0}, s{sT4}, 6')
    A(f's_mul_i32 s{sT1}, s{sW}, {64 * 3584}')
    A(f's_add_u32 s{sT0}, s{sT0}, s{sT1}')
    A(f's_lshl_b32 s{sT1}, s{sW}, 12')
    A(f's_add_u32 s{sT2}, s{sT1}, {L_W1}')
    A('s_barrier')
    for i in range(4):
        dma(44, sW1, f's{sT0}', lds_s=sT2)
        if i < 3:
            A(f's_add_u32 s{sT0}, s{sT0}, {16 * 3584}')
            A(f's_add_u32 s{sT2}, s{sT2}, 1024')
    if CFG.get('ew2', 1) == 3:
        def w2l():
            A(f's_mov_b32 s{sKB}, s{sT5}')
            A(f's_lshl_b32 s{sT5}, s{sT4P}, 13')
            emit(W2OPS)
            A(f's_mov_b32 s{sT5}, s{sKB}')
        wave_if('ge', 4, w2l)
    if not CFG.get('ew2', 1):
        A(f's_lshl_b32 s{sT0}, s{sT4}, 15')
        A(f's_add_u32 s{sT0}, s{sT0}, s{sT1}')
        A(f's_add_u32 m0, s{sT1}, {L_W2}')
        for i in range(4):
            o = f' offset:{i * 1024}' if i else ''
            A(f'buffer_load_dwordx4 v32, {srd(sW2)}, s{sT0} offen{o} {POL.get(sW2, NTW)} lds')
    A('v_and_b32 v38, 3, v1')
    A(f's_lshl_b32 s{sT0}, s{sT5}, 12')
    A(f's_lshl_b32 s{sT1}, s{sW}, 9')
    A(f's_add_u32 s{sT1}, s{sT1}, s{sT0}')
    A('v_and_b32 v33, 31, v0')
    A('v_lshlrev_b32 v33, 4, v33')
    A('v_lshrrev_b32 v34, 5, v0')
    A('v_lshl_add_u32 v33, v34, 3, v33')
    A(f'buffer_load_dwordx2 v[40:41], v33, {srd(sX_)}, s{sT1} offen')
    A(f's_add_u32 s{sT1}, s{sT1}, {MODL}')
    A(f's_add_u32 s{sT2}, s{sT1}, 8192')
    A(f's_add_u32 s{sT3}, s{sT1}, 16384')

    def ldm():
        for k in range(3):
            A(f'buffer_load_dwordx2 {v2(44 + 2 * k)}, v33, {srd(sWS)}, s{sT1 + k} offen sc1')
    poll(ldm, range(44, 50), 56)
    A(f's_lshr_b32 s{sT0}, s{sW}, 1')
    A(f's_and_b32 s{sT1}, s{sW}, 1')
    A(f's_mul_i32 s{sT2}, s{sT0}, 1040')
    A(f's_lshl_b32 s{sT3}, s{sT1}, 9')
    A(f's_add_u32 s{sT2}, s{sT2}, s{sT3}')
    A(f's_add_u32 s{sT2}, s{sT2}, {L_H2}')
    A(f'v_add_u32 v39, s{sT2}, v33')
    A(f'ds_write_b64 v39, v[48:49] offset:{4 * 1040}')
    A(f'ds_write_b64 v39, v[46:47] offset:{8 * 1040}')
    unpack(160, 40, 2)
    unpack(164, 44, 2)
    unpack(168, 48, 2)
    A('s_waitcnt lgkmcnt(0)')
    A('s_barrier')
    if not CFG.get('tsloop', 0):
        TS(9)
    A('v_lshrrev_b32 v34, 2, v1')
    A('v_lshl_add_u32 v34, v2, 3, v34')
    A('v_lshlrev_b32 v35, 6, v34')
    A('v_lshl_add_u32 v35, v38, 3, v35')
    A('v_and_b32 v36, 1, v2')
    A(f'v_xor_b32 v36, s{sT1}, v36')
    A('v_lshl_add_u32 v35, v36, 5, v35')
    A(f's_lshl_b32 s{sT2}, s{sT0}, 13')
    A(f'v_add_u32 v35, s{sT2}, v35')
    for t in range(4):
        for eh in range(2):
            A(f'ds_read_b64_tr_b16 {v2(128 + 4 * t + 2 * eh)}, v35 offset:{L_W1 + t * 2048 + eh * 256}')
    A('v_lshlrev_b32 v35, 10, v34')
    A('v_lshl_add_u32 v35, v38, 3, v35')
    A('v_lshrrev_b32 v36, 2, v1')
    A('v_and_b32 v37, 1, v2')
    A('v_lshl_add_u32 v36, v37, 2, v36')
    A(f's_lshl_b32 s{sT2}, s{sW}, 2')
    A(f'v_xor_b32 v36, s{sT2}, v36')
    A('v_lshl_add_u32 v35, v36, 5, v35')
    assert L_W2 == 0 and CFG.get('ew2', 1)
    for tau in range(4):
        A(f'v_xor_b32 v36, {tau * 32}, v35')
        for eh in range(2):
            A(f'ds_read_b64_tr_b16 {v2(144 + 4 * tau + 2 * eh)}, v36 offset:{eh * 4096}')
    A('v_and_b32 v42, 7, v1')
    A('v_mul_u32_u24 v34, 1040, v42')
    A('v_lshl_add_u32 v34, v2, 4, v34')
    A(f's_lshl_b32 s{sT2}, s{sT0}, 8')
    A(f's_add_u32 s{sT2}, s{sT2}, {L_H2}')
    A(f'v_add_u32 v34, s{sT2}, v34')
    A('v_mul_u32_u24 v35, 144, v42')
    A('v_lshl_add_u32 v35, v2, 4, v35')
    A(f's_mul_i32 s{sT2}, s{sT0}, 1216')
    A(f's_lshl_b32 s{sT3}, s{sT1}, 6')
    A(f's_add_u32 s{sT2}, s{sT2}, s{sT3}')
    A(f's_add_u32 s{sT2}, s{sT2}, {L_FP}')
    A(f'v_add_u32 v35, s{sT2}, v35')
    A('v_lshrrev_b32 v36, 2, v1')
    A('v_mul_u32_u24 v36, 1216, v36')
    A('v_mul_u32_u24 v43, 144, v38')
    A('v_add_u32 v36, v36, v43')
    A('v_lshl_add_u32 v36, v2, 5, v36')
    A(f'v_add_u32 v36, {L_FP}, v36')
    A('v_lshrrev_b32 v37, 1, v38')
    A('v_mul_u32_u24 v37, 7168, v37')
    A('v_and_b32 v43, 1, v38')
    A('v_lshl_add_u32 v37, v43, 6, v37')
    A('v_lshl_add_u32 v37, v2, 4, v37')
    A('v_lshrrev_b32 v43, 2, v1')
    A(f'v_mul_u32_u24 v43, {4 * 7168}, v43')
    A('v_add_u32 v37, v37, v43')
    A('v_lshlrev_b32 v50, 4, v38')
    A(f'v_add_u32 v50, {L_ST}, v50')
    A(f's_lshl_b32 s{sT2}, s{sW}, 3')
    A(f's_add_u32 s{sT2}, s{sT2}, {L_ST}')
    A(f'v_mov_b32 v51, s{sT2}')
    for t in range(4):
        A(f'ds_read_b128 {v4(64 + 4 * t)}, v34 offset:{4 * 1040 + 64 * t}')
    A('s_waitcnt lgkmcnt(0)')
    for t in range(4):
        c = '0' if t == 0 else 'v[80:83]'
        A(f'v_mfma_f32_16x16x32_bf16 v[80:83], {v4(128 + 4 * t)}, {v4(64 + 4 * t)}, {c}')
    exec_set(0x00ff00ff, 0x00ff00ff)
    A('ds_write_b128 v35, v[80:83]')
    exec_all()
    A('s_waitcnt lgkmcnt(0)')
    A('s_barrier')
    A('ds_read_b128 v[176:179], v36')
    A('ds_read_b128 v[180:183], v36 offset:16')
    A('ds_read_b128 v[184:187], v36 offset:576')
    A('ds_read_b128 v[188:191], v36 offset:592')
    A(f's_lshl_b32 s{sT2}, s{sT5}, 15')
    A(f's_lshl_b32 s{sT3}, s{sT0}, 13')
    A(f's_add_u32 s{sT2}, s{sT2}, s{sT3}')
    A(f's_lshl_b32 s{sT3}, s{sT1}, 9')
    A(f's_add_u32 s{sT2}, s{sT2}, s{sT3}')
    A(f's_add_u32 s{sT2}, s{sT2}, {OPART}')
    A(f's_add_u32 s{sT3}, s{sT2}, 4096')
    A(f's_lshl_b32 s{sT0}, s{sW}, 4')
    A(f's_lshl_b32 s{sT1}, s{sT5}, 1')
    A(f's_add_u32 s{sT0}, s{sT0}, s{sT1}')
    A(f's_mul_i32 s{sT0}, s{sT0}, 7168')
    A(f's_lshl_b32 s{sT1}, s{sT4}, 7')
    A(f's_add_u32 s{sT0}, s{sT0}, s{sT1}')
    A(f's_add_u32 s{sT0}, s{sT0}, {YP}')
    A(f's_mov_b32 s{sT1}, 0xff')
    for r in range(4):
        A(f'v_lshrrev_b32 v{40 + r}, {8 * r}, s{sE}')
    A('s_waitcnt lgkmcnt(0)')
    for sh in (8, 4):
        for i in range(16):
            A(f'v_add_f32_dpp v{176 + i}, v{176 + i}, v{176 + i} row_ror:{sh} {DPPM}')

    A('v_and_b32 v57, 31, v0')
    A('v_lshlrev_b32 v57, 4, v57')
    A('v_lshrrev_b32 v58, 5, v0')
    A('v_lshl_add_u32 v57, v58, 12, v57')

    def ldo():
        for k in range(4):
            A(f'buffer_load_dwordx4 {v4(64 + 4 * k)}, v57, {srd(sWS)}, s{sT2} offen offset:{1024 * k} sc1')
    if CFG.get('h3', 2) >= 0:
        sk = lab('nohw')
        A(f's_cmp_lg_u32 s{sW}, 0')
        A(f's_cbranch_scc1 {sk}')
        A(f's_lshl_b32 s{sKB}, s{sSID}, 7')
        A(f's_add_u32 s{sKB}, s{sKB}, {F3}')
        hint_wait(sKB, sT4P)
        A(f'{sk}:')
        A('s_barrier')
    TP(1)
    poll(ldo, range(64, 80, 2), 56, sleep=CFG.get('sl_o', 0), pre_sleep=CFG.get('sl_o0', 0))
    if not CFG.get('tsloop', 0):
        TS(10)
    TP(2)
    if CFG.get('h5', 0) == 0:
        hint_pub(F4 + 64, 6, 112, sKB)
    if CFG.get('h4', 2) == 0:
        hint_pub(F4, 7, 112, sKB)
    unpack(80, 64, 16)
    n = 32
    while n > 8:
        n //= 2
        for i in range(0, n, 2):
            A(f'v_pk_add_f32 {v2(80 + i)}, {v2(80 + i)}, {v2(80 + n + i)}')
    for i in range(4):
        A(f'v_permlane32_swap_b32 v{80 + i}, v{84 + i}')
    A('v_pk_add_f32 v[80:81], v[80:81], v[84:85]')
    A('v_pk_add_f32 v[82:83], v[82:83], v[86:87]')
    for i in range(4):
        A(f'v_fma_f32 v{80 + i}, v{80 + i}, v{164 + i}, v{160 + i}')
    for i in range(4):
        A(f'v_mul_f32 v{84 + i}, v{80 + i}, v{168 + i}')
    A('v_cvt_pk_bf16_f32 v88, v84, v85')
    A('v_cvt_pk_bf16_f32 v89, v86, v87')
    A('ds_write_b64 v39, v[88:89]')
    A('v_add_f32 v52, v80, v81')
    A('v_mul_f32 v53, v80, v80')
    A('v_add_f32 v54, v82, v83')
    A('v_fmac_f32 v53, v81, v81')
    A('v_add_f32 v52, v52, v54')
    A('v_fmac_f32 v53, v82, v82')
    A('v_fmac_f32 v53, v83, v83')
    TP(3)
    A('s_waitcnt lgkmcnt(0)')
    A('s_barrier')
    TP(4)
    for t in range(4):
        A(f'ds_read_b128 {v4(64 + 4 * t)}, v34 offset:{64 * t}')
    if CFG.get('h5', 0) == 1:
        hint_pub(F4 + 64, 6, 112, sKB)
    if CFG.get('h4', 2) == 1:
        hint_pub(F4, 7, 112, sKB)
    row_reduce('v_add_f32', [52, 53])
    for t in range(4):
        A(f's_waitcnt lgkmcnt({3 - t})')
        c = '0' if t == 0 else 'v[80:83]'
        A(f'v_mfma_f32_16x16x32_bf16 v[80:83], {v4(128 + 4 * t)}, {v4(64 + 4 * t)}, {c}')
    for r in (52, 53):
        A(f'v_add_f32_dpp v{r}, v{r}, v{r} row_bcast:15 row_mask:0xa bank_mask:0xf')
    for r in (52, 53):
        A(f'v_add_f32_dpp v{r}, v{r}, v{r} row_bcast:31 row_mask:0xc bank_mask:0xf')
    exec_set(0, 0x80000000)
    A('ds_write_b64 v51, v[52:53]')
    exec_set(0x000f000f, 0x000f000f)
    A('ds_write_b128 v35, v[80:83]')
    exec_all()
    TP(5)
    A('s_waitcnt lgkmcnt(0)')
    A('s_barrier')
    TP(6)
    A('ds_read_b128 v[52:55], v50')
    A('ds_read_b128 v[64:67], v36')
    A('ds_read_b128 v[68:71], v36 offset:16')
    if CFG.get('h4', 2) == 2:
        hint_pub(F4, 7, 112, sKB)
    A('s_waitcnt lgkmcnt(2)')
    A('v_add_f32 v52, v52, v54')
    A('v_add_f32 v53, v53, v55')
    A('v_mul_f32 v52, 0x3b000000, v52')
    A('v_mul_f32 v53, 0x3b000000, v53')
    A('v_fma_f32 v53, -v52, v52, v53')
    A('v_max_f32 v53, 0, v53')
    A('v_add_f32 v53, 0x3727c5ac, v53')
    A('v_rsq_f32 v53, v53')
    A('s_waitcnt lgkmcnt(0)')
    for sh in (8, 4):
        for i in range(8):
            A(f'v_add_f32_dpp v{64 + i}, v{64 + i}, v{64 + i} row_ror:{sh} {DPPM}')
    A('v_mov_b32 v54, v53')
    A('v_mov_b32 v55, v53')
    A('v_sub_f32 v52, 0, v52')
    A('v_mov_b32 v53, v52')
    for i in range(0, 8, 2):
        A(f'v_pk_fma_f32 {v2(64 + i)}, v[52:53], {v2(176 + i)}, {v2(64 + i)}')
    for i in range(0, 8, 2):
        A(f'v_pk_fma_f32 {v2(64 + i)}, v[54:55], {v2(64 + i)}, {v2(184 + i)}')
    for i in range(4):
        A(f'v_cvt_pk_bf16_f32 v{72 + i}, v{64 + 2 * i}, v{65 + 2 * i}')
    for i in range(4):
        A(f'v_pk_max_i16 v{72 + i}, v{72 + i}, 0')
    TP(7)
    for tau in range(4):
        A(f'v_mfma_f32_16x16x32_bf16 {v4(80 + 4 * tau)}, {v4(144 + 4 * tau)}, v[72:75], 0')
    for tau in range(1, 4):
        for r in range(4):
            A(f'v_mov_b32_dpp v{80 + r}, v{80 + 4 * tau + r} quad_perm:[0,1,2,3] row_mask:0xf bank_mask:{1 << tau:#x}')
    for r in range(4):
        A(f'v_bfi_b32 v{80 + r}, s{sT1}, v{40 + r}, v{80 + r}')
    A(f'buffer_store_dwordx4 v[80:83], v37, {srd(sWS)}, s{sT0} offen sc1')
    if CFG.get('h4', 2) == 3:
        hint_pub(F4, CFG.get('h4w', 0), 112, sKB)
    TP(8)


def epilogue():
    A('L_fin:')
    if CFG['ts']:
        A('s_waitcnt lgkmcnt(0)')
        A(f's_lshl_b32 s{sT0}, s2, 9')
        A(f's_lshl_b32 s{sT1}, s{sW}, 6')
        A(f's_add_u32 s{sT0}, s{sT0}, s{sT1}')
        A(f's_add_u32 s{sT0}, s{sT0}, {TSB}')
        A('v_mov_b32 v4, 0')
        for i in range(NTS):
            A(f'v_writelane_b32 v4, s{sTS + 2 * i}, {i}')
        A(f's_memtime s[{sT2}:{sT3}]')
        A(f's_memrealtime s[{sT4}:{sT5}]')
        A('s_waitcnt lgkmcnt(0)')
        A(f'v_writelane_b32 v4, s{sT2}, 12')
        A(f'v_writelane_b32 v4, s{sT4}, 13')
        A(f'v_writelane_b32 v4, s{sT4}, 11')
        A(f'v_writelane_b32 v4, s{sEX}, 14')
        A(f's_getreg_b32 s{sT1}, hwreg(HW_REG_XCC_ID)')
        A(f'v_writelane_b32 v4, s{sT1}, 15')
        A('v_lshlrev_b32 v5, 2, v0')
        exec_set(0xffff, 0)
        A(f'buffer_store_dword v4, v5, {srd(sWS)}, s{sT0} offen')
        if CFG.get('dbg', 0):
            exec_all()
            A(f's_load_dwordx2 s[{sT0}:{sT1}], s[0:1], 96')
            A(f's_mov_b32 s{sT2}, 256')
            A(f's_mov_b32 s{sT3}, 0x00020000')
            A(f'v_subrev_u32 v4, s{sTS}, v4')
            A('s_waitcnt lgkmcnt(0)')
            for wg, wv, lanes, base in ((8, 0, (1, 2, 5, 6, 7, 9, 10), 0), (8, 2, (11,), 7), (136, 0, (2, 3, 4, 8, 10), 8), (136, 4, (2, 3, 11), 13)):
                nx = lab('dbg')
                A(f's_cmp_lg_u32 s2, {wg}')
                A(f's_cbranch_scc1 {nx}')
                A(f's_cmp_lg_u32 s{sW}, {wv}')
                A(f's_cbranch_scc1 {nx}')
                for i, ln in enumerate(lanes):
                    A(f'v_mov_b32 v5, {4 * (base + i)}')
                    exec_set(1 << ln, 0)
                    A(f'buffer_store_dword v4, v5, s[{sT0}:{sT3}], 0 offen')
                    exec_all()
                A(f'{nx}:')
        if 'diag' in CFG:
            wg, wv, idx = [int(x) for x in str(CFG['diag']).split(',')]
            exec_all()
            A(f's_cmp_lg_u32 s2, {wg}')
            A('s_cbranch_scc1 L_end')
            A(f's_cmp_lg_u32 s{sW}, {wv}')
            A('s_cbranch_scc1 L_end')
            src_ = sT4 if idx == 11 else sTS + 2 * idx
            A(f's_sub_u32 s{sT0}, s{src_}, s{sTS}')
            A(f's_lshl_b32 s{sT0}, s{sT0}, 2')
            A(f's_add_u32 s{sT0}, s{sT0}, 5000')
            A(f's_min_u32 s{sT0}, s{sT0}, 30000')
            A('L_diag:')
            A(f's_memrealtime s[{sT2}:{sT3}]')
            A('s_waitcnt lgkmcnt(0)')
            A(f's_sub_u32 s{sT2}, s{sT2}, s{sTS}')
            A(f's_cmp_lt_u32 s{sT2}, s{sT0}')
            A('s_cbranch_scc1 L_diag')
    A('L_end:')
    A('s_endpgm')


def main():
    if CFG['ts']:
        for i in range(1, NTS):
            A(f's_mov_b32 s{sTS + 2 * i}, 0')
    prologue()
    att_front()
    service_issue()
    att_stub()
    att_p1()
    service_pre()
    t1()
    t2_final()
    pv_wave()
    qk_wave()
    t3_t4()
    epilogue()
    body = A.finalize()
    ref = open(os.path.join(os.path.dirname(os.path.abspath(__file__)), '..', NAME + '.s.ref')).read()
    head = ref[:ref.index('; @launch')]
    out = head + f'; @launch grid=(256,1,1) block=(512,1,1) lds={LDS_BYTES}\n'
    if CFG['ts'] or CFG.get('lay', 0):
        out += '; @layout ' + ' '.join(f'{k}={globals()[k]}' for k in ('CS', 'MOD1', 'Q2', 'QA', 'MODL', 'STATS', 'CTX', 'OPART', 'YP', 'OP', 'TSB')) + '\n'
    out += f""".amdgcn_target "amdgcn-amd-amdhsa--gfx950"
.text
; ---------------------------------------------------------------------------------------------------------------
; Generated by gen/gen27.py (hand-written generator).  One persistent launch, 256 co-resident workgroups.
; Math: absorbed MLA (q_abs = q w_uk^T, scores = q_abs . c_kv, ctx = (P c_kv) w_uv), split-KV softmax merged with
;   exact (m, l) statistics.  Each split subtracts the max of its first key tile; a run-time check (largest exponent
;   seen > 64) re-runs the split with its exact max.  LayerNorm 2 is applied after the w1 product (linear rewrite).
; Roles: wg>>3 >= 16: attention (+ mod partials, FFN);  wg>>3 < 16: q / q_abs, merge + w_uv, w_o, output.
; Hand-offs go through d_ws: every datum carries its own validity (launch tag derived from ws[0], or a sentinel in a
;   region cleared earlier in the same launch); "hint" lines only choose when to read.  Stores are write-through
; ---------------------------------------------------------------------------------------------------------------
.globl {NAME}_kernel
.p2align 8
.type {NAME}_kernel,@function
{NAME}_kernel:
"""
    out += body
    out += 'L_code_end:\n'
    out += f""".section .rodata,"a"
.p2align 6
.amdhsa_kernel {NAME}_kernel
  .amdhsa_next_free_vgpr 256
  .amdhsa_next_free_sgpr 102
  .amdhsa_accum_offset 256
  .amdhsa_group_segment_fixed_size 0
  .amdhsa_kernarg_size 112
  .amdhsa_user_sgpr_count 2
  .amdhsa_user_sgpr_kernarg_segment_ptr 1
  .amdhsa_system_sgpr_workgroup_id_x 1
.end_amdhsa_kernel
"""
    open(sys.argv[1], 'w').write(out)


if __name__ == '__main__':
    main()
```

```python
import re

TRANS = ('v_exp_f32', 'v_log_f32', 'v_rcp_f32', 'v_rsq_f32', 'v_sqrt_f32', 'v_sin_f32', 'v_cos_f32',
         'v_rcp_iflag_f32')


def _regs(tok):
    tok = tok.strip()
    tok = tok.lstrip('-')
    m = re.match(r'^abs\((.*)\)$', tok) or re.match(r'^\|(.*)\|$', tok)
    if m:
        tok = m.group(1)
    m = re.match(r'^([vsa])(\d+)$', tok)
    if m:
        return {(m.group(1), int(m.group(2)))}
    m = re.match(r'^([vsa])\[(\d+):(\d+)\]$', tok)
    if m:
        return {(m.group(1), i) for i in range(int(m.group(2)), int(m.group(3)) + 1)}
    if tok in ('vcc', 'vcc_lo', 'vcc_hi'):
        return {('x', 'vcc')}
    if tok in ('exec', 'exec_lo', 'exec_hi'):
        return {('x', 'exec')}
    if tok == 'm0':
        return {('x', 'm0')}
    return set()


class Ins:
    __slots__ = ('text', 'op', 'ops', 'mods', 'kind', 'wr', 'rd', 'srcc', 'srcab', 'passes', 'states', 'target',
                 'dpp', 'label', 'stdata', 'lanesel', 'sdwa')

    def __init__(self, text):
        self.text = text
        self.label = None
        self.target = None
        t = text.split(';')[0].strip()
        if t.endswith(':'):
            self.label = t[:-1]
            self.op = None
            self.kind = 'label'
            self.states = 0
            self.wr = set()
            self.rd = set()
            return
        if t.startswith('.') or not t:
            self.op = None
            self.kind = 'directive'
            self.states = 0
            self.wr = set()
            self.rd = set()
            return
        parts = t.split(None, 1)
        op = parts[0]
        rest = parts[1] if len(parts) > 1 else ''
        ops = []
        cur = ''
        depth = 0
        for ch in rest:
            if ch in '[(':
                depth += 1
            if ch in '])':
                depth -= 1
            if ch == ',' and depth == 0:
                ops.append(cur.strip())
                cur = ''
            else:
                cur += ch
        mods = ''
        if cur.strip():
            last = cur.strip().split(None, 1)
            ops.append(last[0])
            mods = last[1] if len(last) > 1 else ''
        self.op, self.ops, self.mods = op, ops, mods
        self.dpp = '_dpp' in op
        self.sdwa = '_sdwa' in op
        self.srcc = set()
        self.srcab = set()
        self.passes = 0
        self.stdata = set()
        self.lanesel = set()
        self.states = 1
        R = [_regs(o) for o in ops]
        allr = set().union(*R) if R else set()
        wr, rd = set(), set()
        base = re.sub(r'_(e32|e64|dpp|sdwa)$', '', op)
        if op == 's_nop':
            self.kind = 'nop'
            self.states = int(ops[0], 0) + 1
        elif op.startswith('v_mfma'):
            self.kind = 'mfma'
            wr = R[0]
            self.srcab = R[1] | R[2]
            self.srcc = R[3]
            rd = self.srcab | self.srcc
            self.passes = 8 if '32x32x16' in op else 4
        elif op.startswith('v_'):
            self.kind = 'trans' if base in TRANS else 'valu'
            if base.startswith('v_cmp'):
                wr = R[0]
                rd = set().union(*R[1:])
            elif base.startswith('v_permlane'):
                wr = R[0] | R[1]
                rd = R[0] | R[1]
            elif base in ('v_readlane_b32', 'v_writelane_b32'):
                wr = R[0]
                rd = R[1] | R[2]
                self.lanesel = R[2]
                if base == 'v_writelane_b32':
                    rd |= R[0]
            elif base in ('v_add_co_u32', 'v_sub_co_u32', 'v_addc_co_u32', 'v_subb_co_u32', 'v_div_scale_f32',
                          'v_mad_u64_u32'):
                wr = R[0] | R[1]
                rd = set().union(*R[2:])
            else:
                wr = R[0]
                rd = set().union(*R[1:]) if len(R) > 1 else set()
                if base in ('v_fmac_f32', 'v_pk_fmac_f16', 'v_dot2c_f32_bf16') or self.dpp or self.sdwa:
                    rd |= R[0]
                if base == 'v_cndmask_b32' and len(ops) == 3:
                    rd |= {('x', 'vcc')}
        elif op.startswith('ds_'):
            self.kind = 'ds'
            if op.startswith('ds_read') or op.startswith('ds_bpermute') or op.startswith('ds_permute') \
                    or op.startswith('ds_swizzle'):
                wr = R[0]
                rd = set().union(*R[1:])
            else:
                rd = allr
        elif op.startswith('buffer_') or op.startswith('global_'):
            self.kind = 'vmem'
            islds = ' lds' in (' ' + mods) or '_lds_' in op
            if 'load' in op and not islds:
                wr = R[0]
                rd = set().union(*R[1:])
            elif 'atomic' in op:
                wr = R[0]
                rd = allr
            else:
                rd = allr
                if islds:
                    rd = rd | {('x', 'm0')}
                    self.kind = 'vmem_lds'
                if 'store' in op and ('x3' in op or 'x4' in op):
                    self.stdata = R[0] if op.startswith('buffer_') else R[1]
        elif op.startswith('s_'):
            self.kind = 'salu'
            if op in ('s_branch',) or op.startswith('s_cbranch'):
                self.kind = 'branch'
                self.target = ops[0]
            elif op in ('s_waitcnt', 's_barrier', 's_sleep', 's_setprio', 's_endpgm', 's_sethalt'):
                pass
            elif op.startswith('s_cmp') or op.startswith('s_bitcmp'):
                rd = allr
            elif op.startswith('s_load') or op.startswith('s_buffer_load') or op.startswith('s_mem') or op.startswith('s_atomic'):
                self.kind = 'smem'
                wr = R[0]
                rd = set().union(*R[1:]) if len(R) > 1 else set()
            elif op in ('s_setpc_b64',):
                rd = allr
                self.kind = 'jump'
            elif op in ('s_swappc_b64',):
                wr = R[0]
                rd = R[1]
                self.kind = 'call'
            else:
                wr = R[0]
                rd = set().union(*R[1:]) if len(R) > 1 else set()
                if 'saveexec' in op:
                    wr = wr | {('x', 'exec')}
        else:
            raise ValueError('unknown instruction: ' + text)
        self.wr, self.rd = wr, rd


def isv(rs):
    return {r for r in rs if r[0] in 'va'}


def iss(rs):
    return {r for r in rs if r[0] == 's' or r == ('x', 'vcc')}


def required(p, c):
    need = 0
    pk, ck = p.kind, c.kind
    pvalu = pk in ('valu', 'trans')
    cvalu = ck in ('valu', 'trans')
    cvmem = ck in ('vmem', 'vmem_lds')
    if pvalu:
        wv = isv(p.wr)
        ws = iss(p.wr)
        if ck == 'mfma' and wv & c.rd:
            need = max(need, 2)
        if cvalu:
            if c.dpp and wv & c.rd:
                need = max(need, 2)
            if c.op.startswith('v_permlane') and wv & c.rd:
                need = max(need, 2)
            if (c.op.startswith('v_readlane') or c.op.startswith('v_readfirstlane')) and wv & c.rd:
                need = max(need, 1)
            if ws & c.rd:
                need = max(need, 2)
            if ws & c.lanesel:
                need = max(need, 4)
            if pk == 'trans' and ck != 'trans' and wv & c.rd:
                need = max(need, 1)
            if pk == 'trans' and ck == 'trans' and wv & c.rd:
                need = max(need, 1)
            if p.sdwa and wv & (c.rd | c.wr):
                need = max(need, 1)
        if cvmem and ws & c.rd:
            need = max(need, 5)
        if ck == 'mfma' and pk == 'trans' and wv & c.rd:
            need = max(need, 2)
    if pk == 'mfma':
        d = p.wr
        big = 12 if p.passes == 8 else 8
        if ck == 'mfma':
            if d & c.srcab:
                need = max(need, big)
            if d & c.srcc:
                if not (c.srcc == d and c.passes == p.passes):
                    need = max(need, 10 if p.passes == 8 else 6)
            elif d & c.wr:
                need = max(need, big)
        elif cvalu:
            if d & (c.rd | c.wr):
                need = max(need, big)
            if p.srcc & c.wr:
                need = max(need, 7 if p.passes == 8 else 3)
        elif cvmem or ck == 'ds':
            if d & (c.rd | c.wr):
                need = max(need, big)
    if pk == 'salu' and ('x', 'm0') in p.wr and ck == 'vmem_lds':
        need = max(need, 1)
    if pk == 'vmem' and p.stdata:
        if cvalu and p.stdata & c.wr:
            need = max(need, 2)
        elif ck == 'mfma' and p.stdata & c.wr:
            need = max(need, 2)
        elif p.stdata & c.wr:
            need = max(need, 1)
    return need


MAXD = 12


class Asm:
    def __init__(self):
        self.lines = []

    def __call__(self, s):
        for l in s.split('\n'):
            l = l.strip()
            if l:
                self.lines.append(l)

    def finalize(self, calls=None):
        ins = [Ins(l) for l in self.lines]
        out = []
        srcs = {}
        for i, x in enumerate(ins):
            if x.target:
                srcs.setdefault(x.target, []).append(i)
        pads = [0] * len(ins)

        def scan(c, i, dist, seen):
            need = 0
            while i >= 0 and dist < MAXD:
                x = ins[i]
                if x.kind == 'label':
                    for s in srcs.get(x.label, []):
                        key = (s, dist)
                        if key not in seen:
                            seen.add(key)
                            need = max(need, scan(c, s, dist, seen))
                    j = i - 1
                    while j >= 0 and ins[j].kind in ('directive',):
                        j -= 1
                    if j >= 0 and ins[j].op in ('s_branch', 's_endpgm', 's_setpc_b64'):
                        return need
                    dist += pads[i]
                    i -= 1
                    continue
                if x.kind == 'directive':
                    i -= 1
                    continue
                r = required(x, c)
                if r > dist:
                    need = max(need, r - dist)
                dist += x.states + pads[i]
                i -= 1
            return need

        for i, c in enumerate(ins):
            if c.kind in ('label', 'directive', 'nop'):
                continue
            pads[i] = scan(c, i - 1, 0, set())
        for i, c in enumerate(ins):
            n = pads[i]
            while n > 0:
                k = min(n, 16)
                out.append('    s_nop %d' % (k - 1))
                n -= k
            out.append(c.text if c.kind == 'label' else '    ' + c.text)
        return '\n'.join(out) + '\n'
```

```python
import sys, os
sys.path.insert(0, os.path.dirname(os.path.abspath(__file__)))
from asmlib import Asm

NAME = 'adaLN_cond__compressed_kv_cla__dense_activation_relu__decode'

CFG = dict(
    sflag=1, slowp=1, sparse=0, depth=10, sl_qa0=0, flag_at=1, allf=1, h4=3, n0=8, npre=32, spread='6,10,4,8,4', lag3=0, npf=14, ew2=3, ft=9, stat_at=1, ot=4, wsplit=8, vf='0,0', sl_y0=0, sl_pub=0, sl_q2=0, sl_ctx=0, pq2=1, p_wm='-', p_w1='-', p_w2='-', p_wo='-',
    ts=0,
    poll_max=60000,
    nt='nt',
    ntw='nt',
)
for a_ in sys.argv[2:]:
    k_, v_ = a_.split('=')
    CFG[k_] = int(v_) if v_.lstrip('-').isdigit() else v_
NT = CFG['nt'] if CFG['nt'] != '-' else ''
NTW = CFG['ntw'] if CFG['ntw'] != '-' else ''

PFK = CFG.get('pfk', '-').replace('-', '')
PFW = CFG.get('pfw', '-').replace('-', '')
EPOCH = 0
CS = CFG.get('cs', 18)
XID = 0x1000
CLR_E = 0x8000
MODL = CLR_E
STATS = MODL + 0x8000
FLG = STATS + 0x8000
CNT = FLG + 0x4000
CLR_L = CNT + 0x800
OPART = CLR_L
F3, F4 = OPART + 0x10000, OPART + 0x14000
YP = OPART + 0x18000
CLR_E_PER = (CLR_L - CLR_E) // 128
CLR_L_PER = (YP - CLR_L) // 128
QA = 0x200000
CTX = QA + 0x8000
Q2 = QA + 0x10000
M2 = QA + 0x20000
MOD1 = QA + 0x30000
MSH = 12
OP = QA + (8 << CS)
WS_END = OP + 0x400000
DB = 0x180000
assert YP + 128 * 7168 <= DB
TSB = 0xe00000
WS_SIZE = 0xf00000

L_WUV = 0
L_W1 = 32768
L_W2 = 0
L_WO = 32768
L_WQ = 98304
MISC = 131072
L_WM = MISC
L_WML = MISC + 8192
SCR = MISC + 24576
L_XN = L_WO
L_RED1 = MISC + 16384
L_WM1 = MISC
L_SF = L_WO + 12288
L_H = L_WO + 16384
L_QL = L_WO + 20480
L_RED3 = L_WQ
L_Q = MISC
PBUF = MISC
L_LS = MISC + 8192
L_MX = MISC + 31744
L_FLAG = L_MX + 512
L_H2 = MISC + 8192
L_FP = MISC + 21504
L_ST = MISC + 26624
L_XOK = SCR + 4352
L_WT = SCR
L_CC = SCR + 2048
LDS_BYTES = 163840

sX_, sKV, sWQ, sWUK, sWUV, sWO, sW1, sW2, sC, sWM, sOUT, sWS = [4 + 4 * i for i in range(12)]


def srd(n):
    return f's[{n}:{n + 3}]'


sXC, sR, sU, sSID, sW, sE, sTLO, sTHI, sH, sCQ, sBH, sCNT = range(52, 64)
sT0, sT1, sT2, sT3, sT4, sT5 = range(64, 70)
sEX = 70
sLNK = 72
sTGT = 74
sPE, sPO = 76, 77
sTB = sWQ
ROT = CFG.get('rot', 1)
sX64, sX32 = 72, 73
sO0, sO1, sRDY = 74, 75, 78
sKB = 78
sWB = sBH
sXT = sW1
sXID, sLOC = sW1, sW1 + 1
sA0, sA1 = sW2 + 1, sW2 + 2
sM0, sM1 = sW1 + 2, sW1 + 3
sMS = sW2 + 3
sCX = sW2
sTS = 80
NTS = 11

A = Asm()
POL = {}
for nm_, s_ in (('wm', sWM), ('wq', sWQ), ('wuk', sWUK), ('wuv', sWUV), ('wo', sWO), ('w1', sW1), ('w2', sW2)):
    if 'p_' + nm_ in CFG:
        POL[s_] = CFG['p_' + nm_].replace('-', '')
_late = [0]
_lab = [0]


def lab(p='L'):
    _lab[0] += 1
    return f'{p}_{_lab[0]}'


def v4(n):
    return f'v[{n}:{n + 3}]'


def v2(n):
    return f'v[{n}:{n + 1}]'


def TF(i):
    if CFG['ts'] and CFG.get('tsfront', 0):
        A(f's_memrealtime s[{sTS + 2 * i}:{sTS + 2 * i + 1}]')


def TL(i):
    if CFG['ts'] and CFG.get('tslate', 0):
        A(f's_memrealtime s[{sTS + 2 * i}:{sTS + 2 * i + 1}]')


def TP(i):
    if CFG['ts'] and CFG.get('tsstep', -1) == 200:
        A(f's_memtime s[{sTS + 2 * i}:{sTS + 2 * i + 1}]')


def TC(i, j):
    if CFG['ts'] and CFG.get('tsstep', -1) == j:
        A(f's_memtime s[{sTS + 2 * i}:{sTS + 2 * i + 1}]')


def TS(i):
    if CFG['ts'] and not (CFG.get('tsfront', 0) and i >= 3) and not (CFG.get('tsstep', -1) >= 0 and i >= 1):
        assert i < NTS
        A(f's_mem{"" if CFG.get("tscyc", 0) else "real"}time s[{sTS + 2 * i}:{sTS + 2 * i + 1}]')


def exec_set(lo, hi):
    A(f's_mov_b32 exec_lo, {lo:#x}')
    A(f's_mov_b32 exec_hi, {hi:#x}')


def exec_all():
    A('s_mov_b64 exec, -1')


def rne1(d, s):
    A(f'v_cvt_pk_bf16_f32 v{d}, 0, v{s}')


def rne2(d0, d1, s0, s1):
    rne1(d0, s0)
    rne1(d1, s1)


def unpack(dst, src, n):
    for i in range(n):
        A(f'v_lshlrev_b32 v{dst + 2 * i}, 16, v{src + i}')
        A(f'v_and_b32 v{dst + 2 * i + 1}, 0xffff0000, v{src + i}')


DPPM = 'row_mask:0xf bank_mask:0xf'


def row_reduce(op, regs):
    for sh in (8, 4, 2, 1):
        for r in regs:
            A(f'{op}_dpp v{r}, v{r}, v{r} row_ror:{sh} {DPPM}')


def wave_sum(regs, sdst):
    row_reduce('v_add_f32', regs)
    for r in regs:
        A(f'v_add_f32_dpp v{r}, v{r}, v{r} row_bcast:15 row_mask:0xa bank_mask:0xf')
    for r in regs:
        A(f'v_add_f32_dpp v{r}, v{r}, v{r} row_bcast:31 row_mask:0xc bank_mask:0xf')
    for r, s in zip(regs, sdst):
        A(f'v_readlane_b32 s{s}, v{r}, 63')


def max_tree(regs, tmp):
    regs = list(regs)
    if len(regs) == 1:
        A(f'v_mov_b32 v{tmp}, v{regs[0]}')
        return
    if len(regs) == 2:
        A(f'v_max_u32 v{tmp}, v{regs[0]}, v{regs[1]}')
        return
    A(f'v_max3_u32 v{tmp}, v{regs[0]}, v{regs[1]}, v{regs[2]}')
    regs = regs[3:]
    while len(regs) >= 2:
        A(f'v_max3_u32 v{tmp}, v{tmp}, v{regs[0]}, v{regs[1]}')
        regs = regs[2:]
    if regs:
        A(f'v_max_u32 v{tmp}, v{tmp}, v{regs[0]}')


def poll(loads, check_regs, tmp, sleep=1, pre_sleep=0, check=None):
    top, done = lab('poll'), lab('pdone')
    A(f's_mov_b32 s{sCNT}, {CFG["poll_max"]}')
    if pre_sleep:
        A(f's_sleep {pre_sleep}')
    A(f'{top}:')
    loads()
    A('s_waitcnt vmcnt(0)')
    if check:
        check()
    else:
        max_tree(check_regs, tmp)
        A(f'v_cmp_eq_u32 vcc, -1, v{tmp}')
    A(f's_cbranch_vccz {done}')
    if sleep:
        A(f's_sleep {sleep}')
    A(f's_sub_u32 s{sCNT}, s{sCNT}, 1')
    A(f's_cbranch_scc0 {top}')
    A(f'{done}:')


def hint_pub(region, wave, vt, st):
    sk = lab('nohint')
    A(f's_cmp_lg_u32 s{sW}, {wave}')
    A(f's_cbranch_scc1 {sk}')
    A(f's_lshl_b32 s{st}, s{sSID}, 7')
    A(f's_add_u32 s{st}, s{st}, {region}')
    A(f'v_mov_b32 v{vt}, s{sE}')
    A(f'v_mov_b32 v{vt + 1}, 0')
    exec_set(1, 0)
    A(f'buffer_store_dword v{vt}, v{vt + 1}, {srd(sWS)}, s{st} offen sc1')
    exec_all()
    A(f'{sk}:')


def hint_wait(s_off, st, sleep=0):
    top, done = lab('hw'), lab('hd')
    A(f's_mov_b32 s{sCNT}, {CFG["poll_max"]}')
    A(f'{top}:')
    A(f's_load_dword s{st}, s[{sWS}:{sWS + 1}], s{s_off} glc')
    A('s_waitcnt lgkmcnt(0)')
    A(f's_cmp_eq_u32 s{st}, s{sE}')
    A(f's_cbranch_scc1 {done}')
    if sleep:
        A(f's_sleep {sleep}')
    A(f's_sub_u32 s{sCNT}, s{sCNT}, 1')
    A(f's_cbranch_scc0 {top}')
    A(f'{done}:')


def layernorm_rows(x, t, out_bf):
    A(f'v_readfirstlane_b32 s{sT0}, v{x}')
    for i in range(8):
        A(f'v_subrev_f32 v{t + i}, s{sT0}, v{x + i}')
    A(f'v_add_f32 v{t + 8}, v{t}, v{t + 1}')
    A(f'v_mul_f32 v{t + 9}, v{t}, v{t}')
    A(f'v_fmac_f32 v{t + 9}, v{t + 1}, v{t + 1}')
    for i in range(2, 8):
        A(f'v_add_f32 v{t + 8}, v{t + 8}, v{t + i}')
        A(f'v_fmac_f32 v{t + 9}, v{t + i}, v{t + i}')
    wave_sum([t + 8, t + 9], [sT1, sT2])
    inv = '0x3b000000'
    A(f'v_mov_b32 v{t}, {inv}')
    A(f'v_mul_f32 v{t + 1}, s{sT1}, v{t}')
    A(f'v_mul_f32 v{t + 2}, s{sT2}, v{t}')
    A(f'v_fma_f32 v{t + 2}, -v{t + 1}, v{t + 1}, v{t + 2}')
    A(f'v_max_f32 v{t + 2}, 0, v{t + 2}')
    A(f'v_add_f32 v{t + 1}, s{sT0}, v{t + 1}')
    rne2(t + 1, t + 2, t + 1, t + 2)
    A(f'v_add_f32 v{t + 2}, 0x3727c5ac, v{t + 2}')
    rne1(t + 2, t + 2)
    A(f'v_sqrt_f32 v{t + 2}, v{t + 2}')
    for i in range(8):
        A(f'v_sub_f32 v{x + i}, v{x + i}, v{t + 1}')
    rne1(t + 2, t + 2)
    A(f'v_rcp_f32 v{t + 2}, v{t + 2}')
    for i in range(0, 8, 2):
        rne2(x + i, x + i + 1, x + i, x + i + 1)
    for i in range(8):
        A(f'v_mul_f32 v{x + i}, v{x + i}, v{t + 2}')
    if out_bf is not None:
        for i in range(4):
            A(f'v_cvt_pk_bf16_f32 v{out_bf + i}, v{x + 2 * i}, v{x + 2 * i + 1}')
    else:
        for i in range(0, 8, 2):
            rne2(x + i, x + i + 1, x + i, x + i + 1)


def dma(voff, srd_, soff, lds_s=None, lds_imm=None, off=0, pol=None):
    if lds_s is not None:
        A(f's_mov_b32 m0, s{lds_s}')
    elif lds_imm is not None:
        A(f's_mov_b32 m0, {lds_imm}')
    if pol is None:
        pol = POL.get(srd_, NTW)
    if CFG.get('x_skip', 0) and _late[0]:
        return
    o = f' offset:{off}' if off else ''
    A(f'buffer_load_dwordx4 v{voff}, {srd(srd_)}, {soff} offen{o} {pol} lds')


VTR = 6
VR16 = 7
VWO = 192
VWOA = 5
sT4P = 79


SIZES = {sX_: 8192, sKV: 33554432, sWQ: 4194304, sWUK: 4194304, sWUV: 4194304, sWO: 4194304,
         sW1: 1835008, sW2: 1835008, sC: 8192, sWM: 3145728, sOUT: 8192, sWS: WS_SIZE}


def srd_tail(*regs):
    for s in regs:
        A(f's_mov_b32 s{s + 2}, {SIZES[s]}')
        A(f's_mov_b32 s{s + 3}, 0x00020000')


def late_ptrs(*regs):
    offs = {sWUV: 32, sWO: 40, sW1: 56, sW2: 64, sOUT: 88}
    A(f's_load_dword s{sE}, s[{sWS}:{sWS + 1}], {EPOCH}')
    for s in regs:
        A(f's_load_dwordx2 s[{s}:{s + 1}], s[0:1], {offs[s]}')
    srd_tail(*regs)


def cfrag_off():
    A('v_and_b32 v4, 7, v1')
    A('v_lshlrev_b32 v4, 10, v4')
    A('v_lshrrev_b32 v5, 3, v1')
    A('v_lshl_add_u32 v4, v5, 6, v4')
    A('v_lshl_add_u32 v4, v2, 4, v4')


def prologue():
    A('s_cmp_ge_u32 s2, 256')
    A('s_cbranch_scc1 L_end')
    TS(0)
    if CFG['ts']:
        A(f's_memtime s[{sEX}:{sEX + 1}]')
    for s, off in ((sC, 72), (sWM, 80), (sWS, 104), (sKV, 8), (sX_, 0), (sWQ, 16), (sWUK, 24)):
        A(f's_load_dwordx2 s[{s}:{s + 1}], s[0:1], {off}')
    A('v_mov_b32 v3, v0')
    A('v_lshrrev_b32 v4, 6, v0')
    A('v_and_b32 v0, 63, v0')
    A(f'v_readfirstlane_b32 s{sW}, v4')
    A('v_and_b32 v1, 15, v0')
    A('v_lshrrev_b32 v2, 4, v0')
    A(f's_and_b32 s{sXC}, s2, 7')
    A(f's_lshr_b32 s{sR}, s2, 3')
    A(f's_and_b32 s{sU}, s{sR}, 15')
    A(f's_lshl_b32 s{sSID}, s{sXC}, 4')
    A(f's_add_u32 s{sSID}, s{sSID}, s{sU}')
    A('v_lshlrev_b32 v16, 4, v3')
    srd_tail(sC, sWM, sWS, sX_)
    cfrag_off()
    A(f's_cmp_ge_u32 s{sR}, 16')
    A('s_cbranch_scc1 L_att0')
    A(f's_cmp_lg_u32 s{sW}, 0')
    A('s_cbranch_scc1 L_svc0')


def make_tag():
    A(f's_mul_i32 s{sE}, s{sE}, 0x9e3779b1')
    A(f's_add_u32 s{sE}, s{sE}, 0x7f4a7c15')
    A(f's_and_b32 s{sTLO}, s{sE}, 0xffff')
    A(f's_lshr_b32 s{sTHI}, s{sE}, 16')


def code_prefetch(vt, dst=64, t=None):
    a, b, c = t or (sT0, sT1, sT2)
    A(f's_getpc_b64 s[{a}:{b}]')
    here = lab('pc')
    A(f'{here}:')
    A(f's_sub_u32 s{a}, s{a}, {here}-{NAME}_kernel')
    A(f's_subb_u32 s{b}, s{b}, 0')
    A(f's_lshl_b32 s{c}, s{sW}, 4')
    A(f's_add_u32 s{c}, s{c}, s{sU}')
    A(f's_lshl_b32 s{c}, s{c}, 10')
    sk = lab('cpf')
    A(f's_cmp_ge_u32 s{c}, L_code_end-{NAME}_kernel')
    A(f's_cbranch_scc1 {sk}')
    A(f's_min_u32 s{c}, s{c}, L_code_end-{NAME}_kernel-1024')
    A(f'v_lshl_add_u32 v{vt}, v0, 4, s{c}')
    A(f'global_load_dword v{dst}, v{vt}, s[{a}:{b}]')
    A(f'{sk}:')


def silu_frag(src_=8, dst=24, n=4, fill=None):
    unpack(64, src_, n)
    t = 64 + 2 * n
    for i in range(2 * n):
        A(f'v_mul_f32 v{t + i}, 0xbfb8aa3b, v{64 + i}')
    for i in range(2 * n):
        A(f'v_exp_f32 v{t + i}, v{t + i}')
    if fill:
        fill()
    for i in range(2 * n):
        A(f'v_add_f32 v{t + i}, 1.0, v{t + i}')
    for i in range(2 * n):
        A(f'v_rcp_f32 v{t + i}, v{t + i}')
    for i in range(2 * n):
        A(f'v_mul_f32 v{64 + i}, v{64 + i}, v{t + i}')
    for i in range(n):
        A(f'v_cvt_pk_bf16_f32 v{dst + i}, v{64 + 2 * i}, v{65 + 2 * i}')


def tree_add(base, n, stop):
    while n > stop:
        n //= 2
        for i in range(n):
            A(f'v_add_f32 v{base + i}, v{base + i}, v{base + n + i}')


def pub_flag(w):
    sk = lab('noflg')
    A(f's_cmp_lg_u32 s{sW}, {w}')
    A(f's_cbranch_scc1 {sk}')
    A(f'v_mov_b32 v76, s{sE}')
    A(f'v_not_b32 v77, v76')
    if CFG.get('allf', 0):
        A(f's_lshl_b32 s{sT3}, s{sU}, 7')
        A(f's_lshl_b32 s{sT2}, s{sXC}, 3')
        A(f's_add_u32 s{sT3}, s{sT3}, s{sT2}')
        A('v_lshlrev_b32 v78, 11, v0')
        exec_set(0xff, 0)
    else:
        A(f's_lshl_b32 s{sT3}, s{sSID}, 7')
        A('v_lshlrev_b32 v78, 3, v0')
        exec_set(0xffff, 0)
    A(f's_add_u32 s{sT3}, s{sT3}, {FLG}')
    A(f'buffer_store_dwordx2 v[76:77], v78, {srd(sWS)}, s{sT3} offen sc1')
    exec_all()
    A(f'{sk}:')


def tagbytes(v):
    A(f'v_and_b32 v{v}, 1, v0')
    A(f'v_lshlrev_b32 v{v}, 4, v{v}')
    A(f'v_lshrrev_b32 v{v}, v{v}, s{sE}')
    A(f'v_bfe_u32 v{v + 1}, v{v}, 8, 8')
    A(f'v_and_b32 v{v}, 0xff, v{v}')


def poll8(loads, base, tg, sleep, first_issued=False, pre_sleep=0, ntg=2, n=8, first_wait=0):
    top, done = lab('poll'), lab('pdone')
    A(f's_mov_b32 s{sCNT}, {CFG["poll_max"]}')
    if pre_sleep:
        A(f's_sleep {pre_sleep}')
    if not first_issued:
        loads()
    if first_wait is not None:
        A(f's_waitcnt vmcnt({first_wait})')
    A(f'{top}:')
    for i in range(n):
        A(f'v_xor_b32 v{base + i}, v{base + i}, v{tg + (i & (ntg - 1))}')
    t = base + n
    A(f'v_or3_b32 v{t}, v{base}, v{base + 1}, v{base + 2}')
    A(f'v_or3_b32 v{t + 1}, v{base + 3}, v{base + 4}, v{base + 5}')
    for i in range(6, n, 2):
        k = t + ((i >> 1) + 1 & 1)
        A(f'v_or3_b32 v{k}, v{k}, v{base + i}, v{base + i + 1}')
    A(f'v_or_b32 v{t}, v{t}, v{t + 1}')
    A(f'v_and_b32 v{t}, 0xff, v{t}')
    A(f'v_cmp_ne_u32 vcc, 0, v{t}')
    A(f's_cbranch_vccz {done}')
    if sleep:
        A(f's_sleep {sleep}')
    loads()
    A(f's_sub_u32 s{sCNT}, s{sCNT}, 1')
    A('s_waitcnt vmcnt(0)')
    A(f's_cbranch_scc0 {top}')
    A(f'{done}:')


def tile_addr():
    A(f's_lshr_b32 s{sH}, s{sSID}, 2')
    A(f's_and_b32 s{sCQ}, s{sU}, 3')
    A('v_lshlrev_b32 v29, 13, v2')
    A(f's_and_b32 s{sT5}, s{sW}, 3')
    A(f's_lshl_b32 s{sT3}, s{sCQ}, 20')
    A(f's_lshl_b32 s{sT4}, s{sT5}, 18')
    A(f's_add_u32 s{sT3}, s{sT3}, s{sT4}')
    A(f's_lshl_b32 s{sT4}, s{sH}, 8')
    A(f's_add_u32 s{sT3}, s{sT3}, s{sT4}')
    A(f's_lshl_b32 s{sT4}, s{sT5}, 13')


def ln_x():
    unpack(96, 8, 4)
    layernorm_rows(96, 72, 84)
    A(f'ds_write_b128 v16, v[84:87] offset:{L_XN}')


def wave_if(cond, val, body, other=None):
    inv = {'lt': 'ge', 'ge': 'lt', 'eq': 'lg', 'lg': 'eq'}[cond]
    sk, dn = lab('wi'), lab('wd')
    A(f's_cmp_{inv}_u32 s{sW}, {val}')
    A(f's_cbranch_scc1 {sk}')
    body()
    if other:
        A(f's_branch {dn}')
    A(f'{sk}:')
    if other:
        other()
        A(f'{dn}:')


def xid_reg():
    A(f's_getreg_b32 s{sXID}, hwreg(HW_REG_XCC_ID)')
    A(f's_not_b32 s{sT3}, s{sE}')
    A(f's_xor_b32 s{sXID}, s{sT3}, s{sXID}')
    for r in range(4):
        A(f'v_bfe_u32 v{12 + r}, s{sE}, {8 * r}, 8')


def wm_addr():
    A('v_lshrrev_b32 v32, 3, v0')
    A('v_mul_u32_u24 v32, 6144, v32')
    A('v_add_u32 v32, v32, v95')
    A('v_xor_b32 v33, 64, v32')
    A(f's_lshl_b32 s{sT0}, s{sCQ}, 2')
    A(f's_add_u32 s{sT0}, s{sT0}, s{sT5}')
    A(f's_mul_i32 s{sA0}, s{sT0}, {32 * 6144}')
    A(f's_lshl_b32 s{sT0}, s{sH}, 7')
    A(f's_add_u32 s{sA0}, s{sA0}, s{sT0}')
    A(f's_add_u32 s{sA0}, s{sA0}, 2048')
    A(f's_lshl_b32 s{sA1}, s{sT5}, 12')
    A(f's_add_u32 s{sA1}, s{sA1}, {L_WML}')


def wm_go():
    for k in range(4):
        A(f's_add_u32 s{sT0}, s{sA0}, {8 * 6144 * k}')
        A(f's_add_u32 m0, s{sA1}, {1024 * k}')
        dma(32 + (k & 1), sWM, f's{sT0}', pol=NTW)


WMAT = CFG.get('wmat', 4)


def service_issue():
    A('L_svc0:')
    A('v_lshlrev_b32 v17, 4, v0')
    if WMAT == 3:
        A(f's_lshr_b32 s{sH}, s{sSID}, 2')
        A(f's_and_b32 s{sCQ}, s{sU}, 3')
        A(f's_and_b32 s{sT5}, s{sW}, 3')
        A('v_and_b32 v95, 1, v2')
        A('v_lshlrev_b32 v95, 1, v95')
        A('v_and_b32 v19, 7, v1')
        A('v_xor_b32 v95, v95, v19')
        A('v_lshlrev_b32 v95, 4, v95')
        wm_addr()
    A('s_waitcnt lgkmcnt(0)')
    TF(3)
    A(f's_load_dword s{sE}, s[{sWS}:{sWS + 1}], {EPOCH}')
    A(f'buffer_load_dwordx4 v[8:11], v16, {srd(sX_)}, 0 offen')
    wave_if('eq', 3, lambda: A(f'buffer_load_dwordx4 v[40:43], v17, {srd(sX_)}, 0 offen'))
    if WMAT == 3:
        A('s_barrier')
        wave_if('ge', 4, wm_go)
        TF(4)
    A('s_branch L_svc')


def service_b2():
    if WMAT == 0:
        wave_if('ge', 4, lambda: (wm_go(), TF(4), A('s_waitcnt vmcnt(4)')), lambda: A('s_waitcnt vmcnt(0)'))
    elif WMAT == 3:
        wave_if('ge', 4, lambda: A('s_waitcnt vmcnt(4)'), lambda: A('s_waitcnt vmcnt(0)'))
    else:
        A('s_waitcnt vmcnt(0)')
    TF(6)
    A('v_mov_b32 v44, v16')
    A(f's_cmp_eq_u32 s{sW}, 3')
    A(f's_cselect_b32 s{sT4}, 1, 0')
    A('L_ln:')
    unpack(96, 8, 4)
    layernorm_rows(96, 72, 84)
    A(f'ds_write_b128 v44, v[84:87] offset:{L_XN}')
    for i in range(4):
        A(f'v_mov_b32 v{8 + i}, v{40 + i}')
    A('v_lshlrev_b32 v44, 4, v0')
    A(f's_sub_u32 s{sT4}, s{sT4}, 1')
    A('s_cbranch_scc0 L_ln')
    A('s_waitcnt lgkmcnt(0)')
    make_tag()
    xid_reg()
    A(f's_cmp_lt_u32 s{sW}, 4')
    A('s_cbranch_scc1 L_svc3')
    srd_tail(sWQ)
    tile_addr()
    A('v_lshlrev_b32 v30, 1, v2')
    A('v_xor_b32 v30, v30, v1')
    A('v_lshl_add_u32 v30, v30, 4, v29')
    A('v_xor_b32 v31, 128, v30')
    TF(8)
    A('s_barrier')
    TF(9)
    for i in range(8):
        A(f's_add_u32 s{sT0}, s{sT3}, {4 * 8192 * i}')
        A(f's_add_u32 m0, s{sT4}, {L_WQ + 1024 * i}')
        dma(30 + ((i >> 1) & 1), sWQ, f's{sT0}')
    A('v_xor_b32 v30, v1, v2')
    A('v_lshl_add_u32 v30, v30, 4, v29')
    for i in range(8):
        if i & 1 == 0:
            A(f'v_xor_b32 v31, {64 * (i >> 1)}, v30')
        A(f's_add_u32 s{sT0}, s{sT3}, {4 * 8192 * i}')
        A(f's_add_u32 m0, s{sT4}, {1024 * i}')
        dma(31, sWUK, f's{sT0}')
    if WMAT == 2:
        wm_go()
    TF(5)
    A('s_branch L_svc4')
    A('L_svc3:')
    for i in range(4):
        A(f'v_mov_b32 v{68 + i}, -1')
    A(f's_mul_i32 s{sT2}, s{sSID}, {CLR_L_PER}')
    A(f's_add_u32 s{sT2}, s{sT2}, {CLR_L - 3072}')
    A(f's_lshl_b32 s{sT3}, s{sSID}, 11')
    A(f's_add_u32 s{sT3}, s{sT3}, s{sX32}')
    A(f's_add_u32 s{sT3}, s{sT3}, {CTX - 1024}')
    A(f's_cmp_eq_u32 s{sW}, 3')
    A(f's_cselect_b32 s{sT3}, s{sT2}, s{sT3}')
    A(f'v_min_u32 v30, {CLR_L_PER + 3072 - 16}, v16')
    A(f'buffer_store_dwordx4 v[68:71], v30, {srd(sWS)}, s{sT3} offen sc1')

    def xid_pub():
        A(f'v_mov_b32 v66, s{sE}')
        A(f'v_mov_b32 v67, s{sXID}')
        A(f's_lshl_b32 s{sT4}, s{sSID}, 7')
        A(f's_add_u32 s{sT4}, s{sT4}, {XID}')
        exec_set(0xffff, 0)
        A(f'buffer_store_dwordx2 v[66:67], v17, {srd(sWS)}, s{sT4} offen sc1')
        exec_all()
    wave_if('eq', 1, xid_pub)
    A(f's_and_b32 s{sT2}, s{sW}, 1')
    A(f's_lshl_b32 s{sT2}, s{sT2}, 2')
    A(f's_add_u32 s{sT2}, s{sT2}, s{sCQ}')
    A(f's_lshl_b32 s{sT2}, s{sT2}, {CS - MSH}')
    A(f's_and_b32 s{sT3}, s{sH}, 15')
    A(f's_add_u32 s{sT2}, s{sT2}, s{sT3}')
    A(f's_lshl_b32 s{sT2}, s{sT2}, {MSH}')
    A(f's_add_u32 s{sT2}, s{sT2}, {MOD1 + 1024}')
    TF(8)
    A('s_barrier')
    TF(9)
    if CFG.get('hh', 1):
        A(f's_cmp_eq_u32 s{sW}, 3')
        A('s_cbranch_scc1 L_svc4')
        hint_wait(sT2, sT3)


def service_pre():
    A('L_svc:')
    for s_, o_ in ((sWUV, 32), (sWO, 40), (sOUT, 88)):
        A(f's_load_dwordx2 s[{s_}:{s_ + 1}], s[0:1], {o_}')
    srd_tail(sWUV, sWO, sOUT, sWUK, sKV)
    tile_addr()
    A(f's_mul_i32 s{sX64}, s{sXC}, {(1 << CS) - 0x10000}')
    A(f's_mul_i32 s{sX32}, s{sXC}, {(1 << CS) - 0x8000}')
    A(f's_mov_b32 s{sPE}, 0x05040100')
    A(f's_mov_b32 s{sPO}, 0x07060302')
    A('v_lshrrev_b32 v17, 2, v1')
    A('v_and_b32 v38, 3, v1')
    A('v_lshl_add_u32 v28, v2, 3, v17')
    A('v_lshlrev_b32 v36, 8, v28')
    A('v_lshl_add_u32 v36, v38, 3, v36')
    A(f'v_lshlrev_b32 v{VWOA}, 7, v28')
    A(f'v_lshl_add_u32 v{VWOA}, v38, 3, v{VWOA}')
    A('v_bfe_u32 v28, v1, 3, 1')
    A(f'v_lshl_add_u32 v{VWOA}, v28, 5, v{VWOA}')
    A('v_and_b32 v37, 1, v2')
    A(f'v_lshl_add_u32 v{VWOA}, v37, 6, v{VWOA}')
    A('v_and_b32 v19, 7, v1')
    A('v_lshlrev_b32 v95, 1, v37')
    A('v_xor_b32 v95, v95, v19')
    A('v_lshlrev_b32 v95, 4, v95')
    A('v_lshl_add_u32 v37, v37, 2, v17')
    A(f'v_xor_b32 v37, s{sW}, v37')
    A('v_lshl_add_u32 v36, v37, 5, v36')
    A(f's_lshl_b32 s{sT2}, s{sW}, 5')
    A('v_bfe_u32 v28, v0, 2, 3')
    A('v_and_b32 v21, 3, v0')
    A('v_lshrrev_b32 v22, 5, v0')
    A('v_lshl_add_u32 v22, v21, 1, v22')
    A('v_mul_u32_u24 v20, 272, v28')
    A('v_lshl_add_u32 v20, v22, 2, v20')
    A(f'v_add_u32 v20, s{sT2}, v20')
    A('v_lshlrev_b32 v24, 10, v28')
    A('v_lshl_add_u32 v24, v22, 2, v24')
    A(f's_lshl_b32 s{sT0}, s{sCQ}, 8')
    A(f's_add_u32 s{sT0}, s{sT0}, s{sT2}')
    A(f'v_add_u32 v21, s{sT0}, v24')
    A('v_mul_u32_u24 v22, 272, v19')
    A('v_lshrrev_b32 v28, 3, v1')
    A('v_lshl_add_u32 v22, v28, 6, v22')
    A('v_lshl_add_u32 v22, v2, 4, v22')
    A('v_lshlrev_b32 v17, 3, v0')
    A('v_lshlrev_b32 v23, 6, v19')
    A('v_lshl_add_u32 v23, v2, 4, v23')
    A('v_and_b32 v26, 31, v0')
    A('v_lshlrev_b32 v26, 4, v26')
    A('v_lshrrev_b32 v28, 5, v0')
    A('v_lshl_add_u32 v39, v28, 12, v26')
    A(f'v_lshl_add_u32 v26, v28, {MSH}, v26')
    A(f'v_add_u32 v27, {2 << MSH}, v26')

    if WMAT != 3:
        wm_addr()
    A(f's_lshl_b32 s{sT0}, s{sCQ}, {CS}')
    A(f's_lshr_b32 s{sT1}, s{sW}, 1')
    A(f's_lshl_b32 s{sT1}, s{sT1}, {MSH + 2}')
    A(f's_add_u32 s{sT0}, s{sT0}, s{sT1}')
    A(f's_and_b32 s{sT1}, s{sW}, 1')
    A(f's_lshl_b32 s{sT1}, s{sT1}, 9')
    A(f's_add_u32 s{sT0}, s{sT0}, s{sT1}')
    A(f's_add_u32 s{sM0}, s{sT0}, {MOD1}')
    A(f's_add_u32 s{sM1}, s{sM0}, {4 << CS}')
    A('v_lshlrev_b32 v34, 7, v2')
    A(f's_lshl_b32 s{sLOC}, s{sH}, 9')
    A(f's_add_u32 s{sLOC}, s{sLOC}, {XID}')
    A(f's_cmp_eq_u32 s{sW}, 0')
    A('s_cbranch_scc1 L_svc4')
    service_b2()
    A('L_svc4:')

    def ld1():
        A(f'buffer_load_dwordx4 v[68:71], v26, {srd(sWS)}, s{sM1} offen sc1')
        A(f'buffer_load_dwordx4 v[76:79], v27, {srd(sWS)}, s{sM1} offen sc1')
        A(f'buffer_load_dwordx4 v[64:67], v26, {srd(sWS)}, s{sM0} offen sc1')
        A(f'buffer_load_dwordx4 v[72:75], v27, {srd(sWS)}, s{sM0} offen sc1')

    A('s_waitcnt lgkmcnt(0)')
    TF(10)
    A('s_barrier')
    TS(1)
    ld1()
    A(f'buffer_load_dwordx2 v[90:91], v34, {srd(sWS)}, s{sLOC} offen sc1')
    wave_if('ge', 4, lambda: A(f's_waitcnt vmcnt({13 + 4 * (WMAT == 2)})'))
    A('s_barrier')
    A(f'ds_read_b32 v84, v21 offset:{L_XN}')
    A(f'v_add_u32 v30, {L_WQ}, v36')
    for t in range(4):
        for eh in range(2):
            A(f'ds_read_b64_tr_b16 {v2(96 + 4 * t + 2 * eh)}, v30 offset:{t * 8192 + eh * 1024}')

    A(f's_lshl_b32 s{sT2}, s{sSID}, 12')
    A(f's_lshl_b32 s{sT3}, s{sW}, 9')
    A(f's_add_u32 s{sT2}, s{sT2}, s{sT3}')
    A(f's_add_u32 s{sT2}, s{sT2}, s{sX64}')
    A(f's_add_u32 s{sT2}, s{sT2}, {Q2}')
    A(f's_mov_b32 s{sT4}, 0xff')
    A('s_waitcnt lgkmcnt(8)')
    unpack(88, 84, 1)
    poll8(ld1, 64, 12, CFG.get('sl_h', 1), first_issued=True, ntg=4, n=16)
    TS(2)
    for r in range(8):
        A(f'v_add_f32 v{64 + (r ^ 4)}, v{64 + (r ^ 4)}, v{72 + (r ^ 4)}')
    for p in (68, 69, 64, 65):
        A(f'v_permlane32_swap_b32 v{p}, v{p + 2}')
    A('v_add_f32 v68, v68, v70')
    A('v_add_f32 v69, v69, v71')
    A('v_add_f32 v64, v64, v66')
    A('v_add_f32 v65, v65, v67')
    rne2(68, 69, 68, 69)
    rne2(64, 65, 64, 65)
    A('v_add_f32 v68, 1.0, v68')
    A('v_add_f32 v69, 1.0, v69')
    rne2(68, 69, 68, 69)
    A('v_mul_f32 v68, v68, v88')
    A('v_mul_f32 v69, v69, v89')
    rne2(68, 69, 68, 69)
    A('v_add_f32 v68, v68, v64')
    A('v_add_f32 v69, v69, v65')
    A('v_cvt_pk_bf16_f32 v68, v68, v69')
    A(f'ds_write_b32 v20, v68 offset:{L_H}')
    A('s_waitcnt lgkmcnt(0)')
    A('s_barrier')
    A(f'ds_read_b128 v[64:67], v22 offset:{L_H}')
    A(f'ds_read_b128 v[68:71], v22 offset:{L_H + 128}')
    A(f'v_xor_b32 v90, s{sE}, v90')
    A(f'v_xor_b32 v91, s{sXID}, v91')
    A('v_or_b32 v90, v90, v91')
    A('v_cmp_ne_u32 vcc, 0, v90')
    A(f's_lshl_b32 s{sT0}, s{sH}, 14')
    A(f's_add_u32 s{sT0}, s{sT0}, s{sT3}')
    A(f's_add_u32 s{sT0}, s{sT0}, s{sX64}')
    A(f's_add_u32 s{sT0}, s{sT0}, {Q2}')
    A(f's_add_u32 s{sT1}, s{sT0}, 8192')
    A('s_waitcnt lgkmcnt(1)')
    A('v_mfma_f32_16x16x32_bf16 v[112:115], v[96:99], v[64:67], 0')
    A('v_mfma_f32_16x16x32_bf16 v[116:119], v[100:103], v[64:67], 0')
    A('s_waitcnt lgkmcnt(0)')
    A('v_mfma_f32_16x16x32_bf16 v[112:115], v[104:107], v[68:71], v[112:115]')
    A('v_mfma_f32_16x16x32_bf16 v[116:119], v[108:111], v[68:71], v[116:119]')
    for r in range(4):
        A(f'v_add_f32_dpp v{112 + r}, v{116 + r}, v{112 + r} row_ror:8 {DPPM}')
    for r in range(4):
        A(f'v_bfi_b32 v{112 + r}, s{sT4}, v{12 + r}, v{112 + r}')
    exec_set(0x00ff00ff, 0x00ff00ff)
    far, dn = lab('far'), lab('dn')
    A(f's_cbranch_vccnz {far}')
    A(f'buffer_store_dwordx4 v[112:115], v23, {srd(sWS)}, s{sT2} offen')
    A(f's_branch {dn}')
    A(f'{far}:')
    A(f'buffer_store_dwordx4 v[112:115], v23, {srd(sWS)}, s{sT2} offen sc1')
    A(f'{dn}:')
    exec_all()
    TS(3)

    def uk_frag():
        A('v_lshrrev_b32 v40, 2, v1')
        A('v_lshl_add_u32 v40, v40, 3, v38')
        A('v_lshlrev_b32 v40, 8, v40')
        A(f's_lshl_b32 s{sT5}, s{sW}, 13')
        A(f'v_add_u32 v40, s{sT5}, v40')
        A('v_xor_b32 v41, v1, v2')
        A(f'v_lshlrev_b32 v30, {CS}, v19')
        A('v_lshl_add_u32 v30, v2, 4, v30')
        A(f's_lshr_b32 s{sT5}, s{sH}, 4')
        A(f's_lshl_b32 s{sT5}, s{sT5}, 14')
        A(f's_lshl_b32 s{sT2}, s{sCQ}, 12')
        A(f's_add_u32 s{sT5}, s{sT5}, s{sT2}')
        A(f's_lshl_b32 s{sT2}, s{sW}, 10')
        A(f's_add_u32 s{sT5}, s{sT5}, s{sT2}')
        A(f's_and_b32 s{sT2}, s{sH}, 15')
        A(f's_lshl_b32 s{sT2}, s{sT2}, 6')
        A(f's_add_u32 s{sT5}, s{sT5}, s{sT2}')
        A(f's_add_u32 s{sT5}, s{sT5}, {QA}')
        for t in range(4):
            A(f'v_xor_b32 v42, {4 * t}, v41')
            A('v_lshl_add_u32 v42, v42, 4, v40')
            for tau in range(2):
                A(f'ds_read_b128 {v4(128 + 16 * tau + 4 * t)}, v42 offset:{1024 * tau}')

    def wm_frag():
        A('v_lshlrev_b32 v40, 4, v0')
        A(f'ds_read_b128 v[128:131], v40 offset:{L_SF}')
        A(f'ds_read_b128 v[132:135], v40 offset:{L_SF + 1024}')
        A(f's_and_b32 s{sT5}, s{sW}, 3')
        A(f's_lshl_b32 s{sT2}, s{sT5}, 5')
        A(f'v_xor_b32 v41, s{sT2}, v{VWOA}')
        A(f'v_add_u32 v41, {L_WML}, v41')
        A(f's_lshl_b32 s{sT5}, s{sT5}, 9')
        A(f's_lshl_b32 s{sT2}, s{sSID}, 12')
        A(f's_add_u32 s{sT5}, s{sT5}, s{sT2}')
        A(f's_add_u32 s{sT5}, s{sT5}, s{sX64}')
        A(f's_add_u32 s{sT5}, s{sT5}, {M2}')
    wave_if('lt', 4, uk_frag, wm_frag)

    def ld2():
        A(f'buffer_load_dwordx4 v[64:67], v39, {srd(sWS)}, s{sT0} offen sc1')
        A(f'buffer_load_dwordx4 v[68:71], v39, {srd(sWS)}, s{sT1} offen sc1')

    def sum4():
        for r in range(4):
            A(f'v_add_f32 v{64 + r}, v{64 + r}, v{68 + r}')
        A('v_permlane32_swap_b32 v64, v66')
        A('v_permlane32_swap_b32 v65, v67')
        A('v_add_f32 v64, v64, v66')
        A('v_add_f32 v65, v65, v67')
    poll8(ld2, 64, 12, 0, pre_sleep=CFG.get('sl_q2', 1), ntg=4)
    TS(4)
    sum4()
    A('v_cvt_pk_bf16_f32 v64, v64, v65')
    A(f'ds_write_b32 v20, v64 offset:{L_QL}')
    A('s_waitcnt lgkmcnt(0)')
    A('s_barrier')
    if CFG.get('flag_at', 0) == 0:
        pub_flag(4)

    def p3():
        A(f'ds_read_b128 v[64:67], v22 offset:{L_QL}')
        A(f'ds_read_b128 v[68:71], v22 offset:{L_QL + 128}')
        A('s_waitcnt lgkmcnt(0)')
        for tau in range(2):
            A(f'v_mfma_f32_16x16x32_bf16 {v4(96 + 8 * tau)}, {v4(128 + 16 * tau)}, v[64:67], 0')
            A(f'v_mfma_f32_16x16x32_bf16 {v4(100 + 8 * tau)}, {v4(132 + 16 * tau)}, v[64:67], 0')
        for tau in range(2):
            A(f'v_mfma_f32_16x16x32_bf16 {v4(96 + 8 * tau)}, {v4(136 + 16 * tau)}, v[68:71], {v4(96 + 8 * tau)}')
            A(f'v_mfma_f32_16x16x32_bf16 {v4(100 + 8 * tau)}, {v4(140 + 16 * tau)}, v[68:71], {v4(100 + 8 * tau)}')
        for tau in range(2):
            for r in range(4):
                A(f'v_add_f32_dpp v{96 + 8 * tau + r}, v{100 + 8 * tau + r}, v{96 + 8 * tau + r} row_ror:8 {DPPM}')
        for tau in range(2):
            for i in range(2):
                A(f'v_cvt_pk_bf16_f32 v{72 + 2 * tau + i}, v{96 + 8 * tau + 2 * i}, v{97 + 8 * tau + 2 * i}')
        exec_set(0x00ff00ff, 0x00ff00ff)
        A(f'buffer_store_dwordx4 v[72:75], v30, {srd(sWS)}, s{sT5} offen sc1')
        exec_all()
        if WMAT == 4:
            A('s_barrier')
        if CFG.get('flag_at', 0) == 2:
            A('s_waitcnt vmcnt(0)')
        if CFG.get('flag_at', 0) >= 1:
            pub_flag(3)

    def modl():
        for t in range(4):
            for eh in range(2):
                A(f'ds_read_b64_tr_b16 {v2(64 + 4 * t + 2 * eh)}, v41 offset:{t * 4096 + eh * 512}')
        for t in range(4):
            A(f's_waitcnt lgkmcnt({6 - 2 * t})')
            d = 96 + 4 * (t & 1)
            A(f'v_mfma_f32_16x16x32_bf16 {v4(d)}, {v4(64 + 4 * t)}, {v4(128 + 4 * (t >> 1))}, ' + ('0' if t < 2 else v4(d)))
        for r in range(4):
            A(f'v_add_f32_dpp v{96 + r}, v{100 + r}, v{96 + r} row_ror:8 {DPPM}')
        for r in range(4):
            A(f'v_bfi_b32 v{96 + r}, s{sT4}, v{12 + r}, v{96 + r}')
        exec_set(0x00ff00ff, 0x00ff00ff)
        A(f'buffer_store_dwordx4 v[96:99], v23, {srd(sWS)}, s{sT5} offen sc1')
        exec_all()
    if WMAT == 4:
        wave_if('lt', 4, p3, lambda: (A('s_barrier'), wm_go(), A(f's_mov_b32 s{sMS}, s{sT5}')))
    else:
        wave_if('lt', 4, p3, modl)
    TS(5)
    A('v_and_b32 v30, 1, v0')
    A('v_lshlrev_b32 v30, 7, v30')
    A(f's_lshl_b32 s{sT5}, s{sXC}, 11')
    A(f's_lshl_b32 s{sT2}, s{sW}, 8')
    A(f's_add_u32 s{sT5}, s{sT5}, s{sT2}')
    A(f's_add_u32 s{sT5}, s{sT5}, {XID}')
    A('v_bfe_u32 v37, v1, 2, 1')
    A('v_lshlrev_b32 v37, 12, v37')
    A('v_lshl_add_u32 v37, v38, 5, v37')
    A('v_lshl_add_u32 v37, v2, 3, v37')
    A(f's_lshl_b32 s{sCX}, s{sH}, 13')
    A(f's_lshl_b32 s{sT2}, s{sCQ}, 10')
    A(f's_add_u32 s{sCX}, s{sCX}, s{sT2}')
    A(f's_lshl_b32 s{sT2}, s{sW}, 7')
    A(f's_add_u32 s{sCX}, s{sCX}, s{sT2}')
    A(f's_add_u32 s{sCX}, s{sCX}, s{sX32}')
    A(f's_add_u32 s{sCX}, s{sCX}, {CTX}')
    A(f's_lshl_b32 s{sT0}, s{sH}, 14')
    A(f's_lshl_b32 s{sT1}, s{sCQ}, 9')
    A(f's_add_u32 s{sT0}, s{sT0}, s{sT1}')
    A(f's_add_u32 s{sT0}, s{sT0}, s{sX64}')
    A(f's_add_u32 s{sT0}, s{sT0}, {M2}')
    A(f's_add_u32 s{sT1}, s{sT0}, 8192')
    atch = CFG.get('atch', 0)
    skip = CFG.get('skip', -1)
    if skip >= 0:
        atch = 4
    npf = CFG.get('npf', 16) - atch
    R = (npf + 7) // 8
    if npf:
        per = npf * 8 // R
        assert per * R == npf * 8
        A(f's_mul_i32 s{sT2}, s{sW}, {per}')
        A(f's_lshl_b32 s{sT3}, s{sXC}, 22')
        for i in range(R):
            A(f's_add_u32 s{sA0}, s{sT2}, {(32 - atch - npf) * 64 + i * per * 8}')
            A(f'v_add_u32 v119, s{sA0}, v0')
            if skip >= 0:
                A('v_add_u32 v115, 256, v119')
                A(f'v_cmp_le_u32 vcc, {256 * skip}, v119')
                A('v_cndmask_b32 v119, v119, v115, vcc')
            A('v_lshrrev_b32 v115, 8, v119')
            A(f'v_mul_u32_u24 v115, {ROT}, v115')
            A(f'v_add_u32 v115, s{sU}, v115')
            A('v_and_b32 v115, 15, v115')
            A('v_lshlrev_b32 v115, 18, v115')
            A(f'v_lshl_add_u32 v{118 - i}, v119, 7, v115')
    def smalls():
        A(f'buffer_load_dwordx2 v[90:91], v30, {srd(sWS)}, s{sT5} offen sc1')
        A(f'buffer_load_dwordx2 v[92:93], v37, {srd(sWS)}, s{sCX} offen sc1')

    def touch(i):
        m = (1 << per) - 1
        if per < 64:
            exec_set(m & 0xffffffff, m >> 32)
        A(f'buffer_load_dword v{118 - i}, v{118 - i}, {srd(sKV)}, s{sT3} offen {PFK}')
        if per < 64:
            exec_all()
    if WMAT == 4:
        assert R == 2
        smalls()
        wave_if('lt', 4, lambda: (touch(0), A('s_barrier')),
                lambda: (A('s_waitcnt vmcnt(2)'), A('s_barrier'), A(f's_mov_b32 s{sT5}, s{sMS}'), modl(), touch(0)))
        A('s_barrier')
        wave_if('eq', 5, ld2)
        touch(1)
        A('s_barrier')
    else:
        A('s_barrier')
        wave_if('eq', 5, ld2)
        smalls()
        for i in range(R):
            touch(i)
            A('s_barrier')
    TL(1)
    A(f's_waitcnt vmcnt({R + 1})')
    A(f'v_xor_b32 v90, s{sE}, v90')
    A(f'v_xor_b32 v91, s{sXID}, v91')
    A('v_or_b32 v90, v90, v91')
    A('v_and_b32 v91, 1, v0')
    A(f's_lshl_b32 s{sT2}, s{sW}, 3')
    A(f's_add_u32 s{sT2}, s{sT2}, {L_XOK}')
    A(f'v_lshl_add_u32 v91, v91, 2, s{sT2}')
    A('ds_write_b32 v91, v90')

    def modl_fin():
        poll8(ld2, 64, 12, 2, first_issued=True, ntg=4, first_wait=None if WMAT != 4 else 1)
        sum4()
        A(f's_lshr_b32 s{sT2}, s{sSID}, 5')
        A(f's_lshl_b32 s{sT1}, s{sT2}, 13')
        A(f's_and_b32 s{sT3}, s{sSID}, 31')
        A(f's_lshl_b32 s{sT3}, s{sT3}, 5')
        A(f's_add_u32 s{sT1}, s{sT1}, s{sT3}')
        A(f's_add_u32 s{sT1}, s{sT1}, {MODL}')
        A(f's_cmp_eq_u32 s{sT2}, 2')
        A(f's_cselect_b32 s{sT2}, 1.0, 0')
        rne2(64, 65, 64, 65)
        A(f'v_add_f32 v64, s{sT2}, v64')
        A(f'v_add_f32 v65, s{sT2}, v65')
        A('v_cvt_pk_bf16_f32 v64, v64, v65')
        A(f'buffer_store_dword v64, v24, {srd(sWS)}, s{sT1} offen sc1')
    wave_if('eq', 5, modl_fin)
    if CFG.get('wb0', 0):
        sk = lab('nowb')
        A(f's_cmp_lg_u32 s{sW}, 6')
        A(f's_cbranch_scc1 {sk}')
        A(f's_cmp_ge_u32 s{sU}, {CFG["wb0"]}')
        A(f's_cbranch_scc1 {sk}')
        A('buffer_wbl2 sc1')
        A(f'{sk}:')
    TL(2)
    if CFG.get('lt', 1):
        def t_uv():
            A('v_lshrrev_b32 v114, 3, v3')
            A('v_lshlrev_b32 v114, 13, v114')
            A('v_lshl_add_u32 v114, v19, 7, v114')
            A(f's_lshl_b32 s{sT3}, s{sU}, 18')
            A(f's_lshl_b32 s{sT4}, s{sXC}, 10')
            A(f's_add_u32 s{sT3}, s{sT3}, s{sT4}')
            A(f'buffer_load_dword v114, v114, {srd(sWUV)}, s{sT3} offen')
            A('s_barrier')

        def t_o():
            A('v_lshlrev_b32 v114, 7, v3')
            A('v_and_b32 v114, 0x7fff, v114')
            A(f's_lshl_b32 s{sT3}, s{sSID}, 15')
            A('s_barrier')
            A(f'buffer_load_dword v114, v114, {srd(sWO)}, s{sT3} offen')
        if CFG.get('ot', 0):
            wave_if('lt', 4, t_uv, lambda: A('s_barrier'))
        else:
            wave_if('lt', 4, t_uv, t_o)
            A('s_barrier')
    A(f's_lshl_b32 s{sWB}, s{sU}, 2')
    A(f's_add_u32 s{sWB}, s{sWB}, s{sW}')
    A(f's_and_b32 s{sWB}, s{sWB}, 7')
    A('v_lshrrev_b32 v17, 3, v0')
    A('v_lshlrev_b32 v17, 10, v17')
    A('v_add_u32 v17, v17, v95')
    A('v_xor_b32 v18, 64, v17')
    A(f's_lshl_b32 s{sO0}, s{sXC}, 19')
    A(f's_lshl_b32 s{sT2}, s{sWB}, 16')
    A(f's_add_u32 s{sO0}, s{sO0}, s{sT2}')
    A(f's_lshr_b32 s{sT2}, s{sU}, 1')
    A(f's_xor_b32 s{sT2}, s{sT2}, {CFG.get("nsx", 4)}')
    A(f's_lshl_b32 s{sT2}, s{sT2}, 7')
    A(f's_add_u32 s{sO0}, s{sO0}, s{sT2}')
    A(f's_lshl_b32 s{sO1}, s{sW}, 13')
    A(f's_add_u32 s{sO1}, s{sO1}, {L_WO}')
    A(f'v_add_u32 v{VWOA}, s{sO1}, v{VWOA}')


def wo_dma(idx):
    for i in idx:
        A(f's_add_u32 s{sT1}, s{sO0}, {8 * 1024 * i}')
        A(f's_add_u32 m0, s{sO1}, {1024 * i}')
        dma(17 + (i & 1), sWO, f's{sT1}')


def wuv_dma(idx, wave_s, nwaves, vt):
    per = 32 // nwaves
    A(f'v_and_b32 v{vt}, 1, v2')
    A(f'v_lshlrev_b32 v{vt}, 18, v{vt}')
    A(f'v_lshrrev_b32 v{vt + 1}, 1, v2')
    A(f'v_lshl_add_u32 v{vt}, v{vt + 1}, 17, v{vt}')
    A(f'v_lshlrev_b32 v{vt + 1}, 1, v2')
    A(f'v_xor_b32 v{vt + 1}, v{vt + 1}, v1')
    A(f'v_lshl_add_u32 v{vt}, v{vt + 1}, 4, v{vt}')
    A(f'v_xor_b32 v{vt + 1}, 128, v{vt}')
    A(f's_lshl_b32 s{sT1}, s{sCQ}, 20')
    A(f's_mul_i32 s{sT2}, s{wave_s}, {per // 2 * 8192}')
    A(f's_add_u32 s{sT1}, s{sT1}, s{sT2}')
    A(f's_lshl_b32 s{sT2}, s{sH}, 8')
    A(f's_add_u32 s{sT1}, s{sT1}, s{sT2}')
    A(f's_mul_i32 s{sT2}, s{wave_s}, {per * 1024}')
    assert L_WUV == 0
    for i in idx:
        A(f's_add_u32 s{sT3}, s{sT1}, {((i & 1) * 64 + (i >> 1)) * 8192}')
        A(f's_add_u32 s{sT4}, s{sT2}, {i * 1024}')
        dma(vt + ((i >> 1) & 1), sWUV, f's{sT3}', lds_s=sT4)


def t1():
    _late[0] = 0
    A('v_and_b32 v38, 3, v1')
    A('v_lshlrev_b32 v32, 10, v2')
    A('v_lshl_add_u32 v32, v1, 4, v32')
    A(f's_lshl_b32 s{sT0}, s{sSID}, 15')
    A(f's_lshl_b32 s{sT1}, s{sW}, 12')
    A(f's_add_u32 s{sT0}, s{sT0}, s{sT1}')
    A(f's_add_u32 s{sT0}, s{sT0}, {OP}')
    A(f's_lshl_b32 s{sT2}, s{sW}, 8')
    A(f's_add_u32 s{sT2}, s{sT2}, {L_WT}')
    A('v_and_b32 v33, 1, v1')
    A('v_lshlrev_b32 v33, 5, v33')
    A('v_lshl_add_u32 v33, v2, 3, v33')
    A(f'v_add_u32 v33, s{sT2}, v33')
    A('v_lshlrev_b32 v44, 5, v2')
    A('v_lshl_add_u32 v44, v1, 1, v44')
    A(f'v_add_u32 v44, s{sT2}, v44')
    A(f's_mul_i32 s{sT2}, s{sW}, 272')
    A(f's_add_u32 s{sT2}, s{sT2}, {L_CC}')
    A('v_lshlrev_b32 v34, 4, v1')
    A(f'v_add_u32 v34, s{sT2}, v34')
    A('v_mul_u32_u24 v35, 272, v19')
    A('v_lshl_add_u32 v35, v2, 4, v35')
    A(f'v_add_u32 v35, {L_CC}, v35')
    A('v_lshlrev_b32 v49, 3, v38')
    A(f'v_lshrrev_b32 v49, v49, s{sE}')
    for k in range(4):
        A(f'v_bfe_u32 v{8 + k}, v49, {2 * k}, 1')
        A(f'v_bfe_u32 v48, v49, {2 * k + 1}, 1')
        A(f'v_lshl_or_b32 v{8 + k}, v48, 16, v{8 + k}')
    if CFG.get('stl', 0):
        A('v_lshlrev_b32 v39, 5, v1')
        A(f's_lshl_b32 s{sT2}, s{sXC}, 12')
        A(f's_lshl_b32 s{sT3}, s{sW}, 9')
        A(f's_add_u32 s{sT2}, s{sT2}, s{sT3}')
        A(f's_and_b32 s{sT3}, s{sH}, 3')
        A(f's_lshl_b32 s{sT3}, s{sT3}, 3')
        A(f's_add_u32 s{sT2}, s{sT2}, s{sT3}')
        A(f's_add_u32 s{sT2}, s{sT2}, {STATS}')
    else:
        A('v_lshlrev_b32 v39, 8, v1')
        A(f's_lshl_b32 s{sT2}, s{sW}, 12')
        A(f's_lshl_b32 s{sT3}, s{sH}, 3')
        A(f's_add_u32 s{sT2}, s{sT2}, s{sT3}')
        A(f's_add_u32 s{sT2}, s{sT2}, {STATS}')
    A(f's_mov_b32 s{sM1}, s{sT2}')
    t2_setup()
    A('v_lshlrev_b32 v110, 2, v1')
    A(f'v_add_u32 v110, {L_XOK}, v110')
    lst = lambda: A(f'buffer_load_dwordx2 v[40:41], v39, {srd(sWS)}, s{sM1} offen sc1')

    def ldd():
        for e in range(4):
            A(f'buffer_load_dwordx4 {v4(64 + 4 * e)}, v32, {srd(sWS)}, s{sT0} offen offset:{256 * e} sc1')
    A(f's_lshl_b32 s{sM0}, s{sH}, 10')
    A(f's_lshl_b32 s{sT1}, s{sW}, 7')
    A(f's_add_u32 s{sM0}, s{sM0}, s{sT1}')
    A(f's_add_u32 s{sM0}, s{sM0}, {DB}')
    TL(3)
    wuv_dma(range(4), wave_s=sW, nwaves=8, vt=28)
    TL(4)
    A(f's_load_dword s{sT1}, s[{sWS}:{sWS + 1}], s{sM0} glc')
    A('s_waitcnt lgkmcnt(0)')
    TS(6)
    ws = CFG.get('wsplit', 4)

    def uvfrag():
        A('s_barrier')
        A('ds_read_b32 v110, v110')
        for t in range(4):
            for eh in range(2):
                A(f'ds_read_b64_tr_b16 {v2(112 + 4 * t + 2 * eh)}, v36 offset:{L_WUV + t * 8192 + eh * 1024}')
    got = lab('gotst')
    A(f's_mov_b32 s{sRDY}, 1')
    A(f's_cmp_eq_u32 s{sT1}, s{sE}')
    A(f's_cbranch_scc1 {got}')
    A(f's_mov_b32 s{sRDY}, 0')
    wo_dma(range(8))
    A('s_waitcnt vmcnt(8)')
    uvfrag()
    hint_wait(sM0, sT1, sleep=CFG.get('sl_db', 0))
    A(f'{got}:')
    TS(7)
    lst()
    ldd()

    def if_rdy(body):
        sk = lab('nr')
        A(f's_cmp_eq_u32 s{sRDY}, 0')
        A(f's_cbranch_scc1 {sk}')
        body()
        A(f'{sk}:')
    A('s_waitcnt vmcnt(4)')
    A('v_max_u32 v47, v40, v41')
    A('v_cmp_eq_u32 vcc, -1, v47')
    okst = lab('okst')
    A(f's_cbranch_vccz {okst}')
    poll(lst, [40, 41], 47, sleep=0)
    A(f'{okst}:')
    if_rdy(lambda: (wo_dma(range(ws)), uvfrag()))
    A('v_mov_b32 v42, v40')
    row_reduce('v_max_f32', [42])
    A('v_sub_f32 v40, v40, v42')
    A('v_exp_f32 v40, v40')
    A('v_mul_f32 v41, v41, v40')
    row_reduce('v_add_f32', [41])
    A('v_rcp_f32 v41, v41')
    A('v_and_b32 v47, 1, v2')
    A('v_cmp_eq_u32 vcc, 1, v47')
    A('v_mul_f32 v40, v40, v41')
    A('v_cvt_pk_bf16_f32 v42, v40, v40')
    A('v_and_b32 v43, 0xffff0000, v42')
    A('v_sub_f32 v40, v40, v43')
    A('v_cvt_pk_bf16_f32 v43, v40, v40')
    A('v_cndmask_b32 v42, v42, v43, vcc')
    A('ds_write_b16 v44, v42')
    A('s_waitcnt lgkmcnt(0)')
    A('ds_read_b64 v[52:53], v33')
    top, done, chk = lab('poll'), lab('pdone'), lab('chk')
    A(f's_mov_b32 s{sCNT}, {CFG["poll_max"]}')
    A(f's_waitcnt vmcnt({ws})')
    A(f's_cmp_lg_u32 s{sRDY}, 0')
    A(f's_cbranch_scc1 {chk}')
    A(f'{top}:')
    A('s_waitcnt vmcnt(0)')
    A(f'{chk}:')
    for i in range(16):
        A(f'v_xor_b32 v{80 + i}, v{64 + i}, v{8 + (i & 3)}')
    A('v_or3_b32 v47, v80, v81, v82')
    A('v_or3_b32 v48, v83, v84, v85')
    A('v_or3_b32 v47, v47, v86, v87')
    A('v_or3_b32 v48, v48, v88, v89')
    A('v_or3_b32 v47, v47, v90, v91')
    A('v_or3_b32 v48, v48, v92, v93')
    A('v_or3_b32 v47, v47, v94, v95')
    A('v_or_b32 v47, v47, v48')
    A('v_and_b32 v47, 0x00010001, v47')
    A('v_cmp_ne_u32 vcc, 0, v47')
    A(f's_cbranch_vccz {done}')
    ldd()
    A(f's_sub_u32 s{sCNT}, s{sCNT}, 1')
    A(f's_cbranch_scc0 {top}')
    A('s_waitcnt vmcnt(0)')
    A(f'{done}:')
    TS(8)
    for z in range(8):
        for i in range(2):
            sel = sPO if z & 1 else sPE
            A(f'v_perm_b32 v{64 + 2 * z + i}, v{80 + 8 * i + 4 + (z >> 1)}, v{80 + 8 * i + (z >> 1)}, s{sel}')
        if z & 1:
            for i in range(2):
                A(f'v_or_b32 v{64 + 2 * z + i}, 0x00010001, v{64 + 2 * z + i}')
        if z == 1:
            A('s_waitcnt lgkmcnt(0)')
        if z >= 1:
            A(f'v_mfma_f32_16x16x16_bf16 {v4(128 + 4 * (z - 1))}, v[52:53], {v2(64 + 2 * (z - 1))}, 0')
    A(f'v_mfma_f32_16x16x16_bf16 {v4(128 + 28)}, v[52:53], {v2(64 + 14)}, 0')
    for z in range(8):
        A(f'v_add_f32 v{128 + 4 * z}, v{128 + 4 * z}, v{129 + 4 * z}')
    for i in range(4):
        A(f'v_cvt_pk_bf16_f32 v{80 + i}, v{128 + 8 * i}, v{132 + 8 * i}')
    exec_set(0xffff, 0)
    A('ds_write_b128 v34, v[80:83]')
    exec_all()
    A('s_waitcnt lgkmcnt(0)')
    A('s_barrier')
    for t in range(4):
        A(f'ds_read_b128 {v4(64 + 4 * t)}, v35 offset:{64 * t}')
    for t in range(4):
        A(f's_waitcnt lgkmcnt({3 - t})')
        c = '0' if t == 0 else 'v[84:87]'
        A(f'v_mfma_f32_16x16x32_bf16 v[84:87], {v4(112 + 4 * t)}, {v4(64 + 4 * t)}, {c}')
    A('v_cmp_ne_u32 vcc, 0, v110')
    A(f's_or_b32 s{sLOC}, vcc_lo, vcc_hi')
    A('v_cvt_pk_bf16_f32 v88, v84, v85')
    A('v_cvt_pk_bf16_f32 v89, v86, v87')
    exec_set(0x00ff00ff, 0x00ff00ff)
    far, dn = lab('far'), lab('dn')
    A(f's_cmp_lg_u32 s{sLOC}, 0')
    A(f's_cbranch_scc1 {far}')
    A(f'buffer_store_dwordx2 v[88:89], v37, {srd(sWS)}, s{sCX} offen')
    A(f's_branch {dn}')
    A(f'{far}:')
    A(f'buffer_store_dwordx2 v[88:89], v37, {srd(sWS)}, s{sCX} offen sc1')
    A(f'{dn}:')
    exec_all()
    TS(9)
    if ws < 8:
        if_rdy(lambda: (wo_dma(range(ws, 8)), A('s_waitcnt vmcnt(0)')))
    A('s_waitcnt vmcnt(1)')
    for nt in range(4):
        A(f'v_xor_b32 v47, {nt * 32}, v{VWOA}')
        for t in range(2):
            for eh in range(2):
                A(f'ds_read_b64_tr_b16 {v2(VWO + 16 * t + 4 * nt + 2 * eh)}, v47 offset:{t * 4096 + eh * 512}')


def x1_from(o, x, ga, n, t):
    for i in range(0, n, 2):
        rne2(o + i, o + i + 1, o + i, o + i + 1)
    for i in range(n):
        A(f'v_mul_f32 v{o + i}, v{o + i}, v{ga + i}')
    for i in range(0, n, 2):
        rne2(o + i, o + i + 1, o + i, o + i + 1)
    for i in range(n):
        A(f'v_add_f32 v{o + i}, v{o + i}, v{x + i}')
    for i in range(0, n, 2):
        rne2(o + i, o + i + 1, o + i, o + i + 1)


def sum4_packed(dst, src, nd, t):
    n = 2 * nd
    unpack(dst, src, nd)
    unpack(t, src + nd, nd)
    for i in range(n):
        A(f'v_add_f32 v{dst + i}, v{dst + i}, v{t + i}')
    unpack(t, src + 2 * nd, nd)
    unpack(t + n, src + 3 * nd, nd)
    for i in range(n):
        A(f'v_add_f32 v{t + i}, v{t + i}, v{t + n + i}')
    for i in range(n):
        A(f'v_add_f32 v{dst + i}, v{dst + i}, v{t + i}')


def t2_setup():
    A('v_lshrrev_b32 v56, 2, v1')
    A('v_lshlrev_b32 v57, 6, v56')
    A('v_lshlrev_b32 v56, 10, v56')
    A('v_lshl_add_u32 v56, v38, 5, v56')
    A('v_lshrrev_b32 v58, 1, v2')
    A('v_lshl_add_u32 v56, v58, 7, v56')
    A('v_and_b32 v58, 1, v2')
    A('v_lshl_add_u32 v56, v58, 4, v56')
    A(f's_and_b32 s{sT5}, s{sU}, 1')
    A(f's_lshl_b32 s{sA0}, s{sXC}, 15')
    A(f's_lshr_b32 s{sT4}, s{sWB}, 1')
    A(f's_lshl_b32 s{sT4}, s{sT4}, 13')
    A(f's_add_u32 s{sA0}, s{sA0}, s{sT4}')
    A(f's_lshl_b32 s{sT4}, s{sT5}, 12')
    A(f's_add_u32 s{sA0}, s{sA0}, s{sT4}')
    A(f's_and_b32 s{sT4}, s{sWB}, 1')
    A(f's_lshl_b32 s{sT4}, s{sT4}, 9')
    A(f's_add_u32 s{sA0}, s{sA0}, s{sT4}')
    A(f's_add_u32 s{sA0}, s{sA0}, s{sX32}')
    A(f's_add_u32 s{sA0}, s{sA0}, {CTX}')
    A('v_mul_u32_u24 v58, 272, v38')
    A('v_add_u32 v57, v57, v58')
    A('v_lshl_add_u32 v57, v2, 4, v57')
    A(f's_mul_i32 s{sT4}, s{sW}, 1088')
    A(f's_add_u32 s{sT4}, s{sT4}, {L_RED3}')
    A(f'v_add_u32 v57, s{sT4}, v57')
    A('v_lshlrev_b32 v58, 3, v3')
    A('v_lshrrev_b32 v59, 5, v3')
    A('v_lshl_add_u32 v58, v59, 4, v58')
    A(f'v_add_u32 v58, {L_RED3}, v58')
    A('v_lshrrev_b32 v59, 5, v3')
    A('v_lshlrev_b32 v59, 13, v59')
    A('v_and_b32 v60, 31, v3')
    A('v_lshl_add_u32 v59, v60, 2, v59')
    A(f's_lshl_b32 s{sA1}, s{sT5}, 15')
    A(f's_lshl_b32 s{sT4}, s{sXC}, 10')
    A(f's_add_u32 s{sA1}, s{sA1}, s{sT4}')
    A(f's_lshr_b32 s{sT4}, s{sU}, 1')
    A(f's_xor_b32 s{sT4}, s{sT4}, {CFG.get("nsx", 4)}')
    A(f's_lshl_b32 s{sT4}, s{sT4}, 7')
    A(f's_add_u32 s{sA1}, s{sA1}, s{sT4}')
    A(f's_add_u32 s{sA1}, s{sA1}, {OPART}')


def t2_final():
    def ld():
        for t in range(2):
            A(f'buffer_load_dwordx4 {v4(64 + 4 * t)}, v56, {srd(sWS)}, s{sA0} offen offset:{256 * t} sc1')
    if CFG.get('h3', 2) == 0:
        hint_pub(F3, 7, 108, sT0)
    poll(ld, range(64, 72, 2), 47, sleep=0, pre_sleep=CFG.get('sl_ctx', 1))
    if CFG.get('h3', 2) == 1:
        hint_pub(F3, 7, 108, sT0)
    if CFG.get('ts2', 0):
        TS(1)
    A('s_waitcnt lgkmcnt(0)')
    for t in range(2):
        for nt in range(4):
            c = '0' if t == 0 else v4(80 + 4 * nt)
            A(f'v_mfma_f32_16x16x32_bf16 {v4(80 + 4 * nt)}, {v4(VWO + 16 * t + 4 * nt)}, {v4(64 + 4 * t)}, {c}')
    for k in range(2):
        for r in range(4):
            A(f'v_add_f32_dpp v{96 + 4 * k + r}, v{80 + 4 * k + r}, v{80 + 4 * k + r} row_ror:8 row_mask:0xf bank_mask:0x3')
    for k in range(2):
        for r in range(4):
            A(f'v_add_f32_dpp v{96 + 4 * k + r}, v{88 + 4 * k + r}, v{88 + 4 * k + r} row_ror:8 row_mask:0xf bank_mask:0xc')
    for r in range(4):
        A(f'v_add_f32_dpp v{104 + r}, v{96 + r}, v{96 + r} row_shl:4 row_mask:0xf bank_mask:0x5')
    for r in range(4):
        A(f'v_add_f32_dpp v{104 + r}, v{100 + r}, v{100 + r} row_shr:4 row_mask:0xf bank_mask:0xa')
    A('ds_write_b128 v57, v[104:107]')
    A('s_waitcnt lgkmcnt(0)')
    A('s_barrier')
    if CFG.get('h3', 2) == 2:
        hint_pub(F3, 7, 108, sT0)
    if CFG.get('wb', 0):
        sk = lab('nowb')
        A(f's_cmp_lg_u32 s{sW}, 5')
        A(f's_cbranch_scc1 {sk}')
        A(f's_cmp_ge_u32 s{sU}, {CFG["wb"]}')
        A(f's_cbranch_scc1 {sk}')
        A('buffer_wbl2 sc1')
        A(f'{sk}:')
    A(f's_cmp_ge_u32 s{sW}, 3')
    A('s_cbranch_scc1 L_fin')
    A(f's_cmp_eq_u32 s{sW}, 2')
    A('s_cbranch_scc1 L_final')
    for p in range(8):
        A(f'ds_read_b64 {v2(64 + 2 * p)}, v58 offset:{1088 * p}')
    A('s_waitcnt lgkmcnt(0)')
    tree_add(64, 16, 2)
    A('v_cvt_pk_bf16_f32 v64, v64, 0')
    A('v_and_b32 v66, 0x7fffffff, v65')
    A('v_add_u32 v66, 0x8000, v66')
    A(f's_mov_b32 s{sT0}, 0xffff')
    A(f's_brev_b32 s{sT1}, 1')
    A('v_sub_u32 v66, v66, v64 clamp')
    A(f'v_bfi_b32 v64, s{sT0}, v64, v66')
    A(f'v_bfi_b32 v64, s{sT1}, v65, v64')
    A(f'buffer_store_dword v64, v59, {srd(sWS)}, s{sA1} offen sc1')
    TS(10)
    A('s_cmp_lg_u32 s2, 0')
    A('s_cbranch_scc1 L_fin')
    A(f'v_mov_b32 v40, s{sE}')
    A('v_mov_b32 v39, 0')
    exec_set(1, 0)
    A(f'buffer_store_dword v40, v39, {srd(sWS)}, 0 offen offset:{EPOCH} sc1')
    exec_all()
    A('s_branch L_fin')
    A('L_final:')
    A(f's_lshr_b32 s{sT4}, s{sSID}, 2')
    A(f's_and_b32 s{sT5}, s{sSID}, 3')
    A('v_bfe_u32 v32, v0, 2, 1')
    A('v_and_b32 v33, 3, v0')
    A('v_lshlrev_b32 v34, 10, v32')
    A('v_lshl_add_u32 v34, v33, 3, v34')
    A(f's_lshl_b32 s{sT0}, s{sT5}, 11')
    A(f's_lshl_b32 s{sT1}, s{sT4}, 5')
    A(f's_add_u32 s{sT0}, s{sT0}, s{sT1}')
    A(f'buffer_load_dwordx2 v[40:41], v34, {srd(sX_)}, s{sT0} offen')
    A(f's_add_u32 s{sT1}, s{sT0}, {MODL}')
    A(f's_add_u32 s{sT2}, s{sT1}, {3 * 8192}')

    def ldm():
        A(f'buffer_load_dwordx2 v[42:43], v34, {srd(sWS)}, s{sT1} offen sc1')
        A(f'buffer_load_dwordx2 v[44:45], v34, {srd(sWS)}, s{sT2} offen sc1')
    poll(ldm, range(42, 46), 47)
    unpack(48, 40, 2)
    unpack(52, 42, 2)
    unpack(56, 44, 2)
    A('v_lshlrev_b32 v35, 13, v32')
    A('v_lshl_add_u32 v35, v33, 3, v35')
    A(f's_lshl_b32 s{sT1}, s{sT5}, 14')
    A(f's_lshl_b32 s{sT2}, s{sT4}, 5')
    A(f's_add_u32 s{sT1}, s{sT1}, s{sT2}')
    A(f's_add_u32 s{sT1}, s{sT1}, {OPART}')
    A(f's_add_u32 s{sT2}, s{sT1}, 4096')

    def ldo():
        for k in range(8):
            A(f'buffer_load_dwordx2 {v2(128 + 2 * k)}, v35, {srd(sWS)}, s{sT1 + (k >> 2)} offen offset:{1024 * (k & 3)} sc1')
    A(f's_min_u32 s{sT3}, s{sU}, 13')
    A(f's_lshl_b32 s{sA0}, s{sXC}, 4')
    A(f's_add_u32 s{sT3}, s{sT3}, s{sA0}')
    A(f's_lshl_b32 s{sT3}, s{sT3}, 7')
    A(f's_add_u32 s{sT3}, s{sT3}, {F4 + 64}')
    hint_wait(sT3, sA0)
    poll(ldo, range(128, 144), 47, sleep=1)
    for i in range(16):
        A(f'v_lshlrev_b32 v{144 + 2 * i}, 16, v{128 + i}')
        A(f'v_mov_b32 v{145 + 2 * i}, v{128 + i}')
    tree_add(144, 32, 4)
    for i in range(4):
        A(f'v_mov_b32 v{72 + i}, v{144 + i}')
    x1_from(72, 48, 52, 4, 76)
    A('v_lshlrev_b32 v35, 4, v0')
    A(f's_mul_i32 s{sT1}, s{sSID}, 7168')
    A(f's_add_u32 s{sT1}, s{sT1}, {YP}')
    A(f's_add_u32 s{sT2}, s{sT1}, 4096')

    def ldy():
        for i in range(7):
            s, o = (sT1, 1024 * i) if i < 4 else (sT2, 1024 * (i - 4))
            A(f'buffer_load_dwordx4 {v4(96 + 4 * i)}, v35, {srd(sWS)}, s{s} offen offset:{o} sc1')
    for r in range(4):
        A(f'v_bfe_u32 v{40 + r}, s{sE}, {8 * r}, 8')

    def chk():
        for i in range(28):
            A(f'v_xor_b32 v{96 + i}, v{96 + i}, v{40 + (i & 3)}')
        A('v_or3_b32 v47, v96, v97, v98')
        A('v_or3_b32 v46, v99, v100, v101')
        for i in range(102, 122, 4):
            A(f'v_or3_b32 v47, v47, v{i}, v{i + 1}')
            A(f'v_or3_b32 v46, v46, v{i + 2}, v{i + 3}')
        A('v_or3_b32 v47, v47, v122, v123')
        A('v_or_b32 v47, v47, v46')
        A('v_and_b32 v47, 0xff, v47')
        A('v_cmp_ne_u32 vcc, 0, v47')
    if CFG.get('h4', 2) >= 0:
        A(f's_min_u32 s{sT3}, s{sU}, 13')
        A(f's_lshl_b32 s{sT4}, s{sXC}, 4')
        A(f's_add_u32 s{sT3}, s{sT3}, s{sT4}')
        A(f's_lshl_b32 s{sT3}, s{sT3}, 7')
        A(f's_add_u32 s{sT3}, s{sT3}, {F4}')
        hint_wait(sT3, sT4)
    poll(ldy, None, 47, sleep=CFG.get('sl_y', 0), pre_sleep=CFG.get('sl_y0', 0), check=chk)
    for r in range(4):
        A(f'v_add_f32 v{96 + r}, v{96 + r}, v{100 + r}')
        A(f'v_add_f32 v{104 + r}, v{104 + r}, v{108 + r}')
        A(f'v_add_f32 v{112 + r}, v{112 + r}, v{116 + r}')
    for r in range(4):
        A(f'v_add_f32 v{96 + r}, v{96 + r}, v{104 + r}')
        A(f'v_add_f32 v{112 + r}, v{112 + r}, v{120 + r}')
    for r in range(4):
        A(f'v_add_f32 v{96 + r}, v{96 + r}, v{112 + r}')
    for r in range(4):
        A(f'v_add_f32_dpp v{96 + r}, v{96 + r}, v{96 + r} row_ror:8 {DPPM}')
    for sw in ('v_permlane16_swap_b32', 'v_permlane32_swap_b32'):
        for r in range(4):
            A(f'v_mov_b32 v{100 + r}, v{96 + r}')
        for r in range(4):
            A(f'{sw} v{100 + r}, v{96 + r}')
        for r in range(4):
            A(f'v_add_f32 v{96 + r}, v{96 + r}, v{100 + r}')
    rne2(96, 97, 96, 97)
    rne2(98, 99, 98, 99)
    for r in range(4):
        A(f'v_mul_f32 v{96 + r}, v{96 + r}, v{56 + r}')
    rne2(96, 97, 96, 97)
    rne2(98, 99, 98, 99)
    for r in range(4):
        A(f'v_add_f32 v{96 + r}, v{96 + r}, v{72 + r}')
    if 'x_add' in CFG:
        import struct
        for r in range(4):
            A(f'v_add_f32 v{96 + r}, {struct.unpack("<I", struct.pack("<f", CFG["x_add"] / 100.0))[0]:#x}, v{96 + r}')
    if 'x_one' in CFG:
        import struct
        A(f's_cmp_eq_u32 s2, 5')
        A(f's_cselect_b32 s{sT1}, {struct.unpack("<I", struct.pack("<f", CFG["x_one"] / 100.0))[0]:#x}, 0')
        A(f'v_add_f32 v96, s{sT1}, v96')
    A('v_cvt_pk_bf16_f32 v100, v96, v97')
    A('v_cvt_pk_bf16_f32 v101, v98, v99')
    exec_set(0xff, 0)
    A(f'buffer_store_dwordx2 v[100:101], v34, {srd(sOUT)}, s{sT0} offen')
    exec_all()
    TS(10)
    A('s_branch L_fin')


VQ = 64
VK = (128, 192)
VS = (8, 12)
VS2 = 56
VKA = 96
VSO, VXP, VXW, VXR = 16, 20, 112, 113
VM, VL, VPS, VPW, VMXW, VMXR = 24, 25, 26, 27, 28, 29
VO = 64
VV = (128, 160, 192, 224)
VP = (8, 16)
VDM = 48
VVA = 24
VPR = 40
VTG = 4
LOG2E = 0x3fb8aa3b
THR = 0x42800000
SIG = [0, 2, 3, 1]


SLOT = [0, 2, 1, 3, 0, 2, 1, 3]


sPASS = sLNK
VMA = 26


def fsw(key):
    return ((key & 3) << 2) | SIG[(key >> 2) & 3]


class VM_:
    def __init__(self):
        self.ops = []

    def add(self, tag):
        self.ops.append(tag)

    def after(self, tag):
        idx = max(i for i, t in enumerate(self.ops) if t == tag)
        return len(self.ops) - 1 - idx


def kv_instr(T, k, vm, set_m0=True):
    slot = SLOT[T] * 32768
    half, i = k >> 2, k & 3
    out = []
    if set_m0:
        out.append(f's_add_u32 m0, s{sT5}, {slot + half * 4096}')
    o = f' offset:{i * 1024}' if i else ''
    pol = NT if T < CFG.get('ntT', 8) else ''
    out.append(f'buffer_load_dwordx4 v{VDM + k}, {srd(sKV)}, s{sTB + T} offen{o} {pol} lds')
    vm.add(('kv', T))
    return out


def kv_dma(T, half, vm):
    for i in range(4):
        for l in kv_instr(T, 4 * half + i, vm, set_m0=(i == 0)):
            A(l)


def v_read_list(T, vset):
    slot = SLOT[T]
    base = VVA + (8 if slot >= 2 else 0)
    out = []
    for ks in range(2):
        for ct in range(4):
            for eh in range(2):
                off = (slot & 1) * 32768 + ks * 16384
                out.append(f'ds_read_b64_tr_b16 {v2(VV[vset] + 8 * ct + 4 * ks + 2 * eh)}, v{base + 2 * ct + eh} offset:{off}')
    return out


def k_read_list(T, kset):
    slot = SLOT[T]
    base = VKA + (8 if slot >= 2 else 0)
    return [f'ds_read_b128 {v4(VK[kset] + 4 * i)}, v{base + 4 * (i >> 3) + (i & 3)} offset:{(slot & 1) * 32768 + ((i >> 2) & 1) * 256}'
            for i in range(16)]


def emit(lst):
    for l in lst:
        emit(l) if isinstance(l, list) else A(l)


def interleave(main, fill, start=0):
    n = len(main) - start
    done = 0
    for i, m_ in enumerate(main):
        A(m_)
        if i >= start:
            upto = (len(fill) * (i - start + 1) + n - 1) // n
            while done < upto:
                f = fill[done]
                emit(f) if isinstance(f, list) else A(f)
                done += 1


def call(target):
    here = lab('pc')
    A(f's_getpc_b64 s[{sTGT}:{sTGT + 1}]')
    A(f'{here}:')
    A(f's_add_u32 s{sTGT}, s{sTGT}, {target}-{here}')
    A(f's_addc_u32 s{sTGT + 1}, s{sTGT + 1}, 0')
    A(f's_swappc_b64 s[{sLNK}:{sLNK + 1}], s[{sTGT}:{sTGT + 1}]')


PVM = VM_()
W2OPS = []


def att_front():
    A(f's_and_b32 s{sCQ}, s{sU}, 3')
    A(f's_lshl_b32 s{sT0}, s{sCQ}, 8')
    A('v_lshrrev_b32 v5, 2, v0')
    A('v_mul_u32_u24 v5, 6144, v5')
    A('v_and_b32 v18, 3, v0')
    A('v_lshrrev_b32 v17, 5, v0')
    A('v_lshlrev_b32 v17, 1, v17')
    A('v_xor_b32 v18, v18, v17')
    A('v_lshl_add_u32 v5, v18, 4, v5')
    A(f's_lshr_b32 s{sT2}, s{sSID}, 2')
    A(f's_lshl_b32 s{sT2}, s{sT2}, 6')
    A(f's_mul_i32 s{sT1}, s{sCQ}, {128 * 6144}')
    A(f's_add_u32 s{sT1}, s{sT1}, s{sT2}')
    A(f's_mov_b32 m0, {L_WM1}')
    for i in range(4):
        A(f'v_mov_b32 v{20 + i}, -1')
    A(f's_lshl_b32 s{sT4}, s{sXC}, {CS}')
    A(f's_lshl_b32 s{sT3}, s{sU}, 11')
    A(f's_add_u32 s{sT4}, s{sT4}, s{sT3}')
    A(f's_add_u32 s{sMS}, s{sT4}, s{sT3}')
    A(f's_add_u32 s{sMS}, s{sMS}, {MOD1}')
    A(f's_add_u32 s{sT3}, s{sT4}, {QA}')
    n3 = CLR_E_PER // 16
    A(f's_mul_i32 s{sT4}, s{sSID}, {CLR_E_PER}')
    A(f's_add_u32 s{sT4}, s{sT4}, {CLR_E}')
    A(f'v_add_u32 v17, s{sT4}, v16')
    A(f's_add_u32 s{sT4}, s{sMS}, {1024 - 16 * n3}')
    A(f'v_min_u32 v18, {n3 + 7}, v0')
    A(f'v_lshl_add_u32 v18, v18, 4, s{sT4}')
    A(f'v_cmp_lt_u32 vcc, {n3 - 1}, v0')
    A('v_cndmask_b32 v17, v17, v18, vcc')
    A('s_waitcnt lgkmcnt(0)')
    TF(3)
    A(f's_load_dword s{sE}, s[{sWS}:{sWS + 1}], {EPOCH}')
    A(f'buffer_load_dwordx4 v[40:43], v4, {srd(sC)}, s{sT0} offen')
    A(f'buffer_load_dwordx4 v[44:47], v4, {srd(sC)}, s{sT0} offen offset:128')
    for i in range(8):
        dma(5, sWM, f's{sT1}')
        if i < 7:
            A(f's_add_u32 s{sT1}, s{sT1}, {16 * 6144}')
            A(f's_add_u32 m0, m0, 1024')
    if not CFG.get('x_noclr', 0) & 1:
        A(f'buffer_store_dwordx4 v[20:23], v16, {srd(sWS)}, s{sT3} offen sc1')
        A(f'buffer_store_dwordx4 v[20:23], v16, {srd(sWS)}, s{sT3} offen offset:1024 sc1')
        A(f'buffer_store_dwordx4 v[20:23], v17, {srd(sWS)}, 0 offen sc1')
    if CFG.get('modpre', 0):
        A(f'buffer_store_dwordx4 v[20:23], v16, {srd(sWS)}, s{sMS} offen sc1')
    if WMAT == 3:
        A('s_barrier')
    TF(4)
    A('s_branch L_p1')


def att_p1():
    A('L_p1:')
    ns = 3 + CFG.get('modpre', 0) - 3 * (CFG.get('x_noclr', 0) & 1)
    A('v_lshrrev_b32 v48, 2, v1')
    A('v_lshl_add_u32 v48, v2, 3, v48')
    A('v_lshlrev_b32 v48, 6, v48')
    A('v_and_b32 v50, 3, v1')
    A('v_lshl_add_u32 v48, v50, 3, v48')
    A('v_and_b32 v50, 1, v2')
    A('v_lshl_add_u32 v48, v50, 5, v48')
    A(f'v_add_u32 v48, {L_WM1}, v48')
    A('v_xor_b32 v49, 32, v48')
    A('v_lshlrev_b32 v50, 6, v1')
    A('v_lshl_add_u32 v50, v2, 4, v50')
    A(f's_waitcnt vmcnt({8 + ns})')
    TF(6)
    silu_frag(40, 52, 8)
    A('s_waitcnt lgkmcnt(0)')
    A(f'ds_write_b128 v16, v[52:55] offset:{L_SF}')
    A(f'ds_write_b128 v16, v[56:59] offset:{L_SF + 1024}')
    make_tag()
    xid_reg()
    A(f's_mov_b32 s{sT3}, 0xff')
    A('s_waitcnt lgkmcnt(0)')
    TF(7)

    def hh_store():
        A(f'v_mov_b32 v60, s{sE}')
        exec_set(1, 0)
        A(f'buffer_store_dword v60, v16, {srd(sWS)}, s{sMS} offen offset:1024 sc1')
        exec_all()
    hh = CFG.get('hh', 1)
    nh = 0
    if hh == 4:
        hh_store()
        nh = 1
    for t in range(4):
        A(f's_waitcnt vmcnt({6 - 2 * t + ns + nh})')
        if t == 3:
            TF(5)
        if hh == 3 and t == CFG.get('hht', 3):
            hh_store()
            nh = 1
        for ct in range(2):
            for eh in range(2):
                A(f'ds_read_b64_tr_b16 {v2(64 + 8 * t + 4 * ct + 2 * eh)}, v{48 + ct} offset:{t * 2048 + eh * 256}')
    for t in range(4):
        for ct in range(2):
            A(f's_waitcnt lgkmcnt({min(15, 14 - 4 * t - 2 * ct)})')
            d = 96 + 8 * ct + 4 * (t & 1)
            A(f'v_mfma_f32_16x16x32_bf16 {v4(d)}, {v4(64 + 8 * t + 4 * ct)}, {v4(52 + 4 * (t >> 1))}, ' + ('0' if t < 2 else v4(d)))
    for r in range(4):
        A(f'v_add_f32_dpp v{112 + r}, v{100 + r}, v{96 + r} row_ror:8 row_mask:0xf bank_mask:0x3')
    for r in range(4):
        A(f'v_add_f32_dpp v{112 + r}, v{104 + r}, v{108 + r} row_ror:8 row_mask:0xf bank_mask:0xc')
    for r in range(4):
        A(f'v_bfi_b32 v{112 + r}, s{sT3}, v{12 + r}, v{112 + r}')
    TF(8)
    A(f's_waitcnt vmcnt({nh})')
    A(f'buffer_store_dwordx4 v[112:115], v50, {srd(sWS)}, s{sMS} offen sc1')
    if hh == 1:
        hh_store()
    TF(9)
    A('s_barrier')


class LG:
    def __init__(self):
        self.n = 0
        self.pos = {}
        self.done = 0

    def op(self, ins, tag=None):
        A(ins)
        self.n += 1
        if tag is not None:
            self.pos[tag] = self.n

    def need(self, tag):
        k = self.pos[tag]
        if k > self.done:
            A(f's_waitcnt lgkmcnt({min(15, self.n - k)})')
            self.done = max(k, self.n - 15)

    def all(self):
        A('s_waitcnt lgkmcnt(0)')
        self.done = self.n


QQ = 64
QK_ = 192
QSB = ((8, 12), (4, 56))
QS2 = (16, 20)
QM, QL, QMA = 24, 26, 28
QPW, QFL = 30, 31
QT = 32
QKA = 48
QG, QLA, QXW, QXR = 52, 53, 54, 55
QP = 60
QST = QQ + 4 * 23


def sm_a(hh, j):
    S, t = QSB[j & 1][hh], QT + 4 * hh
    o = [f'v_cvt_pk_bf16_f32 v{t + r}, 0, v{S + r}' for r in range(4)]
    o += [f'v_mul_f32 v{t + r}, s{sT2}, v{t + r}' for r in range(4)]
    o += [f'v_cvt_pk_bf16_f32 v{QS2[hh] + r}, 0, v{t + r}' for r in range(4)]
    return o


def sm_b(hh):
    t = QT + 4 * hh
    o = [f'v_fma_f32 v{t + r}, v{QS2[hh] + r}, s{sT3}, -v{QM + hh}' for r in range(4)]
    o += [f'v_max3_f32 v{QMA + hh}, v{QMA + hh}, v{t}, v{t + 1}', f'v_max3_f32 v{QMA + hh}, v{QMA + hh}, v{t + 2}, v{t + 3}']
    o += [f'v_exp_f32 v{t + r}, v{t + r}' for r in range(4)]
    o += [f'v_cvt_pk_bf16_f32 v{QP + 2 * hh}, v{t}, v{t + 1}', f'v_cvt_pk_bf16_f32 v{QP + 2 * hh + 1}, v{t + 2}, v{t + 3}']
    return o


def sm_l(hh):
    t = QT + 4 * hh
    return [f'v_add_f32 v{t}, v{t}, v{t + 1}', f'v_add_f32 v{t + 2}, v{t + 2}, v{t + 3}',
            f'v_add_f32 v{QL + hh}, v{QL + hh}, v{t}', f'v_add_f32 v{QL + hh}, v{QL + hh}, v{t + 2}']


def heads32(op, a, b, t):
    return [f'v_permlane16_swap_b32 v{a}, v{b}', f'{op} v{a}, v{a}, v{b}', f'v_mov_b32 v{t}, v{a}',
            f'v_permlane32_swap_b32 v{t}, v{a}', f'{op} v{a}, v{a}, v{t}']


def kread(j, t):
    return f'ds_read_b128 {v4(QK_ + 4 * t)}, v{QKA + (t & 3)} offset:{(j & 1) * 32768 + (t >> 2) * 256}'


def ffn_touch():
    def w1():
        A('v_and_b32 v40, 31, v3')
        A('v_mul_u32_u24 v40, 3584, v40')
        A('v_lshrrev_b32 v41, 5, v3')
        A('v_lshl_add_u32 v40, v41, 7, v40')
        A(f's_mul_i32 s{sT0}, s{sU}, {32 * 3584}')
        A(f's_mul_i32 s{sT4}, s{sXC}, 448')
        A(f's_add_u32 s{sT0}, s{sT0}, s{sT4}')
        A(f'buffer_load_dword v{QG}, v40, {srd(sW1)}, s{sT0} offen offset:60')

    def w2():
        A('v_subrev_u32 v40, 128, v3')
        A('v_min_u32 v40, 111, v40')
        A('v_lshlrev_b32 v40, 7, v40')
        A(f's_mul_i32 s{sT0}, s{sSID}, {112 * 128}')
        A(f'buffer_load_dword v{QG}, v40, {srd(sW2)}, s{sT0} offen')
    wave_if('lt', 2, w1, w2)


def qk_wave():
    A('L_qk:')
    late_ptrs(sW1, sW2, sWO)
    A('v_and_b32 v32, 3, v1')
    A('v_lshlrev_b32 v32, 2, v32')
    A('v_lshrrev_b32 v33, 2, v1')
    A('v_lshlrev_b32 v33, 1, v33')
    A(f'v_mov_b32 v34, {SIG[0] | SIG[1] << 2 | SIG[2] << 4 | SIG[3] << 6}')
    A('v_lshrrev_b32 v33, v33, v34')
    A('v_and_b32 v33, 3, v33')
    A('v_or_b32 v32, v32, v33')
    A('v_xor_b32 v32, v32, v2')
    A('v_lshlrev_b32 v33, 10, v1')
    A(f's_and_b32 s{sT0}, s{sW}, 1')
    A(f's_lshl_b32 s{sT0}, s{sT0}, 14')
    A(f's_lshr_b32 s{sT1}, s{sW}, 1')
    A(f's_lshl_b32 s{sT1}, s{sT1}, 16')
    A(f's_add_u32 s{sT0}, s{sT0}, s{sT1}')
    A(f'v_add_u32 v33, s{sT0}, v33')
    for tt in range(4):
        A(f'v_xor_b32 v{QKA + tt}, {4 * tt}, v32')
        A(f'v_lshl_add_u32 v{QKA + tt}, v{QKA + tt}, 4, v33')
    A(f'v_add_u32 v{QPW}, {PBUF}, v16')
    A(f'v_lshlrev_b32 v{QLA}, 4, v0')
    A(f'v_add_u32 v{QLA}, {L_Q}, v{QLA}')
    A(f'v_lshlrev_b32 v{QXR}, 4, v1')
    A(f'v_add_u32 v{QXR}, {L_MX}, v{QXR}')
    A(f'v_and_b32 v{QXW}, 31, v0')
    A(f'v_lshlrev_b32 v{QXW}, 4, v{QXW}')
    A(f's_lshl_b32 s{sT0}, s{sW}, 2')
    A(f's_add_u32 s{sT0}, s{sT0}, {L_MX}')
    A(f'v_add_u32 v{QXW}, s{sT0}, v{QXW}')
    A(f'v_mov_b32 v{QFL}, {L_FLAG}')
    A(f'v_lshlrev_b32 v{QG}, 6, v1')
    A(f'v_lshl_add_u32 v{QG}, v2, 4, v{QG}')
    A(f's_lshl_b32 s{sT0}, s{sW}, 12')
    A(f'v_add_u32 v57, s{sT0}, v{QLA}')
    A('s_waitcnt lgkmcnt(0)')
    make_tag()
    A(f's_mov_b32 s{sPASS}, 0')
    A('L_qk_start:')
    for r in (QL, QL + 1, QMA, QMA + 1, 40, 41):
        A(f'v_mov_b32 v{r}, 0')
    A(f'ds_write_b64 v{QFL}, v[40:41]')
    A('s_barrier')
    for t in range(16):
        A(kread(0, t))
    A('s_waitcnt lgkmcnt(0)')
    A('s_barrier')
    A(f's_cmp_lg_u32 s{sPASS}, 0')
    A('s_cbranch_scc1 L_noq')
    if CFG.get('slowp', 0) and not CFG.get('allf', 0):
        A(f's_and_b32 s{sT0}, s{sSID}, 0x73')
        A(f's_or_b32 s{sT0}, s{sT0}, 4')
        A(f's_lshl_b32 s{sT0}, s{sT0}, 7')
    else:
        A(f's_lshl_b32 s{sT0}, s{sSID}, 7')
    A(f's_add_u32 s{sT0}, s{sT0}, {FLG}')
    A(f's_not_b32 s{sT1}, s{sE}')
    top, foll = lab('poll'), lab('foll')
    A(f's_lshl_b32 s{sT4}, s{sXC}, {CS}')
    A(f's_add_u32 s{sT4}, s{sT4}, {QA}')
    A(f's_add_u32 s{sKB}, s{sT4}, {31 * 1024}')
    A(f's_lshl_b32 s{sT5}, s{sW}, 12')
    A(f's_add_u32 s{sT4}, s{sT4}, s{sT5}')
    A(f's_add_u32 s{sT5}, s{sT4}, 16384')
    A(f's_mov_b32 s{sCNT}, {CFG["poll_max"]}')
    A(f's_cmp_lg_u32 s{sW}, 0')
    A(f's_cbranch_scc1 {foll}')
    A(f'{top}:')
    seen = lab('seen')
    if CFG.get('allf', 0):
        A(f's_load_dwordx16 s[8:23], s[{sWS}:{sWS + 1}], s{sT0} glc')
        A('s_waitcnt lgkmcnt(0)')
        A(f's_mov_b32 s{sT2}, s{sE}')
        A(f's_mov_b32 s{sT3}, s{sT1}')
        for i in range(8):
            A(f's_xor_b64 s[{8 + 2 * i}:{9 + 2 * i}], s[{8 + 2 * i}:{9 + 2 * i}], s[{sT2}:{sT3}]')
        for i in (4, 2, 1):
            for k in range(i):
                A(f's_or_b64 s[{8 + 2 * k}:{9 + 2 * k}], s[{8 + 2 * k}:{9 + 2 * k}], s[{8 + 2 * (k + i)}:{9 + 2 * (k + i)}]')
    else:
        A(f's_load_dwordx2 s[{sT2}:{sT3}], s[{sWS}:{sWS + 1}], s{sT0} glc')
        A('s_waitcnt lgkmcnt(0)')
        A(f's_xor_b32 s{sT2}, s{sT2}, s{sE}')
        A(f's_xor_b32 s{sT3}, s{sT3}, s{sT1}')
        A(f's_or_b32 s{sT2}, s{sT2}, s{sT3}')
    A(f's_cbranch_scc0 {seen}')
    A(f's_sub_u32 s{sCNT}, s{sCNT}, 1')
    A(f's_cbranch_scc0 {top}')
    A(f'{seen}:')
    A(f'ds_write_b32 v{QFL}, v{QFL} offset:4')
    A(f'{foll}:')
    TS(3)

    def ldq(i):
        if i == 8:
            A(f'buffer_load_dwordx4 {v4(QQ + 4 * 31)}, v{QG}, {srd(sWS)}, s{sKB} offen sc1')
        else:
            A(f'buffer_load_dwordx4 {v4(QST + 4 * i)}, v{QG}, {srd(sWS)}, s{sT4 + (i >> 2)} offen offset:{1024 * (i & 3)} sc1')

    def wrq(i):
        ins = f'ds_write_b128 v57, {v4(QST + 4 * i)} offset:{(i >> 2) * 16384 + (i & 3) * 1024}'
        if i == 7:
            wave_if('lg', 3, lambda: A(ins))
        else:
            A(ins)
    A('s_barrier')
    for i in range(9):
        ldq(i)
    A('s_barrier')
    for i in range(8):
        A(f's_waitcnt vmcnt({8 - i})')
        wrq(i)
    top, done = lab('poll'), lab('pdone')
    A(f's_mov_b32 s{sCNT}, {CFG["poll_max"]}')
    A('s_waitcnt vmcnt(0)')
    A(f'{top}:')
    max_tree([QST + 4 * i for i in range(9)], 40)
    A('v_cmp_eq_u32 vcc, -1, v40')
    A(f's_cbranch_vccz {done}')
    for i in range(9):
        nx = lab('qn')
        A(f'v_cmp_eq_u32 vcc, -1, v{QST + 4 * i}')
        A(f's_cbranch_vccz {nx}')
        ldq(i)
        A(f'{nx}:')
    A('s_waitcnt vmcnt(0)')
    for i in range(8):
        wrq(i)
    A(f's_sub_u32 s{sCNT}, s{sCNT}, 1')
    A(f's_cbranch_scc0 {top}')
    A(f'{done}:')
    TS(4)
    A('s_branch L_go')
    A('L_noq:')
    A('s_barrier')
    A('s_barrier')
    for f in range(31):
        A(f'ds_write_b128 v{QLA}, {v4(QQ + 4 * f)} offset:{1024 * f}')
    A('L_go:')
    A(f's_mov_b32 s{sT2}, 0x3db504f3')
    A(f's_mov_b32 s{sT3}, {LOG2E:#x}')
    A(f's_mov_b32 s{sT1}, {THR:#x}')
    A(f's_setprio {CFG.get("prio", 1)}')
    A('s_waitcnt lgkmcnt(0)')
    A('s_barrier')
    lg = LG()
    nb = [0]

    def arrive():
        sk = lab('noarr')
        A(f's_or_b32 s{sT0}, s{sW}, s{sPASS}')
        A(f's_cbranch_scc1 {sk}')
        A(f's_lshl_b32 s{sT0}, s{sXC}, 7')
        A(f's_add_u32 s{sT0}, s{sT0}, {CNT}')
        if CFG.get('satom', 0):
            A(f's_mov_b32 s{sKB}, 1')
            A(f's_atomic_add s{sKB}, s[{sWS}:{sWS + 1}], s{sT0} glc')
        else:
            A(f'v_mov_b32 v43, 1')
            A('v_mov_b32 v40, 0')
            exec_set(1, 0)
            A(f'buffer_atomic_add v43, v40, {srd(sWS)}, s{sT0} offen sc0 sc1')
            exec_all()
        A(f'{sk}:')

    def bar(tag=None):
        lg.need(tag) if tag else lg.all()
        A('s_barrier')
        nb[0] += 1
        if nb[0] == 4 and (CFG.get('lag3', 1) or not CFG.get('split', 1)):
            arrive()
        if nb[0] == CFG.get('ot', 0):
            A('v_lshlrev_b32 v40, 7, v3')
            A(f's_lshl_b32 s{sT0}, s{sSID}, 15')
            A(f'buffer_load_dword v{QLA}, v40, {srd(sWO)}, s{sT0} offen')
        if nb[0] == CFG.get('cp2', 3):
            code_prefetch(40, QG, (sT4, sT5, sT0))
        if nb[0] == CFG.get('ft', 4):
            ffn_touch()
        if CFG.get('tsloop', 0):
            TS(4 + nb[0])
        elif nb[0] in (1, 3, 4):
            TS({1: 5, 3: 6, 4: 7}[nb[0]])

    def fill_one(f):
        if callable(f):
            f()
        else:
            A(f)

    def step(j, fill=(), pre=None, post=None, f0=0, f1=32, seq=False):
        fill = list(fill)
        fd = 0
        G = CFG.get('grp', 1)
        for n in range(32):
            hh, t = ((n >> 4, n & 15) if seq else (n & 1, n >> 1))
            if pre:
                pre(hh, t)
            S = QSB[j & 1][hh]
            A(f'v_mfma_f32_16x16x32_bf16 {v4(S)}, {v4(QK_ + 4 * t)}, {v4(QQ + 64 * hh + 4 * t)}, ' + ('0' if t == 0 else v4(S)))
            if post:
                post(hh, t)
            if n >= f0 and (n + 1) % G == 0:
                up = min(len(fill), (len(fill) * (n - f0 + 1) + (f1 - f0) - 1) // (f1 - f0))
                while fd < up:
                    fill_one(fill[fd]); fd += 1

    def pwrite(j):
        return [f'v_permlane16_swap_b32 v{QP}, v{QP + 2}', f'v_permlane16_swap_b32 v{QP + 1}, v{QP + 3}',
                lambda: lg.op(f'ds_write_b128 v{QPW}, {v4(QP)} offset:{(j & 1) * 4096}', ('p', j))]

    def mix(a, b):
        return [x for pr in zip(a, b) for x in pr]

    def softmax(j):
        return mix(sm_a(0, j), sm_a(1, j)) + mix(sm_b(0), sm_b(1)) + pwrite(j) + mix(sm_l(0), sm_l(1))

    kn = {1: 0, 2: 0, 3: 0}

    def kr(j, upto):
        while kn[j] < min(16, upto):
            lg.op(kread(j, kn[j]), ('k', j, kn[j]))
            kn[j] += 1

    LA = CFG.get('la', 6)
    qo = [16 * (n & 1) + (n >> 1) for n in range(31)]
    qn = [0]

    def qread(n):
        for _ in range(n):
            if qn[0] < 31:
                f = qo[qn[0]]
                lg.op(f'ds_read_b128 {v4(QQ + 4 * f)}, v{QLA} offset:{1024 * f}', ('q', f))
                qn[0] += 1
    qread(CFG.get('q0', 8))

    def post0(hh, t):
        if qn[0] < 31:
            qread(1)
        elif kn[1] < t + hh:
            kr(1, kn[1] + 1)
    step(0, pre=lambda hh, t: 16 * hh + t < 31 and lg.need(('q', 16 * hh + t)), post=post0)
    S0 = QSB[0]
    p2 = lab('p2')
    f = [f'v_max3_f32 v44, v{S0[0]}, v{S0[0] + 1}, v{S0[0] + 2}', f'v_max3_f32 v45, v{S0[1]}, v{S0[1] + 1}, v{S0[1] + 2}',
         f'v_max_f32 v44, v44, v{S0[0] + 3}', f'v_max_f32 v45, v45, v{S0[1] + 3}']
    sa = mix(sm_a(0, 0), sm_a(1, 0))
    for x in heads32('v_max_f32', 44, 45, 46):
        f += [sa.pop(0), sa.pop(0), x]
    f += [lambda: (kr(1, 16), lg.op(f'ds_write_b32 v{QXW}, v44', 'mw'))]
    nm = CFG.get('nm', 8)
    f += sa[:nm] + [lambda: bar('mw'),
                    lambda: lg.op(f'ds_read_b128 v[40:43], v{QXR}'), lambda: lg.op(f'ds_read_b128 v[44:47], v{QXR} offset:256', 'mx')]
    f += sa[nm:] + [lambda: None] * CFG.get('nx', 6) + [lambda: lg.need('mx')]
    for b_ in (40, 44):
        f += [f'v_max3_f32 v{b_}, v{b_}, v{b_ + 1}, v{b_ + 2}']
    for b_ in (40, 44):
        f += [f'v_max_f32 v{b_}, v{b_}, v{b_ + 3}']
    for ins in ('v_cvt_pk_bf16_f32 v{b}, 0, v{b}', 'v_mul_f32 v{b}, s%d, v{b}' % sT2, 'v_cvt_pk_bf16_f32 v{b}, 0, v{b}'):
        f += [ins.format(b=40), ins.format(b=44)]
    f += [lambda: emit([f's_cmp_lg_u32 s{sPASS}, 0', f's_cbranch_scc1 {p2}', f'v_mul_f32 v{QM}, s{sT3}, v40',
                        f'v_mul_f32 v{QM + 1}, s{sT3}, v44', f'{p2}:'])]
    f += mix(sm_b(0), sm_b(1)) + pwrite(0) + mix(sm_l(0), sm_l(1))

    def jit(j):
        return dict(pre=lambda hh, t: lg.need(('k', j, t)), post=lambda hh, t: hh and kr(j, t + 1 + LA))
    step(1, fill=f, f0=4, pre=lambda hh, t: lg.need(('k', 1, t)), post=lambda hh, t: kr(1, kn[1] + 1))
    bar()
    def lagged(j):
        kr(j, LA)
        sm = softmax(j - 1)
        pf = CFG.get('pf', 0)
        for x in sm[:pf]:
            fill_one(x)
        step(j, fill=sm[pf:], f0=CFG.get('f0', 0), f1=CFG.get('f1', 28), **jit(j))
    lagged(2)
    bar()
    if CFG.get('lag3', 1):
        lagged(3)
        bar()
        tail = softmax(3)
    else:
        for x in softmax(2):
            fill_one(x)
        if CFG.get('split', 1):
            A('v_lshrrev_b32 v44, 1, v2')
            A('v_lshlrev_b32 v44, 9, v44')
            A('v_lshl_add_u32 v44, v1, 4, v44')
            A('v_and_b32 v45, 1, v2')
            A('v_lshl_add_u32 v44, v45, 3, v44')
            A(f's_and_b32 s{sT0}, s{sW}, 1')
            A(f's_lshl_b32 s{sT0}, s{sT0}, 10')
            A(f's_lshr_b32 s{sT4}, s{sW}, 1')
            A(f's_lshl_b32 s{sT4}, s{sT4}, 8')
            A(f's_add_u32 s{sT0}, s{sT0}, s{sT4}')
            A(f's_add_u32 s{sT0}, s{sT0}, {PBUF + 4096}')
            A(f'v_add_u32 v44, s{sT0}, v44')
            for tt in range(4):
                A(f'v_and_b32 v{QKA + tt}, 0xffff, v{QKA + tt}')
        bar()
        if CFG.get('split', 1):
            def single(hh):
                for e in range(2):
                    l2 = LG()
                    for t in range(16):
                        l2.op(kread(3, t), t)
                    S = QSB[1][hh]
                    for t in range(16):
                        l2.need(t)
                        A(f'v_mfma_f32_16x16x32_bf16 {v4(S)}, {v4(QK_ + 4 * t)}, {v4(QQ + 64 * hh + 4 * t)}, ' + ('0' if t == 0 else v4(S)))
                    if e == 0:
                        for tt in range(4):
                            A(f'v_or_b32 v{QKA + tt}, 0x10000, v{QKA + tt}')
                    elif hh == 0:
                        for tt in range(4):
                            A(f'v_and_b32 v{QKA + tt}, 0xffff, v{QKA + tt}')
                    emit(sm_a(hh, 3) + sm_b(hh))
                    A(f'ds_write_b64 v44, {v2(QP + 2 * hh)} offset:{2048 * e}')
                    emit(sm_l(hh))
                    if e == 0:
                        A('s_waitcnt lgkmcnt(0)')
                        A('s_barrier')
                        if hh == 0:
                            if not CFG.get('satom', 0):
                                arrive()
                            TS(7)
            wave_if('lt', 2, lambda: single(0), lambda: single(1))
            tail = []
        else:
            kr(3, 16)
            step(3, fill=sm_a(0, 3) + sm_b(0) + sm_l(0), f0=18, f1=31, seq=True, pre=lambda hh, t: lg.need(('k', 3, t)))
            tail = sm_a(1, 3) + sm_b(1) + pwrite(3) + sm_l(1)
    for x in tail:
        fill_one(x)
    A(f'v_max_f32 v40, v{QMA}, v{QMA + 1}')
    A(f'v_cmp_lt_f32 vcc, s{sT1}, v40')
    emit(heads32('v_add_f32', QL, QL + 1, 41))
    A(f'v_subrev_u32 v42, {L_MX - L_LS}, v{QXW}')
    lg.op(f'ds_write_b32 v42, v{QL}')
    nf = lab('noflag')
    A(f's_cbranch_vccz {nf}')
    A(f's_cmp_lg_u32 s{sPASS}, 0')
    A(f's_cbranch_scc1 {nf}')
    A(f'ds_write_b32 v{QFL}, v{QFL}')
    A(f'{nf}:')
    bar()
    if CFG.get('satom', 0):
        arrive()
    A(f'ds_read_b32 v39, v{QFL}')
    A('v_and_b32 v42, -16, v42')
    A('ds_read_b128 v[44:47], v42')
    A(f's_lshl_b32 s{sT1}, s{sSID}, 8')
    A(f's_add_u32 s{sT1}, s{sT1}, {STATS}')
    A('v_lshlrev_b32 v40, 3, v0')
    A('v_and_b32 v41, 1, v2')
    A('v_cmp_eq_u32 vcc, 1, v41')
    A(f'v_cndmask_b32 v32, v{QM}, v{QM + 1}, vcc')
    A('s_setprio 0')
    A('s_waitcnt lgkmcnt(0)')
    A(f'v_readfirstlane_b32 s{sT0}, v39')
    A('v_add_f32 v44, v44, v45')
    A('v_add_f32 v46, v46, v47')
    A('v_add_f32 v33, v44, v46')

    def ring(n=0):
        sk = lab('noring')
        A(f's_or_b32 s{sT4}, s{sW}, s{sPASS}')
        A(f's_cbranch_scc1 {sk}')
        A('v_lshlrev_b32 v35, 10, v0')
        A(f'v_mov_b32 v36, s{sE}')
        A(f's_lshl_b32 s{sT5}, s{sXC}, 7')
        A(f's_add_u32 s{sT5}, s{sT5}, {DB}')
        if CFG.get('satom', 0):
            A(f's_cmp_lg_u32 s{sKB}, 14')
        else:
            A(f's_waitcnt vmcnt({n})')
            A(f'v_readfirstlane_b32 s{sT4}, v43')
            A(f's_cmp_lg_u32 s{sT4}, 14')
        A(f's_cbranch_scc1 {sk}')
        exec_set(0xffffffff, 0)
        A(f'buffer_store_dword v36, v35, {srd(sWS)}, s{sT5} offen sc1')
        exec_all()
        TS(2)
        A(f'{sk}:')
    A(f's_cmp_lg_u32 s{sT0}, 0')
    A('s_cbranch_scc1 L_qk_redo')

    def stats():
        exec_set(0xffffffff, 0)
        A(f'buffer_store_dwordx2 v[32:33], v40, {srd(sWS)}, s{sT1} offen sc1')
        exec_all()
        if not CFG.get('tsloop', 0):
            TS(8)
    wave_if('eq', 0, stats)
    if CFG.get('stat_at', 0):
        A('s_barrier')
    ring(1 + (CFG.get('ot', 0) == 4 and not CFG.get('split', 1)))
    A('s_branch L_att_post')
    A('L_qk_redo:')
    ring()
    A('s_waitcnt vmcnt(0)')
    A(f'v_lshlrev_b32 v{QLA}, 4, v0')
    A(f'v_add_u32 v{QLA}, {L_Q}, v{QLA}')
    emit(heads32('v_max_f32', QMA, QMA + 1, 41))
    A(f'ds_write_b32 v{QXW}, v{QMA}')
    A('s_waitcnt lgkmcnt(0)')
    A('s_barrier')
    A(f'ds_read_b128 v[40:43], v{QXR}')
    A(f'ds_read_b128 v[44:47], v{QXR} offset:256')
    A('s_waitcnt lgkmcnt(0)')
    for hh in range(2):
        b_ = 40 + 4 * hh
        A(f'v_max3_f32 v{b_}, v{b_}, v{b_ + 1}, v{b_ + 2}')
        A(f'v_max_f32 v{b_}, v{b_}, v{b_ + 3}')
        A(f'v_add_f32 v{QM + hh}, v{QM + hh}, v{b_}')
    A(f's_mov_b32 s{sPASS}, 1')
    A('s_branch L_qk_start')


def att_stub():
    A('L_att0:')
    A(f's_cmp_ge_u32 s{sW}, 4')
    A('s_cbranch_scc0 L_atq')
    if CFG.get('qpf', 32) and CFG.get('qpfb', 1):
        A('s_barrier')
    if CFG.get('kvb', 1):
        A('s_barrier')
    A('s_branch L_pv')
    A('L_atq:')
    code_prefetch(32)
    if CFG.get('ukpf', 1):
        srd_tail(sWUK)
        if CFG.get('bal', 1):
            A('v_lshrrev_b32 v33, 3, v3')
            A('v_lshlrev_b32 v33, 13, v33')
            A('v_and_b32 v34, 7, v0')
            A('v_lshl_add_u32 v33, v34, 7, v33')
            A(f's_lshl_b32 s{sT3}, s{sU}, 18')
            A(f's_lshl_b32 s{sT4}, s{sXC}, 10')
            A(f's_add_u32 s{sT3}, s{sT3}, s{sT4}')
        else:
            tile_addr()
            A('v_lshrrev_b32 v33, 1, v0')
            A('v_lshlrev_b32 v33, 13, v33')
            A('v_and_b32 v34, 1, v0')
            A('v_lshl_add_u32 v33, v34, 7, v33')
    qpf = CFG.get('qpf', 32)
    if qpf:
        srd_tail(sWQ)
        m = ((1 << 64) - 1) ^ ((1 << (64 - 2 * qpf)) - 1)
        exec_set(m & 0xffffffff, m >> 32)
    A('s_waitcnt lgkmcnt(0)')
    if qpf:
        A(f'buffer_load_dword v69, v33, {srd(sWQ)}, s{sT3} offen {PFW}')
        exec_all()
        if CFG.get('qpfb', 1):
            A('s_barrier')
    if CFG.get('ukpf', 1):
        m = ((1 << 64) - 1) ^ ((1 << (8 * 0)) - 1)
        exec_set(m & 0xffffffff, m >> 32)
        A(f'buffer_load_dword v68, v33, {srd(sWUK)}, s{sT3} offen {PFW}')
        exec_all()
    if CFG.get('awarm', 1):
        A(f's_lshl_b32 s{sT2}, s{sU}, 12')
        A(f's_lshl_b32 s{sT1}, s{sXC}, {CS}')
        A(f's_add_u32 s{sT2}, s{sT2}, s{sT1}')
        A(f's_add_u32 s{sT2}, s{sT2}, {Q2}')
        A(f'buffer_load_dword v70, v16, {srd(sWS)}, s{sT2} offen sc1')
    if CFG.get('kvb', 1):
        A('s_barrier')
    A('s_branch L_qk')


def pv_wave():
    vm = PVM
    A('L_pv:')
    srd_tail(sKV)
    A(f's_lshl_b32 s{sKB}, s{sU}, 18')
    A(f's_lshl_b32 s{sT0}, s{sXC}, 22')
    for T in range(8):
        A(f's_add_u32 s{sTB + T}, s{sKB}, {T * (ROT * 262144 + 32768)}')
        A(f's_and_b32 s{sTB + T}, s{sTB + T}, 0x3fffff')
        A(f's_or_b32 s{sTB + T}, s{sTB + T}, s{sT0}')
    A(f's_and_b32 s{sT4P}, s{sW}, 3')
    A(f's_lshl_b32 s{sT5}, s{sT4P}, 13')
    A(f's_and_b32 s{sT0}, s{sT4P}, 1')
    A(f's_cmp_eq_u32 s{sT0}, 1')
    for i in range(8):
        A(f's_cselect_b32 s{sT1}, {fsw(8 + i)}, {fsw(i)}')
        A(f'v_xor_b32 v{VDM + i}, s{sT1}, v0')
        A(f'v_lshlrev_b32 v{VDM + i}, 4, v{VDM + i}')
        A(f'v_add_u32 v{VDM + i}, s{sT5}, v{VDM + i}')
        if i >= 4:
            A(f'v_add_u32 v{VDM + i}, 4096, v{VDM + i}')
    A('s_waitcnt lgkmcnt(0)')
    late_ptrs(sW1, sW2)
    A(f's_mov_b32 s{sPASS}, 0')
    A('L_pv_start:')
    n0 = CFG.get('n0', 4)
    for i in range(n0):
        emit(kv_instr(i >> 3, i & 7, PVM, set_m0=(i & 3) == 0))
    for i in range(64):
        A(f'v_mov_b32 v{VO + i}, 0')
    A(f's_cmp_lg_u32 s{sPASS}, 0')
    A('s_cbranch_scc1 L_pv_again')
    A('v_lshrrev_b32 v42, 2, v1')
    A('v_and_b32 v43, 3, v1')
    A('v_and_b32 v44, 1, v2')
    A('v_lshrrev_b32 v45, 1, v2')
    A('v_lshl_add_u32 v46, v45, 3, v42')
    A('v_lshlrev_b32 v46, 10, v46')
    A('v_and_b32 v47, 1, v43')
    A('v_lshl_add_u32 v46, v47, 3, v46')
    A(f's_lshl_b32 s{sT0}, s{sT4P}, 8')
    A(f'v_add_u32 v46, s{sT0}, v46')
    A('v_lshrrev_b32 v47, 1, v43')
    A('v_lshl_add_u32 v47, v44, 1, v47')
    A('v_lshl_add_u32 v47, v42, 2, v47')
    A('v_cmp_eq_u32 vcc, 1, v45')
    for eh in range(2):
        A(f'v_mov_b32 v56, {SIG[eh]}')
        A(f'v_mov_b32 v57, {SIG[2 + eh]}')
        A('v_cndmask_b32 v56, v56, v57, vcc')
        A('v_xor_b32 v56, v56, v47')
        for ct in range(4):
            d = VVA + 2 * ct + eh
            A(f'v_xor_b32 v{d}, {4 * ct}, v56')
            A(f'v_lshl_add_u32 v{d}, v{d}, 4, v46')
            if eh:
                A(f'v_add_u32 v{d}, 4096, v{d}')
            A(f'v_add_u32 v{d + 8}, 0x10000, v{d}')
    todo = [(T, k) for T in range(8) for k in range(8)][n0:]

    def issue(n):
        first = True
        for _ in range(n):
            T, k = todo.pop(0)
            emit(kv_instr(T, k, vm, set_m0=(first or (k & 3) == 0)))
            first = False
    DF = CFG.get('depth', 8)
    D0 = CFG.get('depth0', DF)
    slow_n = CFG.get('slow_n', 8)

    def Dcur():
        if len(vm.ops) >= CFG.get('slow2', 64):
            return CFG.get('depth2', DF)
        return D0 if len(vm.ops) < slow_n else DF
    A(f'v_lshlrev_b32 v{VPR}, 4, v0')
    A(f'v_add_u32 v{VPR}, {PBUF}, v{VPR}')
    A(f'v_mov_b32 v41, {L_FLAG}')
    A('s_waitcnt lgkmcnt(0)')
    make_tag()
    A('v_and_b32 v42, 3, v1')
    A('v_lshlrev_b32 v42, 3, v42')
    A(f'v_lshrrev_b32 v42, v42, s{sE}')
    for q in range(4):
        A(f'v_bfe_u32 v{VTG + q}, v42, {2 * q}, 1')
        A(f'v_bfe_u32 v43, v42, {2 * q + 1}, 1')
        A(f'v_lshl_or_b32 v{VTG + q}, v43, 16, v{VTG + q}')

    def stream_until(T, extra='', maxT=5):
        while True:
            D = Dcur()
            left = vm.after(('kv', T)) if len([t for t in vm.ops if t == ('kv', T)]) == 8 else -1
            if left >= D - 2 or todo[0][0] > maxT:
                A(f's_waitcnt vmcnt({left}){extra}')
                return
            A(f's_waitcnt vmcnt({D - 2})')
            issue(2)

    A('L_pv_again:')
    stream_until(1, maxT=3)
    TS(2)
    A('s_barrier')
    vr = v_read_list(0, 0) + v_read_list(1, 1)
    nab = CFG.get('nab', 3)
    for c in range(4):
        emit(vr[8 * c:8 * c + 8])
        if c < nab and 64 - len(todo) < min(32, CFG['npre']):
            A(f's_waitcnt vmcnt({Dcur() - 2})')
            issue(2)
    A('s_waitcnt lgkmcnt(0)')
    TS(5)
    A('s_barrier')
    npre = CFG.get('npre', 40)
    while 64 - len(todo) < npre:
        A(f's_waitcnt vmcnt({Dcur() - 2})')
        issue(2)
    A(f's_waitcnt vmcnt({vm.after(("kv", 2))})')
    TS(6)
    ndyn = CFG.get('ndyn', 0)
    sND = sKB
    dyn = [todo[i] for i in range(ndyn)]
    if ndyn:
        assert npre == 32 and ndyn % 2 == 0
        D2 = CFG.get('depth2', 8)
        A(f's_mov_b32 s{sND}, 0')
        for i in range(0, ndyn, 2):
            A(f's_waitcnt vmcnt({D2 - 2})')
            A('ds_read_b32 v42, v41 offset:4')
            A('s_waitcnt lgkmcnt(0)')
            A(f'v_readfirstlane_b32 s{sT0}, v42')
            A(f's_cmp_lg_u32 s{sT0}, 0')
            A('s_cbranch_scc1 L_dynend')
            for T, k in dyn[i:i + 2]:
                emit(kv_instr(T, k, VM_(), set_m0=(k & 1) == 0))
            A(f's_mov_b32 s{sND}, {i + 2}')
        A('L_dynend:')
    A('s_barrier')
    emit(v_read_list(2, 2))
    if ndyn:
        dn = lab('t3')
        for n in (6, 4, 2):
            nx = lab('t3n')
            A(f's_cmp_lt_u32 s{sND}, {n}')
            A(f's_cbranch_scc1 {nx}')
            A(f's_waitcnt vmcnt({n})')
            A(f's_branch {dn}')
            A(f'{nx}:')
        A('s_waitcnt vmcnt(0)')
        A(f'{dn}:')
    else:
        A(f's_waitcnt vmcnt({vm.after(("kv", 3))})')
    TS(3)
    A('s_barrier')
    emit(v_read_list(3, 3))
    atch = CFG.get('atch', 0)
    assert atch % 4 == 0
    for i in range(atch // 4):
        A(f'v_lshlrev_b32 v{46 + i}, 7, v0')
        A(f'v_add_u32 v{46 + i}, s{sT5}, v{46 + i}')
        A(f'buffer_load_dword v{46 + i}, v{46 + i}, {srd(sKV)}, s{sTB + 8 - atch // 4 + i} offen')
        vm.add('touch')
    sp = [int(x) for x in str(CFG['spread']).split(',')] + [0] * 8
    kp = 1 | 2 * CFG.get('lag3', 1)
    assert sum(sp) == len(todo) and npre + sp[0] + sp[1] <= 48 and npre >= 32
    assert npre + sum(sp[:3 if kp & 1 else 4]) >= 48 and npre + sum(sp[:4 if kp & 2 else 5]) >= (56 if CFG.get('split', 1) and not kp & 2 else 64)
    def dmas(n):
        out = []
        for _ in range(n):
            T, k = todo.pop(0)
            ins = kv_instr(T, k, vm)
            if (T, k) in dyn:
                sk = lab('dy')
                ins = [f's_cmp_gt_u32 s{sND}, {dyn.index((T, k))}', f's_cbranch_scc1 {sk}'] + ins + [f'{sk}:']
            out.append(ins)
        return out
    emit(dmas(sp[0]))
    A('s_barrier')
    TS(4)

    carry = []
    SK = CFG.get('skew', 3)

    def endstep(T=None, lg=None):
        if T is not None:
            A(f's_waitcnt vmcnt({vm.after(("kv", T))})')
        if lg is not None:
            A(f's_waitcnt lgkmcnt({lg})')
        A('s_barrier')

    def pv(j, fill, first=(), nofill=0, fr=range(4), k=None, check=False):
        par = j & 1
        pr = [8, 12, 16, (20, 60)[par]]
        if check:
            A('ds_read_b32 v42, v41')
        for f in fr:
            A(f'ds_read_b128 {v4(pr[f])}, v{VPR} offset:{par * 4096 + f * 1024}')
        emit(carry)
        carry.clear()
        A('s_waitcnt lgkmcnt(0)')
        emit(list(first))
        if check:
            A(f'v_readfirstlane_b32 s{sT0}, v42')
            A(f's_cmp_lg_u32 s{sT0}, 0')
            A('s_cbranch_scc1 L_pv_redo')
        m = []
        for f in fr:
            for ct in range(4):
                o = VO + 16 * ct
                m.append(f'v_mfma_f32_32x32x16_bf16 v[{o}:{o + 15}], {v4(pr[f])}, {v4(VV[2 * par + (f >> 1)] + 8 * ct + 4 * (f & 1))}, v[{o}:{o + 15}]')
        if k is None:
            k = SK
        if k:
            carry.extend(m[-k:])
            m = m[:-k]
        interleave(m[:len(m) - nofill], fill)
        emit(m[len(m) - nofill:])

    def w2_ops(half):
        if not CFG.get('ew2', 1):
            return []
        o = [[f's_min_u32 s{sT0}, s{sU}, 13', f's_lshr_b32 s{sT0}, s{sT0}, 1', f's_mul_i32 s{sT1}, s{sXC}, 7',
              f's_add_u32 s{sT0}, s{sT0}, s{sT1}', f's_lshl_b32 s{sT0}, s{sT0}, 15', f's_add_u32 s{sT0}, s{sT0}, s{sT5}',
              f's_add_u32 s{sT0}, s{sT0}, {half * 4096}', f's_add_u32 m0, s{sT5}, {L_W2 + half * 4096}', 'v_lshlrev_b32 v43, 4, v0',
              f's_and_b32 s{sT1}, s{sW}, 1', f's_lshl_b32 s{sT1}, s{sT1}, 7', f'v_xor_b32 v43, s{sT1}, v43']]
        for i in range(4):
            o.append([f'v_xor_b32 v46, {i * 32}, v43',
                      f'buffer_load_dwordx4 v46, {srd(sW2)}, s{sT0} offen offset:{i * 1024} {POL.get(sW2, NTW)} lds'])
        return o

    emit(dmas(sp[1]))
    endstep(lg=0)
    emit(dmas(sp[2]))
    endstep(5)
    pv(0, dmas(sp[3]), nofill=CFG.get('nf0', 5))
    endstep(7 if kp & 2 else 5)
    vf = [int(x) for x in str(CFG.get('vf', '0,0')).split(',')]
    vr = v_read_list(4, 0) + v_read_list(5, 1)
    pv(1, dmas(sp[4]) + vr[vf[0]:], vr[:vf[0]])
    SPL = CFG.get('split', 1) and not CFG.get('lag3', 1)
    if SPL:
        endstep(6, lg=0)
        pv(2, dmas(sp[5]) + v_read_list(6, 2), k=CFG.get('sk2', 6))
        endstep(7)
        pv(3, v_read_list(7, 3), fr=(0, 1), k=CFG.get('sk3', 2))
    else:
        endstep(7, lg=0)
        vr = v_read_list(6, 2) + v_read_list(7, 3)
        pv(2, vr[vf[1]:] + (w2_ops(0) + w2_ops(1) if CFG.get('ew2', 1) == 1 else []), vr[:vf[1]], k=CFG.get('skew2', 2))
    A('v_lshrrev_b32 v44, 1, v2')
    A('v_and_b32 v45, 1, v2')
    A('v_lshl_add_u32 v44, v44, 2, v45')
    A('v_lshlrev_b32 v44, 17, v44')
    A('v_lshl_add_u32 v44, v1, 4, v44')
    A(f's_lshl_b32 s{sT1}, s{sT4P}, 15')
    A(f's_lshl_b32 s{sT2}, s{sSID}, 8')
    A(f's_add_u32 s{sT1}, s{sT1}, s{sT2}')
    A(f's_add_u32 s{sT1}, s{sT1}, {OP}')
    A(f's_mov_b32 s{sT3}, 0x00010001')
    endstep()
    pv(3, [], fr=(2, 3) if SPL else range(4), k=0, check=True)
    TS(7)
    for j in range(8):
        r = 2 * j
        d = 160 + 4 * j
        A(f'v_cvt_pk_bf16_f32 v{d}, v{VO + r}, v{VO + 16 + r}')
        A(f'v_cvt_pk_bf16_f32 v{d + 1}, v{VO + r + 1}, v{VO + 16 + r + 1}')
        A(f'v_cvt_pk_bf16_f32 v{d + 2}, v{VO + 32 + r}, v{VO + 48 + r}')
        A(f'v_cvt_pk_bf16_f32 v{d + 3}, v{VO + 32 + r + 1}, v{VO + 48 + r + 1}')
        if j:
            st_o(j - 1)
        if CFG.get('stat_at', 0) == j + 1:
            A('s_barrier')
    st_o(7)
    TS(8)
    if CFG.get('stat_at', 0) >= 9:
        if CFG['stat_at'] > 9:
            A(f's_waitcnt vmcnt({17 - CFG["stat_at"]})')
        A('s_barrier')
    if CFG.get('ew2', 1) == 2:
        emit(w2_ops(0) + w2_ops(1))
    W2OPS.extend(w2_ops(0) + w2_ops(1))
    A('s_branch L_att_post')
    A('L_pv_redo:')
    A('s_waitcnt vmcnt(0) lgkmcnt(0)')
    A('s_barrier')
    A(f's_mov_b32 s{sPASS}, 1')
    A('s_nop 7')
    A('s_branch L_pv_start')


def st_o(j):
    r = 2 * j
    d = 160 + 4 * j
    A(f'v_permlane16_swap_b32 v{d}, v{d + 1}')
    A(f'v_permlane16_swap_b32 v{d + 2}, v{d + 3}')
    for q in range(4):
        A(f'v_bfi_b32 v{d + q}, s{sT3}, v{VTG + q}, v{d + q}')
    head0 = (r & 3) + 8 * (r >> 2)
    A(f's_add_u32 s{sT2}, s{sT1}, {head0 * 131072}')
    A(f'buffer_store_dwordx4 {v4(d)}, v44, {srd(sWS)}, s{sT2} offen sc1')


def t3_t4():
    A('L_att_post:')
    if CFG.get('ft', 4) == 9:
        A('s_barrier')
        wave_if('lt', 4, ffn_touch)
    A(f's_cmp_ge_u32 s{sU}, 14')
    A('s_cbranch_scc1 L_fin')
    A(f's_lshr_b32 s{sT4}, s{sU}, 1')
    A(f's_mul_i32 s{sT1}, s{sXC}, 7')
    A(f's_add_u32 s{sT4}, s{sT4}, s{sT1}')
    A(f's_and_b32 s{sT5}, s{sU}, 1')
    A('v_lshrrev_b32 v44, 2, v0')
    A('v_mul_u32_u24 v44, 3584, v44')
    A('v_and_b32 v45, 3, v0')
    A('v_lshrrev_b32 v32, 5, v0')
    A('v_lshlrev_b32 v32, 1, v32')
    A('v_xor_b32 v45, v45, v32')
    A('v_lshl_add_u32 v44, v45, 4, v44')
    A('v_lshlrev_b32 v32, 4, v0')
    A(f's_lshl_b32 s{sT0}, s{sT4}, 6')
    A(f's_mul_i32 s{sT1}, s{sW}, {64 * 3584}')
    A(f's_add_u32 s{sT0}, s{sT0}, s{sT1}')
    A(f's_lshl_b32 s{sT1}, s{sW}, 12')
    A(f's_add_u32 s{sT2}, s{sT1}, {L_W1}')
    A('s_barrier')
    for i in range(4):
        dma(44, sW1, f's{sT0}', lds_s=sT2)
        if i < 3:
            A(f's_add_u32 s{sT0}, s{sT0}, {16 * 3584}')
            A(f's_add_u32 s{sT2}, s{sT2}, 1024')
    if CFG.get('ew2', 1) == 3:
        def w2l():
            A(f's_mov_b32 s{sKB}, s{sT5}')
            A(f's_lshl_b32 s{sT5}, s{sT4P}, 13')
            emit(W2OPS)
            A(f's_mov_b32 s{sT5}, s{sKB}')
        wave_if('ge', 4, w2l)
    if not CFG.get('ew2', 1):
        A(f's_lshl_b32 s{sT0}, s{sT4}, 15')
        A(f's_add_u32 s{sT0}, s{sT0}, s{sT1}')
        A(f's_add_u32 m0, s{sT1}, {L_W2}')
        for i in range(4):
            o = f' offset:{i * 1024}' if i else ''
            A(f'buffer_load_dwordx4 v32, {srd(sW2)}, s{sT0} offen{o} {POL.get(sW2, NTW)} lds')
    A('v_and_b32 v38, 3, v1')
    A(f's_lshl_b32 s{sT0}, s{sT5}, 12')
    A(f's_lshl_b32 s{sT1}, s{sW}, 9')
    A(f's_add_u32 s{sT1}, s{sT1}, s{sT0}')
    A('v_and_b32 v33, 31, v0')
    A('v_lshlrev_b32 v33, 4, v33')
    A('v_lshrrev_b32 v34, 5, v0')
    A('v_lshl_add_u32 v33, v34, 3, v33')
    A(f'buffer_load_dwordx2 v[40:41], v33, {srd(sX_)}, s{sT1} offen')
    A(f's_add_u32 s{sT1}, s{sT1}, {MODL}')
    A(f's_add_u32 s{sT2}, s{sT1}, 8192')
    A(f's_add_u32 s{sT3}, s{sT1}, 16384')

    def ldm():
        for k in range(3):
            A(f'buffer_load_dwordx2 {v2(44 + 2 * k)}, v33, {srd(sWS)}, s{sT1 + k} offen sc1')
    poll(ldm, range(44, 50), 56)
    A(f's_lshr_b32 s{sT0}, s{sW}, 1')
    A(f's_and_b32 s{sT1}, s{sW}, 1')
    A(f's_mul_i32 s{sT2}, s{sT0}, 1040')
    A(f's_lshl_b32 s{sT3}, s{sT1}, 9')
    A(f's_add_u32 s{sT2}, s{sT2}, s{sT3}')
    A(f's_add_u32 s{sT2}, s{sT2}, {L_H2}')
    A(f'v_add_u32 v39, s{sT2}, v33')
    A(f'ds_write_b64 v39, v[48:49] offset:{4 * 1040}')
    A(f'ds_write_b64 v39, v[46:47] offset:{8 * 1040}')
    unpack(160, 40, 2)
    unpack(164, 44, 2)
    unpack(168, 48, 2)
    A('s_waitcnt lgkmcnt(0)')
    A('s_barrier')
    if not CFG.get('tsloop', 0):
        TS(9)
    A('v_lshrrev_b32 v34, 2, v1')
    A('v_lshl_add_u32 v34, v2, 3, v34')
    A('v_lshlrev_b32 v35, 6, v34')
    A('v_lshl_add_u32 v35, v38, 3, v35')
    A('v_and_b32 v36, 1, v2')
    A(f'v_xor_b32 v36, s{sT1}, v36')
    A('v_lshl_add_u32 v35, v36, 5, v35')
    A(f's_lshl_b32 s{sT2}, s{sT0}, 13')
    A(f'v_add_u32 v35, s{sT2}, v35')
    for t in range(4):
        for eh in range(2):
            A(f'ds_read_b64_tr_b16 {v2(128 + 4 * t + 2 * eh)}, v35 offset:{L_W1 + t * 2048 + eh * 256}')
    A('v_lshlrev_b32 v35, 10, v34')
    A('v_lshl_add_u32 v35, v38, 3, v35')
    A('v_lshrrev_b32 v36, 2, v1')
    A('v_and_b32 v37, 1, v2')
    A('v_lshl_add_u32 v36, v37, 2, v36')
    A(f's_and_b32 s{sT2}, s{sW}, 3')
    A(f's_lshl_b32 s{sT2}, s{sT2}, 3')
    A(f'v_xor_b32 v36, s{sT2}, v36')
    A('v_lshl_add_u32 v35, v36, 5, v35')
    assert L_W2 == 0 and CFG.get('ew2', 1)
    for tau in range(8):
        A(f'v_xor_b32 v36, {tau * 32}, v35')
        for eh in range(2):
            A(f'ds_read_b64_tr_b16 {v2(192 + 4 * tau + 2 * eh)}, v36 offset:{eh * 4096}')
    A('v_and_b32 v42, 7, v1')
    A('v_mul_u32_u24 v34, 1040, v42')
    A('v_lshl_add_u32 v34, v2, 4, v34')
    A(f's_lshl_b32 s{sT2}, s{sT0}, 8')
    A(f's_add_u32 s{sT2}, s{sT2}, {L_H2}')
    A(f'v_add_u32 v34, s{sT2}, v34')
    A('v_mul_u32_u24 v35, 144, v42')
    A('v_lshl_add_u32 v35, v2, 4, v35')
    A(f's_mul_i32 s{sT2}, s{sT0}, 1216')
    A(f's_lshl_b32 s{sT3}, s{sT1}, 6')
    A(f's_add_u32 s{sT2}, s{sT2}, s{sT3}')
    A(f's_add_u32 s{sT2}, s{sT2}, {L_FP}')
    A(f'v_add_u32 v35, s{sT2}, v35')
    A('v_lshrrev_b32 v36, 2, v1')
    A('v_mul_u32_u24 v36, 1216, v36')
    A('v_mul_u32_u24 v43, 144, v38')
    A('v_add_u32 v36, v36, v43')
    A('v_lshl_add_u32 v36, v2, 5, v36')
    A(f'v_add_u32 v36, {L_FP}, v36')
    A('v_lshrrev_b32 v37, 1, v38')
    A('v_mul_u32_u24 v37, 7168, v37')
    A('v_and_b32 v43, 1, v38')
    A('v_lshl_add_u32 v37, v43, 6, v37')
    A('v_lshl_add_u32 v37, v2, 4, v37')
    A('v_lshrrev_b32 v43, 2, v1')
    A(f'v_mul_u32_u24 v43, {4 * 7168}, v43')
    A('v_add_u32 v37, v37, v43')
    A('v_lshlrev_b32 v50, 4, v38')
    A(f'v_add_u32 v50, {L_ST}, v50')
    A(f's_lshl_b32 s{sT2}, s{sW}, 3')
    A(f's_add_u32 s{sT2}, s{sT2}, {L_ST}')
    A(f'v_mov_b32 v51, s{sT2}')
    for t in range(4):
        A(f'ds_read_b128 {v4(64 + 4 * t)}, v34 offset:{4 * 1040 + 64 * t}')
    A('s_waitcnt lgkmcnt(0)')
    for t in range(4):
        c = '0' if t == 0 else 'v[80:83]'
        A(f'v_mfma_f32_16x16x32_bf16 v[80:83], {v4(128 + 4 * t)}, {v4(64 + 4 * t)}, {c}')
    exec_set(0x00ff00ff, 0x00ff00ff)
    A('ds_write_b128 v35, v[80:83]')
    exec_all()
    A('s_waitcnt lgkmcnt(0)')
    A('s_barrier')
    A('ds_read_b128 v[176:179], v36')
    A('ds_read_b128 v[180:183], v36 offset:16')
    A('ds_read_b128 v[184:187], v36 offset:576')
    A('ds_read_b128 v[188:191], v36 offset:592')
    A(f's_lshl_b32 s{sT2}, s{sT5}, 15')
    A(f's_lshl_b32 s{sT3}, s{sT0}, 13')
    A(f's_add_u32 s{sT2}, s{sT2}, s{sT3}')
    A(f's_lshl_b32 s{sT3}, s{sT1}, 9')
    A(f's_add_u32 s{sT2}, s{sT2}, s{sT3}')
    A(f's_add_u32 s{sT2}, s{sT2}, {OPART}')
    A(f's_add_u32 s{sT3}, s{sT2}, 4096')
    A(f's_lshl_b32 s{sT0}, s{sW}, 5')
    A(f's_lshl_b32 s{sT1}, s{sT5}, 1')
    A(f's_add_u32 s{sT0}, s{sT0}, s{sT1}')
    A(f's_mul_i32 s{sT0}, s{sT0}, 7168')
    A(f's_lshl_b32 s{sT1}, s{sT4}, 7')
    A(f's_add_u32 s{sT0}, s{sT0}, s{sT1}')
    A(f's_add_u32 s{sT0}, s{sT0}, {YP}')
    A(f's_mov_b32 s{sT1}, 0xff')
    for r in range(4):
        A(f'v_lshrrev_b32 v{40 + r}, {8 * r}, s{sE}')
    A('s_waitcnt lgkmcnt(0)')
    for sh in (8, 4):
        for i in range(16):
            A(f'v_add_f32_dpp v{176 + i}, v{176 + i}, v{176 + i} row_ror:{sh} {DPPM}')

    A('v_and_b32 v57, 31, v0')
    A('v_lshlrev_b32 v57, 4, v57')
    A('v_lshrrev_b32 v58, 5, v0')
    A('v_lshl_add_u32 v57, v58, 12, v57')

    def ldo():
        for k in range(4):
            A(f'buffer_load_dwordx4 {v4(64 + 4 * k)}, v57, {srd(sWS)}, s{sT2} offen offset:{1024 * k} sc1')
    if CFG.get('h3', 2) >= 0:
        sk = lab('nohw')
        A(f's_cmp_lg_u32 s{sW}, 0')
        A(f's_cbranch_scc1 {sk}')
        A(f's_lshl_b32 s{sKB}, s{sSID}, 7')
        A(f's_add_u32 s{sKB}, s{sKB}, {F3}')
        hint_wait(sKB, sT4P)
        A(f'{sk}:')
        A('s_barrier')
    TP(1)
    poll(ldo, range(64, 80, 2), 56, sleep=CFG.get('sl_o', 0), pre_sleep=CFG.get('sl_o0', 0))
    if not CFG.get('tsloop', 0):
        TS(10)
    TP(2)
    if CFG.get('h5', 0) == 0:
        hint_pub(F4 + 64, 6, 112, sKB)
    if CFG.get('h4', 2) == 0:
        hint_pub(F4, 7, 112, sKB)
    for i in range(16):
        A(f'v_lshlrev_b32 v{80 + i}, 16, v{64 + i}')
    for n in (8, 4):
        for b_ in (64, 80):
            for i in range(0, n, 2):
                A(f'v_pk_add_f32 {v2(b_ + i)}, {v2(b_ + i)}, {v2(b_ + n + i)}')
    for b_ in (80, 64):
        for i in range(2):
            A(f'v_permlane32_swap_b32 v{b_ + i}, v{b_ + 2 + i}')
    A('v_pk_add_f32 v[68:69], v[80:81], v[82:83]')
    A('v_pk_add_f32 v[64:65], v[64:65], v[66:67]')
    for i, r in enumerate((68, 64, 69, 65)):
        A(f'v_fma_f32 v{80 + i}, v{r}, v{164 + i}, v{160 + i}')
    for i in range(4):
        A(f'v_mul_f32 v{84 + i}, v{80 + i}, v{168 + i}')
    A('v_cvt_pk_bf16_f32 v88, v84, v85')
    A('v_cvt_pk_bf16_f32 v89, v86, v87')
    A('ds_write_b64 v39, v[88:89]')
    A('v_add_f32 v52, v80, v81')
    A('v_mul_f32 v53, v80, v80')
    A('v_add_f32 v54, v82, v83')
    A('v_fmac_f32 v53, v81, v81')
    A('v_add_f32 v52, v52, v54')
    A('v_fmac_f32 v53, v82, v82')
    A('v_fmac_f32 v53, v83, v83')
    TP(3)
    A('s_waitcnt lgkmcnt(0)')
    A('s_barrier')
    TP(4)
    for t in range(4):
        A(f'ds_read_b128 {v4(64 + 4 * t)}, v34 offset:{64 * t}')
    if CFG.get('h5', 0) == 1:
        hint_pub(F4 + 64, 6, 112, sKB)
    if CFG.get('h4', 2) == 1:
        hint_pub(F4, 7, 112, sKB)
    row_reduce('v_add_f32', [52, 53])
    for t in range(4):
        A(f's_waitcnt lgkmcnt({3 - t})')
        c = '0' if t == 0 else 'v[80:83]'
        A(f'v_mfma_f32_16x16x32_bf16 v[80:83], {v4(128 + 4 * t)}, {v4(64 + 4 * t)}, {c}')
    for r in (52, 53):
        A(f'v_add_f32_dpp v{r}, v{r}, v{r} row_bcast:15 row_mask:0xa bank_mask:0xf')
    for r in (52, 53):
        A(f'v_add_f32_dpp v{r}, v{r}, v{r} row_bcast:31 row_mask:0xc bank_mask:0xf')
    exec_set(0, 0x80000000)
    A('ds_write_b64 v51, v[52:53]')
    exec_set(0x000f000f, 0x000f000f)
    A('ds_write_b128 v35, v[80:83]')
    exec_all()
    TP(5)
    A('s_waitcnt lgkmcnt(0)')
    A('s_barrier')
    TP(6)
    A(f's_cmp_ge_u32 s{sW}, 4')
    A('s_cbranch_scc1 L_fin')
    A(f's_add_u32 s{sT2}, s{sT0}, {16 * 7168}')
    A('ds_read_b128 v[52:55], v50')
    A('ds_read_b128 v[64:67], v36')
    A('ds_read_b128 v[68:71], v36 offset:16')
    if CFG.get('h4', 2) == 2:
        hint_pub(F4, 7, 112, sKB)
    A('s_waitcnt lgkmcnt(2)')
    A('v_add_f32 v52, v52, v54')
    A('v_add_f32 v53, v53, v55')
    A('v_mul_f32 v52, 0x3b000000, v52')
    A('v_mul_f32 v53, 0x3b000000, v53')
    A('v_fma_f32 v53, -v52, v52, v53')
    A('v_max_f32 v53, 0, v53')
    A('v_add_f32 v53, 0x3727c5ac, v53')
    A('v_rsq_f32 v53, v53')
    A('s_waitcnt lgkmcnt(0)')
    for sh in (8, 4):
        for i in range(8):
            A(f'v_add_f32_dpp v{64 + i}, v{64 + i}, v{64 + i} row_ror:{sh} {DPPM}')
    A('v_mov_b32 v54, v53')
    A('v_mov_b32 v55, v53')
    A('v_sub_f32 v52, 0, v52')
    A('v_mov_b32 v53, v52')
    for i in range(0, 8, 2):
        A(f'v_pk_fma_f32 {v2(64 + i)}, v[52:53], {v2(176 + i)}, {v2(64 + i)}')
    for i in range(0, 8, 2):
        A(f'v_pk_fma_f32 {v2(64 + i)}, v[54:55], {v2(64 + i)}, {v2(184 + i)}')
    for i in range(4):
        A(f'v_cvt_pk_bf16_f32 v{72 + i}, v{64 + 2 * i}, v{65 + 2 * i}')
    for i in range(4):
        A(f'v_pk_max_i16 v{72 + i}, v{72 + i}, 0')
    TP(7)
    for tau in range(8):
        A(f'v_mfma_f32_16x16x32_bf16 {v4(80 + 4 * tau)}, {v4(192 + 4 * tau)}, v[72:75], 0')
    for k in range(2):
        d = 80 + 16 * k
        for tau in range(1, 4):
            for r in range(4):
                A(f'v_mov_b32_dpp v{d + r}, v{d + 4 * tau + r} quad_perm:[0,1,2,3] row_mask:0xf bank_mask:{1 << tau:#x}')
        for r in range(4):
            A(f'v_bfi_b32 v{d + r}, s{sT1}, v{40 + r}, v{d + r}')
        A(f'buffer_store_dwordx4 {v4(d)}, v37, {srd(sWS)}, s{(sT0, sT2)[k]} offen sc1')
    if CFG.get('h4', 2) == 3:
        hint_pub(F4, CFG.get('h4w', 0), 112, sKB)
    TP(8)


def epilogue():
    A('L_fin:')
    if CFG['ts']:
        A('s_waitcnt lgkmcnt(0)')
        A(f's_lshl_b32 s{sT0}, s2, 9')
        A(f's_lshl_b32 s{sT1}, s{sW}, 6')
        A(f's_add_u32 s{sT0}, s{sT0}, s{sT1}')
        A(f's_add_u32 s{sT0}, s{sT0}, {TSB}')
        A('v_mov_b32 v4, 0')
        for i in range(NTS):
            A(f'v_writelane_b32 v4, s{sTS + 2 * i}, {i}')
        A(f's_memtime s[{sT2}:{sT3}]')
        A(f's_memrealtime s[{sT4}:{sT5}]')
        A('s_waitcnt lgkmcnt(0)')
        A(f'v_writelane_b32 v4, s{sT2}, 12')
        A(f'v_writelane_b32 v4, s{sT4}, 13')
        A(f'v_writelane_b32 v4, s{sT4}, 11')
        A(f'v_writelane_b32 v4, s{sEX}, 14')
        A(f's_getreg_b32 s{sT1}, hwreg(HW_REG_XCC_ID)')
        A(f'v_writelane_b32 v4, s{sT1}, 15')
        A('v_lshlrev_b32 v5, 2, v0')
        exec_set(0xffff, 0)
        A(f'buffer_store_dword v4, v5, {srd(sWS)}, s{sT0} offen')
        if CFG.get('dbg', 0):
            exec_all()
            A(f's_load_dwordx2 s[{sT0}:{sT1}], s[0:1], 96')
            A(f's_mov_b32 s{sT2}, 256')
            A(f's_mov_b32 s{sT3}, 0x00020000')
            A(f'v_subrev_u32 v4, s{sTS}, v4')
            A('s_waitcnt lgkmcnt(0)')
            for wg, wv, lanes, base in ((8, 0, (1, 2, 5, 6, 7, 9, 10), 0), (8, 2, (11,), 7), (136, 0, (2, 3, 4, 8, 10), 8), (136, 4, (2, 3, 11), 13)):
                nx = lab('dbg')
                A(f's_cmp_lg_u32 s2, {wg}')
                A(f's_cbranch_scc1 {nx}')
                A(f's_cmp_lg_u32 s{sW}, {wv}')
                A(f's_cbranch_scc1 {nx}')
                for i, ln in enumerate(lanes):
                    A(f'v_mov_b32 v5, {4 * (base + i)}')
                    exec_set(1 << ln, 0)
                    A(f'buffer_store_dword v4, v5, s[{sT0}:{sT3}], 0 offen')
                    exec_all()
                A(f'{nx}:')
        if 'diag' in CFG:
            wg, wv, idx = [int(x) for x in str(CFG['diag']).split(',')]
            exec_all()
            A(f's_cmp_lg_u32 s2, {wg}')
            A('s_cbranch_scc1 L_end')
            A(f's_cmp_lg_u32 s{sW}, {wv}')
            A('s_cbranch_scc1 L_end')
            src_ = sT4 if idx == 11 else sTS + 2 * idx
            A(f's_sub_u32 s{sT0}, s{src_}, s{sTS}')
            A(f's_lshl_b32 s{sT0}, s{sT0}, 2')
            A(f's_add_u32 s{sT0}, s{sT0}, 5000')
            A(f's_min_u32 s{sT0}, s{sT0}, 30000')
            A('L_diag:')
            A(f's_memrealtime s[{sT2}:{sT3}]')
            A('s_waitcnt lgkmcnt(0)')
            A(f's_sub_u32 s{sT2}, s{sT2}, s{sTS}')
            A(f's_cmp_lt_u32 s{sT2}, s{sT0}')
            A('s_cbranch_scc1 L_diag')
    A('L_end:')
    A('s_endpgm')


def main():
    if CFG['ts']:
        for i in range(1, NTS):
            A(f's_mov_b32 s{sTS + 2 * i}, 0')
    prologue()
    att_front()
    service_issue()
    att_stub()
    att_p1()
    service_pre()
    t1()
    t2_final()
    pv_wave()
    qk_wave()
    t3_t4()
    epilogue()
    XSKIP = [srd({'w1': sW1, 'w2': sW2, 'wo': sWO, 'uv': sWUV}[k]) for k in str(CFG.get('xskip', '')).split(',') if k]
    A.lines = [l if not (l.startswith('buffer_load') and any(x in l for x in XSKIP)) else l.replace(', ' + [x for x in XSKIP if x in l][0], ', ' + srd(sX_)) for l in A.lines]
    body = A.finalize()
    ref = open(os.path.join(os.path.dirname(os.path.abspath(__file__)), '..', NAME + '.s.ref')).read()
    head = ref[:ref.index('; @launch')]
    out = head + f'; @launch grid=(256,1,1) block=(512,1,1) lds={LDS_BYTES}\n'
    if CFG['ts'] or CFG.get('lay', 0):
        out += '; @layout ' + ' '.join(f'{k}={globals()[k]}' for k in ('CS', 'MOD1', 'Q2', 'QA', 'MODL', 'STATS', 'CTX', 'OPART', 'YP', 'OP', 'TSB')) + '\n'
    out += f""".amdgcn_target "amdgcn-amd-amdhsa--gfx950"
.text
; ---------------------------------------------------------------------------------------------------------------
; Generated by gen/gen27.py (hand-written generator).  One persistent launch, 256 co-resident workgroups.
; Math: absorbed MLA (q_abs = q w_uk^T, scores = q_abs . c_kv, ctx = (P c_kv) w_uv), split-KV softmax merged with
;   exact (m, l) statistics.  Each split subtracts the max of its first key tile; a run-time check (largest exponent
;   seen > 64) re-runs the split with its exact max.  LayerNorm 2 is applied after the w1 product (linear rewrite).
; Roles: wg>>3 >= 16: attention (+ mod partials, FFN);  wg>>3 < 16: q / q_abs, merge + w_uv, w_o, output.
; Hand-offs go through d_ws: every datum carries its own validity (launch tag derived from ws[0], or a sentinel in a
;   region cleared earlier in the same launch); "hint" lines only choose when to read.  Stores are write-through
; ---------------------------------------------------------------------------------------------------------------
.globl {NAME}_kernel
.p2align 8
.type {NAME}_kernel,@function
{NAME}_kernel:
"""
    out += body
    out += 'L_code_end:\n'
    out += f""".section .rodata,"a"
.p2align 6
.amdhsa_kernel {NAME}_kernel
  .amdhsa_next_free_vgpr 256
  .amdhsa_next_free_sgpr 102
  .amdhsa_accum_offset 256
  .amdhsa_group_segment_fixed_size 0
  .amdhsa_kernarg_size 112
  .amdhsa_user_sgpr_count 2
  .amdhsa_user_sgpr_kernarg_segment_ptr 1
  .amdhsa_system_sgpr_workgroup_id_x 1
.end_amdhsa_kernel
"""
    open(sys.argv[1], 'w').write(out)


if __name__ == '__main__':
    main()
```

```python
import sys, os
sys.path.insert(0, os.path.dirname(os.path.abspath(__file__)))
from asmlib import Asm

NAME = 'adaLN_cond__compressed_kv_cla__dense_activation_relu__decode'

CFG = dict(
    sflag=1, slowp=1, sparse=0, depth=10, sl_qa0=0, flag_at=2, h4=3, n0=8, npre=44, spread='4,8,3,3,2', sl_y0=0, sl_pub=0, sl_q2=0, sl_ctx=0, pq2=1, p_wm='-', p_w1='-', p_w2='-', p_wo='-',
    ts=0,
    poll_max=60000,
    nt='nt',
    ntw='nt',
)
for a_ in sys.argv[2:]:
    k_, v_ = a_.split('=')
    CFG[k_] = int(v_) if v_.lstrip('-').isdigit() else v_
NT = CFG['nt'] if CFG['nt'] != '-' else ''
NTW = CFG['ntw'] if CFG['ntw'] != '-' else ''

EPOCH = 0
MOD1 = CFG.get("o_mod1", CFG.get("wsoff", 0)) * 0x40000 + 0x1000
XID = CFG.get("o_xid", CFG.get("wsoff", 0)) * 0x40000 + 0x19000
FLG = CFG.get("o_flg", CFG.get("wsoff", 0)) * 0x40000 + 0x11000
FK = CFG.get("o_fk", CFG.get("wsoff", 0)) * 0x40000 + 0x15000
F3 = CFG.get("o_f3", CFG.get("wsoff", 0)) * 0x40000 + 0x20000
F4 = CFG.get("o_f4", CFG.get("wsoff", 0)) * 0x40000 + 0x24000
DBR = CFG.get("o_dbr", CFG.get("wsoff", 0)) * 0x40000 + 0x28000
CLR_E = CFG.get("o_clr_e", CFG.get("wsoff", 0)) * 0x40000 + 0x30000
QA = CLR_E
MODL = QA + 0x40000
STATS = MODL + 0x8000
CTX = STATS + 0x8000
OPART = CTX + 0x40000
if CFG.get('flgclr', 1):
    FLG, F3, F4 = OPART + 0x10000, OPART + 0x14000, OPART + 0x18000
YP = OPART + 0x1c000
CLR_E_PER = (YP - CLR_E) // 128
Q2 = YP + 128 * 7168
M2 = Q2 + 0x80000
OP = M2 + 0x80000
WS_END = OP + 0x400000
MSH = CFG.get('msh', 12)
if MSH > 9:
    MOD1 = WS_END
    WS_END += 128 << MSH
TSB = 0xe00000
WS_SIZE = 0xf00000

L_WUV = 0
L_W1 = 32768
L_W2 = 0
L_WO = 32768
L_WQ = 98304
MISC = 131072
L_WM = MISC
L_WML = MISC + 8192
SCR = MISC + 24576
L_XN = L_WO
L_RED1 = MISC + 16384
L_WM1 = MISC + 8192
L_H = L_WO + 16384
L_QL = L_WO + 20480
L_RED3 = L_WQ
PBUF = MISC
L_MX = MISC + 5120
L_ALPHA = MISC + 6144
L_FLAG = MISC + 6272
L_LS = MISC + 6400
L_XB = MISC + 8192
L_H2 = MISC + 8192
L_FP = MISC + 21504
L_ST = MISC + 26624
L_XOK = SCR + 4352
L_WT = SCR
L_CC = SCR + 2048
LDS_BYTES = 163840

sX_, sKV, sWQ, sWUK, sWUV, sWO, sW1, sW2, sC, sWM, sOUT, sWS = [4 + 4 * i for i in range(12)]


def srd(n):
    return f's[{n}:{n + 3}]'


sXC, sR, sU, sSID, sW, sE, sTLO, sTHI, sH, sCQ, sBH, sCNT = range(52, 64)
sT0, sT1, sT2, sT3, sT4, sT5 = range(64, 70)
sEX = 70
sLNK = 72
sTGT = 74
sPE, sPO = 76, 77
sKB = 78
sWB = sBH
sXT = sW1
sXID, sLOC = sW1, sW1 + 1
sA0, sA1 = sW2 + 1, sW2 + 2
sCX = sW2
sTS = 80
NTS = 11

A = Asm()
POL = {}
for nm_, s_ in (('wm', sWM), ('wq', sWQ), ('wuk', sWUK), ('wuv', sWUV), ('wo', sWO), ('w1', sW1), ('w2', sW2)):
    if 'p_' + nm_ in CFG:
        POL[s_] = CFG['p_' + nm_].replace('-', '')
_late = [0]
_lab = [0]


def lab(p='L'):
    _lab[0] += 1
    return f'{p}_{_lab[0]}'


def v4(n):
    return f'v[{n}:{n + 3}]'


def v2(n):
    return f'v[{n}:{n + 1}]'


def TF(i):
    if CFG['ts'] and CFG.get('tsfront', 0):
        A(f's_memrealtime s[{sTS + 2 * i}:{sTS + 2 * i + 1}]')


def TP(i):
    if CFG['ts'] and CFG.get('tsstep', -1) == 200:
        A(f's_memtime s[{sTS + 2 * i}:{sTS + 2 * i + 1}]')


def TC(i, j):
    if CFG['ts'] and CFG.get('tsstep', -1) == j:
        A(f's_memtime s[{sTS + 2 * i}:{sTS + 2 * i + 1}]')


def TS(i):
    if CFG['ts'] and not (CFG.get('tsfront', 0) and i >= 3) and not (CFG.get('tsstep', -1) >= 0 and i >= 1):
        assert i < NTS
        A(f's_memrealtime s[{sTS + 2 * i}:{sTS + 2 * i + 1}]')


def exec_set(lo, hi):
    A(f's_mov_b32 exec_lo, {lo:#x}')
    A(f's_mov_b32 exec_hi, {hi:#x}')


def exec_all():
    A('s_mov_b64 exec, -1')


def rne1(d, s):
    A(f'v_cvt_pk_bf16_f32 v{d}, 0, v{s}')


def rne2(d0, d1, s0, s1):
    rne1(d0, s0)
    rne1(d1, s1)


def unpack(dst, src, n):
    for i in range(n):
        A(f'v_lshlrev_b32 v{dst + 2 * i}, 16, v{src + i}')
        A(f'v_and_b32 v{dst + 2 * i + 1}, 0xffff0000, v{src + i}')


DPPM = 'row_mask:0xf bank_mask:0xf'


def row_reduce(op, regs):
    for sh in (8, 4, 2, 1):
        for r in regs:
            A(f'{op}_dpp v{r}, v{r}, v{r} row_ror:{sh} {DPPM}')


def wave_sum(regs, sdst):
    row_reduce('v_add_f32', regs)
    for r in regs:
        A(f'v_add_f32_dpp v{r}, v{r}, v{r} row_bcast:15 row_mask:0xa bank_mask:0xf')
    for r in regs:
        A(f'v_add_f32_dpp v{r}, v{r}, v{r} row_bcast:31 row_mask:0xc bank_mask:0xf')
    for r, s in zip(regs, sdst):
        A(f'v_readlane_b32 s{s}, v{r}, 63')


def max_tree(regs, tmp):
    regs = list(regs)
    if len(regs) == 1:
        A(f'v_mov_b32 v{tmp}, v{regs[0]}')
        return
    if len(regs) == 2:
        A(f'v_max_u32 v{tmp}, v{regs[0]}, v{regs[1]}')
        return
    A(f'v_max3_u32 v{tmp}, v{regs[0]}, v{regs[1]}, v{regs[2]}')
    regs = regs[3:]
    while len(regs) >= 2:
        A(f'v_max3_u32 v{tmp}, v{tmp}, v{regs[0]}, v{regs[1]}')
        regs = regs[2:]
    if regs:
        A(f'v_max_u32 v{tmp}, v{tmp}, v{regs[0]}')


def poll(loads, check_regs, tmp, sleep=1, pre_sleep=0, check=None):
    top, done = lab('poll'), lab('pdone')
    A(f's_mov_b32 s{sCNT}, {CFG["poll_max"]}')
    if pre_sleep:
        A(f's_sleep {pre_sleep}')
    A(f'{top}:')
    loads()
    A('s_waitcnt vmcnt(0)')
    if check:
        check()
    else:
        max_tree(check_regs, tmp)
        A(f'v_cmp_eq_u32 vcc, -1, v{tmp}')
    A(f's_cbranch_vccz {done}')
    if sleep:
        A(f's_sleep {sleep}')
    A(f's_sub_u32 s{sCNT}, s{sCNT}, 1')
    A(f's_cbranch_scc0 {top}')
    A(f'{done}:')


def hint_pub(region, wave, vt, st):
    sk = lab('nohint')
    A(f's_cmp_lg_u32 s{sW}, {wave}')
    A(f's_cbranch_scc1 {sk}')
    A(f's_lshl_b32 s{st}, s{sSID}, 7')
    A(f's_add_u32 s{st}, s{st}, {region}')
    A(f'v_mov_b32 v{vt}, s{sE}')
    A(f'v_mov_b32 v{vt + 1}, 0')
    exec_set(1, 0)
    A(f'buffer_store_dword v{vt}, v{vt + 1}, {srd(sWS)}, s{st} offen sc1')
    exec_all()
    A(f'{sk}:')


def hint_wait(s_off, st, sleep=0):
    top, done = lab('hw'), lab('hd')
    A(f's_mov_b32 s{sCNT}, {CFG["poll_max"]}')
    A(f'{top}:')
    A(f's_load_dword s{st}, s[{sWS}:{sWS + 1}], s{s_off} glc')
    A('s_waitcnt lgkmcnt(0)')
    A(f's_cmp_eq_u32 s{st}, s{sE}')
    A(f's_cbranch_scc1 {done}')
    if sleep:
        A(f's_sleep {sleep}')
    A(f's_sub_u32 s{sCNT}, s{sCNT}, 1')
    A(f's_cbranch_scc0 {top}')
    A(f'{done}:')


def layernorm_rows(x, t, out_bf):
    A(f'v_readfirstlane_b32 s{sT0}, v{x}')
    for i in range(8):
        A(f'v_subrev_f32 v{t + i}, s{sT0}, v{x + i}')
    A(f'v_add_f32 v{t + 8}, v{t}, v{t + 1}')
    A(f'v_mul_f32 v{t + 9}, v{t}, v{t}')
    A(f'v_fmac_f32 v{t + 9}, v{t + 1}, v{t + 1}')
    for i in range(2, 8):
        A(f'v_add_f32 v{t + 8}, v{t + 8}, v{t + i}')
        A(f'v_fmac_f32 v{t + 9}, v{t + i}, v{t + i}')
    wave_sum([t + 8, t + 9], [sT1, sT2])
    inv = '0x3b000000'
    A(f'v_mov_b32 v{t}, {inv}')
    A(f'v_mul_f32 v{t + 1}, s{sT1}, v{t}')
    A(f'v_mul_f32 v{t + 2}, s{sT2}, v{t}')
    A(f'v_fma_f32 v{t + 2}, -v{t + 1}, v{t + 1}, v{t + 2}')
    A(f'v_max_f32 v{t + 2}, 0, v{t + 2}')
    A(f'v_add_f32 v{t + 1}, s{sT0}, v{t + 1}')
    rne2(t + 1, t + 2, t + 1, t + 2)
    A(f'v_add_f32 v{t + 2}, 0x3727c5ac, v{t + 2}')
    rne1(t + 2, t + 2)
    A(f'v_sqrt_f32 v{t + 2}, v{t + 2}')
    for i in range(8):
        A(f'v_sub_f32 v{x + i}, v{x + i}, v{t + 1}')
    rne1(t + 2, t + 2)
    A(f'v_rcp_f32 v{t + 2}, v{t + 2}')
    for i in range(0, 8, 2):
        rne2(x + i, x + i + 1, x + i, x + i + 1)
    for i in range(8):
        A(f'v_mul_f32 v{x + i}, v{x + i}, v{t + 2}')
    if out_bf is not None:
        for i in range(4):
            A(f'v_cvt_pk_bf16_f32 v{out_bf + i}, v{x + 2 * i}, v{x + 2 * i + 1}')
    else:
        for i in range(0, 8, 2):
            rne2(x + i, x + i + 1, x + i, x + i + 1)


def dma(voff, srd_, soff, lds_s=None, lds_imm=None, off=0, pol=None):
    if lds_s is not None:
        A(f's_mov_b32 m0, s{lds_s}')
    elif lds_imm is not None:
        A(f's_mov_b32 m0, {lds_imm}')
    if pol is None:
        pol = POL.get(srd_, NTW)
    if CFG.get('x_skip', 0) and _late[0]:
        return
    o = f' offset:{off}' if off else ''
    A(f'buffer_load_dwordx4 v{voff}, {srd(srd_)}, {soff} offen{o} {pol} lds')


VTR = 6
VR16 = 7
VWO = 192
VWOA = 5
sT4P = 79


SIZES = {sX_: 8192, sKV: 33554432, sWQ: 4194304, sWUK: 4194304, sWUV: 4194304, sWO: 4194304,
         sW1: 1835008, sW2: 1835008, sC: 8192, sWM: 3145728, sOUT: 8192, sWS: WS_SIZE}


def srd_tail(*regs):
    for s in regs:
        A(f's_mov_b32 s{s + 2}, {SIZES[s]}')
        A(f's_mov_b32 s{s + 3}, 0x00020000')


def late_ptrs(*regs):
    offs = {sWUV: 32, sWO: 40, sW1: 56, sW2: 64, sOUT: 88}
    A(f's_load_dword s{sE}, s[{sWS}:{sWS + 1}], {EPOCH}')
    for s in regs:
        A(f's_load_dwordx2 s[{s}:{s + 1}], s[0:1], {offs[s]}')
    srd_tail(*regs)


def cfrag_off():
    A('v_and_b32 v4, 7, v1')
    A('v_lshlrev_b32 v4, 10, v4')
    A('v_lshrrev_b32 v5, 3, v1')
    A('v_lshl_add_u32 v4, v5, 6, v4')
    A('v_lshl_add_u32 v4, v2, 4, v4')


def prologue():
    A('s_cmp_ge_u32 s2, 256')
    A('s_cbranch_scc1 L_end')
    TS(0)
    if CFG['ts']:
        A(f's_memtime s[{sEX}:{sEX + 1}]')
    for s, off in ((sC, 72), (sWM, 80), (sWS, 104), (sKV, 8), (sX_, 0), (sWQ, 16), (sWUK, 24)):
        A(f's_load_dwordx2 s[{s}:{s + 1}], s[0:1], {off}')
    A('v_mov_b32 v3, v0')
    A('v_lshrrev_b32 v4, 6, v0')
    A('v_and_b32 v0, 63, v0')
    A(f'v_readfirstlane_b32 s{sW}, v4')
    A('v_and_b32 v1, 15, v0')
    A('v_lshrrev_b32 v2, 4, v0')
    A(f's_and_b32 s{sXC}, s2, 7')
    A(f's_lshr_b32 s{sR}, s2, 3')
    A(f's_and_b32 s{sU}, s{sR}, 15')
    A(f's_lshl_b32 s{sSID}, s{sXC}, 4')
    A(f's_add_u32 s{sSID}, s{sSID}, s{sU}')
    A('v_lshlrev_b32 v16, 4, v3')
    srd_tail(sC, sWM, sWS, sX_)
    cfrag_off()
    A(f's_cmp_lt_u32 s{sR}, 16')
    A('s_cbranch_scc1 L_svc0')
    A(f's_cmp_lt_u32 s{sW}, 4')
    A('s_cbranch_scc1 L_att0')
    A('s_barrier')
    A('s_branch L_pv')
    A('L_att0:')


def make_tag():
    A(f's_mul_i32 s{sE}, s{sE}, 0x9e3779b1')
    A(f's_add_u32 s{sE}, s{sE}, 0x7f4a7c15')
    A(f's_and_b32 s{sTLO}, s{sE}, 0xffff')
    A(f's_lshr_b32 s{sTHI}, s{sE}, 16')


def code_prefetch(vt):
    A(f's_getpc_b64 s[{sT0}:{sT1}]')
    here = lab('pc')
    A(f'{here}:')
    A(f's_sub_u32 s{sT0}, s{sT0}, {here}-{NAME}_kernel')
    A(f's_subb_u32 s{sT1}, s{sT1}, 0')
    A(f's_lshl_b32 s{sT2}, s{sW}, 4')
    A(f's_add_u32 s{sT2}, s{sT2}, s{sU}')
    A(f's_lshl_b32 s{sT2}, s{sT2}, 10')
    sk = lab('cpf')
    A(f's_cmp_ge_u32 s{sT2}, L_code_end-{NAME}_kernel')
    A(f's_cbranch_scc1 {sk}')
    A(f's_min_u32 s{sT2}, s{sT2}, L_code_end-{NAME}_kernel-1024')
    A(f'v_lshl_add_u32 v{vt}, v0, 4, s{sT2}')
    A(f'global_load_dwordx4 v[252:255], v{vt}, s[{sT0}:{sT1}]')
    A(f'{sk}:')


def silu_frag(src_=8, dst=24, n=4, fill=None):
    unpack(64, src_, n)
    t = 64 + 2 * n
    for i in range(2 * n):
        A(f'v_mul_f32 v{t + i}, 0xbfb8aa3b, v{64 + i}')
    for i in range(2 * n):
        A(f'v_exp_f32 v{t + i}, v{t + i}')
    if fill:
        fill()
    for i in range(2 * n):
        A(f'v_add_f32 v{t + i}, 1.0, v{t + i}')
    for i in range(2 * n):
        A(f'v_rcp_f32 v{t + i}, v{t + i}')
    for i in range(2 * n):
        A(f'v_mul_f32 v{64 + i}, v{64 + i}, v{t + i}')
    for i in range(n):
        A(f'v_cvt_pk_bf16_f32 v{dst + i}, v{64 + 2 * i}, v{65 + 2 * i}')


def tree_add(base, n, stop):
    while n > stop:
        n //= 2
        for i in range(n):
            A(f'v_add_f32 v{base + i}, v{base + i}, v{base + n + i}')


def pub_flag(w):
    sk = lab('noflg')
    A(f's_cmp_lg_u32 s{sW}, {w}')
    A(f's_cbranch_scc1 {sk}')
    A(f'v_mov_b32 v76, s{sE}')
    A(f'v_not_b32 v77, v76')
    A(f's_lshl_b32 s{sT3}, s{sSID}, 7')
    A(f's_add_u32 s{sT3}, s{sT3}, {FLG}')
    A('v_lshlrev_b32 v78, 3, v0')
    exec_set(0xffff, 0)
    A(f'buffer_store_dwordx2 v[76:77], v78, {srd(sWS)}, s{sT3} offen sc1')
    exec_all()
    A(f'{sk}:')


def tagbytes(v):
    A(f'v_and_b32 v{v}, 1, v0')
    A(f'v_lshlrev_b32 v{v}, 4, v{v}')
    A(f'v_lshrrev_b32 v{v}, v{v}, s{sE}')
    A(f'v_bfe_u32 v{v + 1}, v{v}, 8, 8')
    A(f'v_and_b32 v{v}, 0xff, v{v}')


def poll8(loads, base, tg, sleep, first_issued=False, pre_sleep=0, ntg=2):
    top, done = lab('poll'), lab('pdone')
    A(f's_mov_b32 s{sCNT}, {CFG["poll_max"]}')
    if pre_sleep:
        A(f's_sleep {pre_sleep}')
    if not first_issued:
        loads()
    A(f'{top}:')
    A('s_waitcnt vmcnt(0)')
    for i in range(8):
        A(f'v_xor_b32 v{base + i}, v{base + i}, v{tg + (i & (ntg - 1))}')
    A(f'v_or3_b32 v{base + 8}, v{base}, v{base + 1}, v{base + 2}')
    A(f'v_or3_b32 v{base + 9}, v{base + 3}, v{base + 4}, v{base + 5}')
    A(f'v_or3_b32 v{base + 8}, v{base + 8}, v{base + 6}, v{base + 7}')
    A(f'v_or_b32 v{base + 8}, v{base + 8}, v{base + 9}')
    A(f'v_and_b32 v{base + 8}, 0xff, v{base + 8}')
    A(f'v_cmp_ne_u32 vcc, 0, v{base + 8}')
    A(f's_cbranch_vccz {done}')
    if sleep:
        A(f's_sleep {sleep}')
    loads()
    A(f's_sub_u32 s{sCNT}, s{sCNT}, 1')
    A(f's_cbranch_scc0 {top}')
    A('s_waitcnt vmcnt(0)')
    A(f'{done}:')


def service_issue():
    A('L_svc0:')
    srd_tail(sWQ, sWUK)
    A(f's_lshr_b32 s{sH}, s{sSID}, 2')
    A(f's_and_b32 s{sCQ}, s{sU}, 3')
    A('v_lshlrev_b32 v29, 13, v2')
    A('v_lshlrev_b32 v17, 1, v2')
    A('v_xor_b32 v17, v17, v1')
    A('v_lshl_add_u32 v17, v17, 4, v29')
    A('v_xor_b32 v18, 128, v17')
    A(f's_lshl_b32 s{sT3}, s{sCQ}, 20')
    A(f's_lshl_b32 s{sT4}, s{sW}, 17')
    A(f's_add_u32 s{sT3}, s{sT3}, s{sT4}')
    A(f's_lshl_b32 s{sT4}, s{sH}, 8')
    A(f's_add_u32 s{sT3}, s{sT3}, s{sT4}')
    A(f's_lshl_b32 s{sT4}, s{sW}, 12')
    A(f's_and_b32 s{sT5}, s{sW}, 1')
    A(f's_lshl_b32 s{sT5}, s{sT5}, 3')
    A('v_xor_b32 v31, v1, v2')
    A(f'v_xor_b32 v31, s{sT5}, v31')
    A('v_lshl_add_u32 v30, v31, 4, v29')
    A('v_xor_b32 v31, 64, v30')
    code_prefetch(19)
    A('v_lshlrev_b32 v27, 3, v3')
    A(f's_lshl_b32 s{sT2}, s{sSID}, 12')
    A(f's_add_u32 s{sT2}, s{sT2}, {Q2}')
    A('s_waitcnt lgkmcnt(0)')
    TF(3)
    A(f'buffer_load_dwordx4 v[12:15], v16, {srd(sX_)}, 0 offen')
    A(f'buffer_load_dwordx2 v[64:65], v27, {srd(sWS)}, s{sT2} offen sc1')
    if CFG.get('svc_wait', 0):
        A('s_waitcnt vmcnt(0)')
    for i in range(4):
        A(f's_add_u32 s{sT0}, s{sT3}, {4 * 8192 * i}')
        A(f's_add_u32 m0, s{sT4}, {L_WQ + 1024 * i}')
        dma(17 + (i >> 1), sWQ, f's{sT0}')
    for i in range(4):
        A(f's_add_u32 s{sT0}, s{sT3}, {4 * 8192 * i}')
        A(f's_add_u32 m0, s{sT4}, {1024 * i}')
        dma(30 + (i >> 1), sWUK, f's{sT0}')
    TF(4)
    A('s_branch L_svc')


def service_pre():
    A('L_svc:')
    late_ptrs(sWUV, sWO, sOUT)
    A(f's_mov_b32 s{sPE}, 0x05040100')
    A(f's_mov_b32 s{sPO}, 0x07060302')
    A(f'v_lshrrev_b32 v{VR16}, 2, v0')
    A('v_and_b32 v18, 3, v0')
    A('v_lshlrev_b32 v18, 4, v18')
    A('v_lshrrev_b32 v17, 2, v1')
    A('v_and_b32 v19, 3, v1')
    A('v_lshl_add_u32 v28, v2, 3, v17')
    A(f'v_lshlrev_b32 v{VTR}, 6, v28')
    A(f'v_lshl_add_u32 v{VTR}, v19, 3, v{VTR}')
    A('v_lshlrev_b32 v36, 8, v28')
    A('v_lshl_add_u32 v36, v19, 3, v36')
    A('v_and_b32 v37, 1, v2')
    A('v_lshl_add_u32 v37, v37, 2, v17')
    A(f'v_xor_b32 v37, s{sW}, v37')
    A('v_lshl_add_u32 v36, v37, 5, v36')
    A(f's_lshl_b32 s{sT2}, s{sW}, 5')
    A('v_and_b32 v19, 7, v1')
    A('v_mov_b32 v37, 272')
    A('v_bfe_u32 v28, v0, 2, 3')
    A('v_and_b32 v21, 3, v0')
    A('v_lshrrev_b32 v22, 5, v0')
    A('v_lshl_add_u32 v22, v21, 1, v22')
    A('v_mul_u32_u24 v20, 272, v28')
    A('v_lshl_add_u32 v20, v22, 2, v20')
    A(f'v_add_u32 v20, s{sT2}, v20')
    A('v_lshlrev_b32 v21, 10, v28')
    A('v_lshl_add_u32 v21, v22, 2, v21')
    A(f's_lshl_b32 s{sT3}, s{sCQ}, 8')
    A(f's_add_u32 s{sT3}, s{sT3}, s{sT2}')
    A(f'v_add_u32 v21, s{sT3}, v21')
    A('v_mul_u32_u24 v22, 272, v19')
    A('v_lshrrev_b32 v28, 3, v1')
    A('v_lshl_add_u32 v22, v28, 6, v22')
    A('v_lshl_add_u32 v22, v2, 4, v22')
    A('v_lshlrev_b32 v17, 3, v0')
    A('v_lshlrev_b32 v23, 6, v19')
    A('v_lshl_add_u32 v23, v2, 4, v23')
    A('s_waitcnt lgkmcnt(0)')
    make_tag()
    A(f's_getreg_b32 s{sXID}, hwreg(HW_REG_XCC_ID)')
    A(f's_not_b32 s{sT3}, s{sE}')
    A(f's_xor_b32 s{sXID}, s{sT3}, s{sXID}')
    sk = lab('noxid')
    A(f's_cmp_lg_u32 s{sW}, 0')
    A(f's_cbranch_scc1 {sk}')
    A(f'v_mov_b32 v66, s{sE}')
    A(f'v_mov_b32 v67, s{sXID}')
    A(f's_lshl_b32 s{sT3}, s{sSID}, 7')
    A(f's_add_u32 s{sT3}, s{sT3}, {XID}')
    exec_set(0xffff, 0)
    A(f'buffer_store_dwordx2 v[66:67], v17, {srd(sWS)}, s{sT3} offen sc1')
    exec_all()
    A('s_waitcnt vmcnt(9)')
    A(f'{sk}:')
    A('s_waitcnt vmcnt(9)')
    TF(6)
    unpack(96, 12, 4)
    layernorm_rows(96, 72, 84)
    A(f'ds_write_b128 v16, v[84:87] offset:{L_XN}')
    TF(8)
    A('s_waitcnt lgkmcnt(0)')
    tagbytes(24)
    for r in range(4):
        A(f'v_bfe_u32 v{12 + r}, s{sE}, {8 * r}, 8')
    A(f's_lshl_b32 s{sT0}, s{sCQ}, {MSH + 4}')
    A(f's_lshl_b32 s{sT1}, s{sW}, {MSH + 1}')
    A(f's_add_u32 s{sT0}, s{sT0}, s{sT1}')
    A(f's_add_u32 s{sT0}, s{sT0}, {MOD1}')
    A(f's_add_u32 s{sT1}, s{sT0}, {64 << MSH}')
    A('v_and_b32 v26, 31, v0')
    A('v_lshlrev_b32 v26, 4, v26')
    A('v_lshrrev_b32 v28, 5, v0')
    A('v_lshl_add_u32 v39, v28, 12, v26')
    A(f'v_lshl_add_u32 v26, v28, {MSH}, v26')
    def ld1():
        A(f'buffer_load_dwordx4 v[64:67], v26, {srd(sWS)}, s{sT0} offen sc1')
        A(f'buffer_load_dwordx4 v[68:71], v26, {srd(sWS)}, s{sT1} offen sc1')

    def first():
        ld1()
        A('v_lshlrev_b32 v30, 7, v2')
        A(f's_lshl_b32 s{sLOC}, s{sH}, 9')
        A(f's_add_u32 s{sLOC}, s{sLOC}, {XID}')
        A(f'buffer_load_dwordx2 v[90:91], v30, {srd(sWS)}, s{sLOC} offen sc1')
    if CFG.get('hh', 1):
        sk = lab('nohh')
        A(f's_cmp_ge_u32 s{sW}, 2')
        A(f's_cbranch_scc1 {sk}')
        A(f's_lshl_b32 s{sT2}, s{sW}, 2')
        A(f's_add_u32 s{sT2}, s{sT2}, s{sCQ}')
        A(f's_lshl_b32 s{sT2}, s{sT2}, 4')
        A(f's_and_b32 s{sT3}, s{sH}, 15')
        A(f's_add_u32 s{sT2}, s{sT2}, s{sT3}')
        A(f's_lshl_b32 s{sT2}, s{sT2}, {MSH}')
        A(f's_add_u32 s{sT2}, s{sT2}, {MOD1 + 512}')
        A(f's_waitcnt vmcnt({CFG.get("hhw", 0)})')
        hint_wait(sT2, sT3)
        A(f'{sk}:')
    hp = CFG.get('hpre', -1)
    if hp >= 0:
        A(f's_waitcnt vmcnt({hp})')
        A('s_barrier')
        first()
        A('s_waitcnt vmcnt(3)')
    else:
        A('s_waitcnt vmcnt(0)')
    TF(10)
    A('s_barrier')
    TS(1)
    if hp < 0:
        first()
    A(f'ds_read_b32 v84, v21 offset:{L_XN}')
    A(f'v_add_u32 v30, {L_WQ}, v36')
    for t in range(4):
        for eh in range(2):
            A(f'ds_read_b64_tr_b16 {v2(96 + 4 * t + 2 * eh)}, v30 offset:{t * 8192 + eh * 1024}')
    A(f's_lshl_b32 s{sT2}, s{sSID}, 12')
    A(f's_lshl_b32 s{sT3}, s{sW}, 9')
    A(f's_add_u32 s{sT2}, s{sT2}, s{sT3}')
    A(f's_add_u32 s{sT2}, s{sT2}, {Q2}')
    A(f's_mov_b32 s{sT4}, 0xff')
    A('s_waitcnt lgkmcnt(0)')
    unpack(88, 84, 1)
    poll8(ld1, 64, 12, CFG.get('sl_h', 1), first_issued=True, ntg=4)
    TS(2)
    for p in (68, 69, 64, 65):
        A(f'v_permlane32_swap_b32 v{p}, v{p + 2}')
    A('v_add_f32 v68, v68, v70')
    A('v_add_f32 v69, v69, v71')
    A('v_add_f32 v64, v64, v66')
    A('v_add_f32 v65, v65, v67')
    rne2(68, 69, 68, 69)
    rne2(64, 65, 64, 65)
    A('v_add_f32 v68, 1.0, v68')
    A('v_add_f32 v69, 1.0, v69')
    rne2(68, 69, 68, 69)
    A('v_mul_f32 v68, v68, v88')
    A('v_mul_f32 v69, v69, v89')
    rne2(68, 69, 68, 69)
    A('v_add_f32 v68, v68, v64')
    A('v_add_f32 v69, v69, v65')
    A('v_cvt_pk_bf16_f32 v68, v68, v69')
    A(f'ds_write_b32 v20, v68 offset:{L_H}')
    A('s_waitcnt lgkmcnt(0)')
    A('s_barrier')
    A(f'ds_read_b128 v[64:67], v22 offset:{L_H}')
    A(f'ds_read_b128 v[68:71], v22 offset:{L_H + 128}')
    A(f'v_xor_b32 v90, s{sE}, v90')
    A(f'v_xor_b32 v91, s{sXID}, v91')
    A('v_or_b32 v90, v90, v91')
    A('v_cmp_ne_u32 vcc, 0, v90')
    A(f's_lshl_b32 s{sT0}, s{sH}, 14')
    A(f's_add_u32 s{sT0}, s{sT0}, s{sT3}')
    A(f's_add_u32 s{sT0}, s{sT0}, {Q2}')
    A('v_add_u32 v28, 4096, v17')
    A(f's_add_u32 s{sT1}, s{sT0}, 8192')
    A('s_waitcnt lgkmcnt(1)')
    A('v_mfma_f32_16x16x32_bf16 v[112:115], v[96:99], v[64:67], 0')
    A('v_mfma_f32_16x16x32_bf16 v[116:119], v[100:103], v[64:67], 0')
    A('s_waitcnt lgkmcnt(0)')
    A('v_mfma_f32_16x16x32_bf16 v[112:115], v[104:107], v[68:71], v[112:115]')
    A('v_mfma_f32_16x16x32_bf16 v[116:119], v[108:111], v[68:71], v[116:119]')
    for r in range(4):
        A(f'v_add_f32_dpp v{112 + r}, v{116 + r}, v{112 + r} row_ror:8 {DPPM}')
    for r in range(4):
        A(f'v_bfi_b32 v{112 + r}, s{sT4}, v{12 + r}, v{112 + r}')
    exec_set(0x00ff00ff, 0x00ff00ff)
    far, dn = lab('far'), lab('dn')
    if CFG.get('noloc', 0):
        A(f's_branch {far}')
    A(f's_cbranch_vccnz {far}')
    A(f'buffer_store_dwordx4 v[112:115], v23, {srd(sWS)}, s{sT2} offen')
    A(f's_branch {dn}')
    A(f'{far}:')
    A(f'buffer_store_dwordx4 v[112:115], v23, {srd(sWS)}, s{sT2} offen sc1')
    A(f'{dn}:')
    exec_all()
    TS(3)
    sk_ = lab('nouk')
    A(f's_cmp_ge_u32 s{sW}, 4')
    A(f's_cbranch_scc1 {sk_}')
    A('v_lshrrev_b32 v40, 2, v1')
    A('v_and_b32 v41, 3, v1')
    A('v_lshl_add_u32 v40, v40, 3, v41')
    A('v_lshlrev_b32 v40, 8, v40')
    A(f's_and_b32 s{sT4}, s{sW}, 3')
    A(f's_lshl_b32 s{sT4}, s{sT4}, 13')
    A(f'v_add_u32 v40, s{sT4}, v40')
    A('v_xor_b32 v41, v1, v2')
    for t in range(4):
        A(f'v_xor_b32 v42, {4 * t}, v41')
        A('v_lshl_add_u32 v42, v42, 4, v40')
        for tau in range(2):
            A(f'ds_read_b128 {v4(128 + 16 * tau + 4 * t)}, v42 offset:{1024 * tau}')
    A(f'{sk_}:')
    A('v_lshlrev_b32 v30, 15, v19')
    A('v_lshl_add_u32 v30, v2, 4, v30')
    A(f's_lshr_b32 s{sT5}, s{sH}, 4')
    A(f's_lshl_b32 s{sT5}, s{sT5}, 14')
    A(f's_lshl_b32 s{sT2}, s{sCQ}, 12')
    A(f's_add_u32 s{sT5}, s{sT5}, s{sT2}')
    A(f's_lshl_b32 s{sT2}, s{sW}, 10')
    A(f's_add_u32 s{sT5}, s{sT5}, s{sT2}')
    A(f's_and_b32 s{sT2}, s{sH}, 15')
    A(f's_lshl_b32 s{sT2}, s{sT2}, 6')
    A(f's_add_u32 s{sT5}, s{sT5}, s{sT2}')
    A(f's_add_u32 s{sT5}, s{sT5}, {QA}')

    def ld2():
        A(f'buffer_load_dwordx4 v[64:67], v39, {srd(sWS)}, s{sT0} offen sc1')
        A(f'buffer_load_dwordx4 v[68:71], v39, {srd(sWS)}, s{sT1} offen sc1')
    poll8(ld2, 64, 12, 0, pre_sleep=CFG.get('sl_q2', 1), ntg=4)
    TS(4)
    for r in range(4):
        A(f'v_add_f32 v{64 + r}, v{64 + r}, v{68 + r}')
    A('v_permlane32_swap_b32 v64, v66')
    A('v_permlane32_swap_b32 v65, v67')
    A('v_add_f32 v64, v64, v66')
    A('v_add_f32 v65, v65, v67')
    A('v_cvt_pk_bf16_f32 v64, v64, v65')
    A(f'ds_write_b32 v20, v64 offset:{L_QL}')
    A('s_waitcnt lgkmcnt(0)')
    A('s_barrier')
    if CFG.get('flag_at', 0) == 0:
        pub_flag(4)
    sk = lab('nop3')
    A(f's_cmp_ge_u32 s{sW}, 4')
    A(f's_cbranch_scc1 {sk}')
    A(f'ds_read_b128 v[64:67], v22 offset:{L_QL}')
    A(f'ds_read_b128 v[68:71], v22 offset:{L_QL + 128}')
    A('s_waitcnt lgkmcnt(0)')
    for tau in range(2):
        A(f'v_mfma_f32_16x16x32_bf16 {v4(96 + 8 * tau)}, {v4(128 + 16 * tau)}, v[64:67], 0')
        A(f'v_mfma_f32_16x16x32_bf16 {v4(100 + 8 * tau)}, {v4(132 + 16 * tau)}, v[64:67], 0')
    for tau in range(2):
        A(f'v_mfma_f32_16x16x32_bf16 {v4(96 + 8 * tau)}, {v4(136 + 16 * tau)}, v[68:71], {v4(96 + 8 * tau)}')
        A(f'v_mfma_f32_16x16x32_bf16 {v4(100 + 8 * tau)}, {v4(140 + 16 * tau)}, v[68:71], {v4(100 + 8 * tau)}')
    for tau in range(2):
        for r in range(4):
            A(f'v_add_f32_dpp v{96 + 8 * tau + r}, v{100 + 8 * tau + r}, v{96 + 8 * tau + r} row_ror:8 {DPPM}')
    for tau in range(2):
        for i in range(2):
            A(f'v_cvt_pk_bf16_f32 v{72 + 2 * tau + i}, v{96 + 8 * tau + 2 * i}, v{97 + 8 * tau + 2 * i}')
    exec_set(0x00ff00ff, 0x00ff00ff)
    A(f'buffer_store_dwordx4 v[72:75], v30, {srd(sWS)}, s{sT5} offen sc1')
    exec_all()
    if CFG.get('flag_at', 0) == 2:
        A('s_waitcnt vmcnt(0)')
    if CFG.get('flag_at', 0) >= 1:
        pub_flag(3)
    A(f'{sk}:')
    TS(5)
    A('s_barrier')
    def wo_dma():
        A(f's_lshl_b32 s{sWB}, s{sU}, 2')
        A(f's_add_u32 s{sWB}, s{sWB}, s{sW}')
        A(f's_and_b32 s{sWB}, s{sWB}, 7')
        A('v_lshrrev_b32 v17, 3, v0')
        A('v_lshlrev_b32 v17, 10, v17')
        A('v_add_u32 v17, v17, v95')
        A('v_xor_b32 v18, 64, v17')
        A(f's_lshl_b32 s{sT1}, s{sXC}, 19')
        A(f's_lshl_b32 s{sT2}, s{sWB}, 16')
        A(f's_add_u32 s{sT1}, s{sT1}, s{sT2}')
        A(f's_lshr_b32 s{sT2}, s{sU}, 1')
        A(f's_xor_b32 s{sT2}, s{sT2}, {CFG.get("nsx", 4)}')
        A(f's_lshl_b32 s{sT2}, s{sT2}, 7')
        A(f's_add_u32 s{sT1}, s{sT1}, s{sT2}')
        A(f's_lshl_b32 s{sT2}, s{sW}, 13')
        A(f's_add_u32 s{sT2}, s{sT2}, {L_WO}')
        A(f'v_add_u32 v{VWOA}, s{sT2}, v{VWOA}')
        for i in range(8):
            dma(17 + (i & 1), sWO, f's{sT1}', lds_s=sT2)
            if i < 7:
                A(f's_add_u32 s{sT1}, s{sT1}, {8 * 1024}')
                A(f's_add_u32 s{sT2}, s{sT2}, 1024')

    def wait_fk():
        sk = lab('nofk')
        A(f's_cmp_lg_u32 s{sW}, 0')
        A(f's_cbranch_scc1 {sk}')
        A(f's_lshl_b32 s{sT0}, s{sSID}, 7')
        A(f's_add_u32 s{sT0}, s{sT0}, {FK}')
        top, done = lab('poll'), lab('pdone')
        A(f's_mov_b32 s{sCNT}, {CFG["poll_max"]}')
        A(f'{top}:')
        A(f's_load_dword s{sT2}, s[{sWS}:{sWS + 1}], s{sT0} glc')
        A('s_waitcnt lgkmcnt(0)')
        A(f's_cmp_eq_u32 s{sT2}, s{sE}')
        A(f's_cbranch_scc1 {sk}')
        A('s_sleep 4')
        A(f's_sub_u32 s{sCNT}, s{sCNT}, 1')
        A(f's_cbranch_scc0 {top}')
        A(f'{sk}:')
        A('s_barrier')
    def kv_pf():
        npf = CFG.get('npf', 0)
        if npf:
            srd_tail(sKV)
            A('v_lshlrev_b32 v119, 7, v3')
            if npf == 1:
                A('v_min_u32 v119, 0x7f80, v119')
            A(f's_lshl_b32 s{sT3}, s{sSID}, 18')
            A(f's_add_u32 s{sT3}, s{sT3}, {(8 - npf) * 32768}')
            A(f'buffer_load_dword v119, v119, {srd(sKV)}, s{sT3} offen')
    if CFG.get('npfat', 0) == 0:
        kv_pf()
    A(f's_lshl_b32 s{sT0}, s{sCQ}, 8')
    A(f's_lshr_b32 s{sT1}, s{sW}, 2')
    A(f's_lshl_b32 s{sT1}, s{sT1}, 7')
    A(f's_add_u32 s{sT0}, s{sT0}, s{sT1}')
    A(f'buffer_load_dwordx4 v[8:11], v4, {srd(sC)}, s{sT0} offen')
    A('v_and_b32 v30, 1, v0')
    A('v_lshlrev_b32 v30, 7, v30')
    A(f's_lshl_b32 s{sT1}, s{sXC}, 11')
    A(f's_lshl_b32 s{sT2}, s{sW}, 8')
    A(f's_add_u32 s{sT1}, s{sT1}, s{sT2}')
    A(f's_add_u32 s{sT1}, s{sT1}, {XID}')
    A(f'buffer_load_dwordx2 v[90:91], v30, {srd(sWS)}, s{sT1} offen sc1')
    A('v_and_b32 v95, 1, v2')
    A('v_lshlrev_b32 v95, 1, v95')
    A('v_xor_b32 v95, v95, v19')
    A('v_lshlrev_b32 v95, 4, v95')
    A('v_lshrrev_b32 v28, 3, v0')
    A('v_mul_u32_u24 v28, 6144, v28')
    A('v_add_u32 v28, v28, v95')
    A('v_xor_b32 v29, 64, v28')
    A(f's_lshl_b32 s{sT1}, s{sCQ}, 3')
    A(f's_add_u32 s{sT1}, s{sT1}, s{sW}')
    A(f's_mul_i32 s{sT1}, s{sT1}, {16 * 6144}')
    A(f's_lshl_b32 s{sT2}, s{sH}, 7')
    A(f's_add_u32 s{sT1}, s{sT1}, s{sT2}')
    A(f's_add_u32 s{sT1}, s{sT1}, 2048')
    A(f's_lshl_b32 s{sT2}, s{sW}, 11')
    A(f's_add_u32 s{sT2}, s{sT2}, {L_WML}')
    if CFG.get('lw', 0) == 1:
        A('s_waitcnt vmcnt(0)')
    dma(28, sWM, f's{sT1}', lds_s=sT2, pol=NTW)
    A(f's_add_u32 s{sT1}, s{sT1}, {8 * 6144}')
    A(f's_add_u32 s{sT2}, s{sT2}, 1024')
    dma(29, sWM, f's{sT1}', lds_s=sT2, pol=NTW)
    A('v_and_b32 v38, 3, v1')
    A('v_bfe_u32 v37, v1, 2, 1')
    A('v_lshlrev_b32 v37, 12, v37')
    A('v_lshl_add_u32 v37, v38, 5, v37')
    A('v_lshl_add_u32 v37, v2, 3, v37')
    A(f's_lshl_b32 s{sCX}, s{sH}, 13')
    A(f's_lshl_b32 s{sT2}, s{sCQ}, 10')
    A(f's_add_u32 s{sCX}, s{sCX}, s{sT2}')
    A(f's_lshl_b32 s{sT2}, s{sW}, 7')
    A(f's_add_u32 s{sCX}, s{sCX}, s{sT2}')
    A(f's_add_u32 s{sCX}, s{sCX}, {CTX}')
    A(f'buffer_load_dwordx2 v[92:93], v37, {srd(sWS)}, s{sCX} offen sc1')
    if CFG.get('lw', 0) == 2:
        A('s_waitcnt vmcnt(0)')
    wuv_dma(range(4), wave_s=sW, nwaves=8, vt=28)
    A('v_lshrrev_b32 v28, 2, v1')
    A('v_lshl_add_u32 v28, v2, 3, v28')
    A(f'v_lshlrev_b32 v{VWOA}, 7, v28')
    A(f'v_lshl_add_u32 v{VWOA}, v38, 3, v{VWOA}')
    A('v_bfe_u32 v28, v1, 3, 1')
    A(f'v_lshl_add_u32 v{VWOA}, v28, 5, v{VWOA}')
    A('v_and_b32 v28, 1, v2')
    A(f'v_lshl_add_u32 v{VWOA}, v28, 6, v{VWOA}')
    A(f's_lshr_b32 s{sT2}, s{sW}, 2')
    A(f's_lshl_b32 s{sT2}, s{sT2}, 13')
    A(f's_add_u32 s{sT2}, s{sT2}, {L_WML}')
    A(f's_and_b32 s{sT3}, s{sW}, 3')
    A(f's_lshl_b32 s{sT3}, s{sT3}, 5')
    A(f'v_xor_b32 v28, s{sT3}, v{VWOA}')
    A(f'v_add_u32 v28, s{sT2}, v28')
    A('v_mov_b32 v122, v24')
    A('v_mov_b32 v123, v25')
    A('s_waitcnt vmcnt(7)')
    silu_frag()
    A(f'v_xor_b32 v90, s{sE}, v90')
    A(f'v_xor_b32 v91, s{sXID}, v91')
    A('v_or_b32 v90, v90, v91')
    A('v_and_b32 v91, 1, v0')
    A(f's_lshl_b32 s{sT2}, s{sW}, 3')
    A(f's_add_u32 s{sT2}, s{sT2}, {L_XOK}')
    A(f'v_lshl_add_u32 v91, v91, 2, s{sT2}')
    A('ds_write_b32 v91, v90')
    A('s_waitcnt vmcnt(5) lgkmcnt(0)')
    A('s_barrier')
    for hf in range(2):
        for eh in range(2):
            A(f'ds_read_b64_tr_b16 {v2(64 + 4 * hf + 2 * eh)}, v28 offset:{hf * 4096 + eh * 512}')
    A('v_lshlrev_b32 v91, 2, v1')
    A(f'v_add_u32 v91, {L_XOK}, v91')
    A('ds_read_b32 v90, v91')
    A(f's_lshl_b32 s{sT2}, s{sSID}, 12')
    A(f's_lshl_b32 s{sT3}, s{sW}, 9')
    A(f's_add_u32 s{sT2}, s{sT2}, s{sT3}')
    A(f's_add_u32 s{sT2}, s{sT2}, {M2}')
    A(f's_mov_b32 s{sT4}, 0xff')
    A('s_waitcnt lgkmcnt(0)')
    A('v_mfma_f32_16x16x32_bf16 v[72:75], v[64:67], v[24:27], 0')
    A('v_mfma_f32_16x16x32_bf16 v[76:79], v[68:71], v[24:27], 0')
    A('v_cmp_ne_u32 vcc, 0, v90')
    A(f's_or_b32 s{sLOC}, vcc_lo, vcc_hi')
    for r in range(4):
        A(f'v_add_f32_dpp v{72 + r}, v{76 + r}, v{72 + r} row_ror:8 {DPPM}')
    for r in range(4):
        A(f'v_bfi_b32 v{72 + r}, s{sT4}, v{12 + r}, v{72 + r}')
    exec_set(0x00ff00ff, 0x00ff00ff)
    A(f'buffer_store_dwordx4 v[72:75], v23, {srd(sWS)}, s{sT2} offen sc1')
    exec_all()
    if CFG.get('npfat', 0) == 1:
        kv_pf()
    wo_dma()
    if CFG.get('pfw', 1):
        A(f's_load_dwordx2 s[{sWQ}:{sWQ + 1}], s[0:1], 56')
        A(f's_load_dwordx2 s[{sWUK}:{sWUK + 1}], s[0:1], 64')
        A(f's_mov_b32 s{sWQ + 2}, {SIZES[sW1]}')
        A(f's_mov_b32 s{sWUK + 2}, {SIZES[sW2]}')
        A('v_and_b32 v120, 31, v3')
        A('v_mul_u32_u24 v120, 3584, v120')
        A('v_lshrrev_b32 v121, 5, v3')
        A('v_min_u32 v121, 3, v121')
        A('v_lshl_add_u32 v120, v121, 7, v120')
        A('v_add_u32 v120, 60, v120')
        A(f's_mul_i32 s{sT1}, s{sU}, {32 * 3584}')
        A(f's_mul_i32 s{sT2}, s{sXC}, 448')
        A(f's_add_u32 s{sT1}, s{sT1}, s{sT2}')
        A('v_subrev_u32 v121, 128, v3')
        A('v_min_u32 v121, 111, v121')
        A('v_lshlrev_b32 v121, 7, v121')
        A(f's_mul_i32 s{sT2}, s{sSID}, {112 * 128}')
        A('s_waitcnt lgkmcnt(0)')
        l2, l3 = lab('pf2'), lab('pf3')
        A(f's_cmp_ge_u32 s{sW}, 2')
        A(f's_cbranch_scc1 {l2}')
        A(f'buffer_load_dword v94, v120, {srd(sWQ)}, s{sT1} offen')
        A(f's_branch {l3}')
        A(f'{l2}:')
        A(f'buffer_load_dword v94, v121, {srd(sWUK)}, s{sT2} offen')
        A(f'{l3}:')
    sk = lab('nopubm')
    A(f's_cmp_lg_u32 s{sW}, 1')
    A(f's_cbranch_scc1 {sk}')
    A('v_lshlrev_b32 v30, 3, v0')
    A('v_add_u32 v31, 4096, v30')
    A(f's_lshl_b32 s{sT0}, s{sH}, 14')
    A(f's_lshl_b32 s{sT1}, s{sCQ}, 9')
    A(f's_add_u32 s{sT0}, s{sT0}, s{sT1}')
    A(f's_add_u32 s{sT0}, s{sT0}, {M2}')
    A(f's_add_u32 s{sT1}, s{sT0}, 8192')
    for half in range(2):
        def ldm2():
            for k in range(4):
                A(f'buffer_load_dwordx2 {v2(64 + 16 * half + 2 * k)}, v{30 + (k & 1)}, {srd(sWS)}, s{sT0 + (k >> 1)} offen offset:{2048 * half} sc1')
        ldm2()
    for half in range(2):
        def ldm2():
            for k in range(4):
                A(f'buffer_load_dwordx2 {v2(64 + 16 * half + 2 * k)}, v{30 + (k & 1)}, {srd(sWS)}, s{sT0 + (k >> 1)} offen offset:{2048 * half} sc1')
        poll8(ldm2, 64 + 16 * half, 122, 2, first_issued=True)
    for i in range(8):
        A(f'v_add_f32 v{64 + i}, v{64 + i}, v{80 + i}')
    tree_add(64, 8, 2)
    A('v_lshrrev_b32 v31, 3, v0')
    A('v_lshlrev_b32 v31, 10, v31')
    A('v_lshl_add_u32 v31, v19, 2, v31')
    A(f's_lshr_b32 s{sT2}, s{sSID}, 5')
    A(f's_lshl_b32 s{sT1}, s{sT2}, 13')
    A(f's_and_b32 s{sT3}, s{sSID}, 31')
    A(f's_lshl_b32 s{sT3}, s{sT3}, 5')
    A(f's_add_u32 s{sT1}, s{sT1}, s{sT3}')
    A(f's_add_u32 s{sT1}, s{sT1}, {MODL}')
    A(f's_cmp_eq_u32 s{sT2}, 2')
    A(f's_cselect_b32 s{sT2}, 1.0, 0')
    rne2(64, 65, 64, 65)
    A(f'v_add_f32 v64, s{sT2}, v64')
    A(f'v_add_f32 v65, s{sT2}, v65')
    A('v_cvt_pk_bf16_f32 v64, v64, v65')
    A(f'buffer_store_dword v64, v31, {srd(sWS)}, s{sT1} offen sc1')
    A(f'{sk}:')
    A(f's_waitcnt vmcnt({8 + CFG.get("pfw", 1)})')
    A('s_barrier')


def wuv_dma(idx, wave_s, nwaves, vt):
    per = 32 // nwaves
    A(f'v_and_b32 v{vt}, 1, v2')
    A(f'v_lshlrev_b32 v{vt}, 18, v{vt}')
    A(f'v_lshrrev_b32 v{vt + 1}, 1, v2')
    A(f'v_lshl_add_u32 v{vt}, v{vt + 1}, 17, v{vt}')
    A(f'v_lshlrev_b32 v{vt + 1}, 1, v2')
    A(f'v_xor_b32 v{vt + 1}, v{vt + 1}, v1')
    A(f'v_lshl_add_u32 v{vt}, v{vt + 1}, 4, v{vt}')
    A(f'v_xor_b32 v{vt + 1}, 128, v{vt}')
    A(f's_lshl_b32 s{sT1}, s{sCQ}, 20')
    A(f's_mul_i32 s{sT2}, s{wave_s}, {per // 2 * 8192}')
    A(f's_add_u32 s{sT1}, s{sT1}, s{sT2}')
    A(f's_lshl_b32 s{sT2}, s{sH}, 8')
    A(f's_add_u32 s{sT1}, s{sT1}, s{sT2}')
    A(f's_mul_i32 s{sT2}, s{wave_s}, {per * 1024}')
    assert L_WUV == 0
    for i in idx:
        A(f's_add_u32 s{sT3}, s{sT1}, {((i & 1) * 64 + (i >> 1)) * 8192}')
        A(f's_add_u32 s{sT4}, s{sT2}, {i * 1024}')
        dma(vt + ((i >> 1) & 1), sWUV, f's{sT3}', lds_s=sT4)


def t1():
    _late[0] = 0
    A('v_and_b32 v38, 3, v1')
    A('v_lshlrev_b32 v32, 10, v2')
    A('v_lshl_add_u32 v32, v1, 4, v32')
    A(f's_lshl_b32 s{sT0}, s{sSID}, 15')
    A(f's_lshl_b32 s{sT1}, s{sW}, 12')
    A(f's_add_u32 s{sT0}, s{sT0}, s{sT1}')
    A(f's_add_u32 s{sT0}, s{sT0}, {OP}')
    A(f's_lshl_b32 s{sT2}, s{sW}, 8')
    A(f's_add_u32 s{sT2}, s{sT2}, {L_WT}')
    A('v_and_b32 v33, 1, v1')
    A('v_lshlrev_b32 v33, 5, v33')
    A('v_lshl_add_u32 v33, v2, 3, v33')
    A(f'v_add_u32 v33, s{sT2}, v33')
    A('v_lshlrev_b32 v44, 5, v2')
    A('v_lshl_add_u32 v44, v1, 1, v44')
    A(f'v_add_u32 v44, s{sT2}, v44')
    A(f's_mul_i32 s{sT2}, s{sW}, 272')
    A(f's_add_u32 s{sT2}, s{sT2}, {L_CC}')
    A('v_lshlrev_b32 v34, 4, v1')
    A(f'v_add_u32 v34, s{sT2}, v34')
    A('v_mul_u32_u24 v35, 272, v19')
    A('v_lshl_add_u32 v35, v2, 4, v35')
    A(f'v_add_u32 v35, {L_CC}, v35')
    for t in range(4):
        for eh in range(2):
            A(f'ds_read_b64_tr_b16 {v2(112 + 4 * t + 2 * eh)}, v36 offset:{L_WUV + t * 8192 + eh * 1024}')
    A('v_lshlrev_b32 v49, 3, v38')
    A(f'v_lshrrev_b32 v49, v49, s{sE}')
    for k in range(4):
        A(f'v_bfe_u32 v{8 + k}, v49, {2 * k}, 1')
        A(f'v_bfe_u32 v48, v49, {2 * k + 1}, 1')
        A(f'v_lshl_or_b32 v{8 + k}, v48, 16, v{8 + k}')
    if CFG.get('stl', 0):
        A('v_lshlrev_b32 v39, 5, v1')
        A(f's_lshl_b32 s{sT2}, s{sXC}, 12')
        A(f's_lshl_b32 s{sT3}, s{sW}, 9')
        A(f's_add_u32 s{sT2}, s{sT2}, s{sT3}')
        A(f's_and_b32 s{sT3}, s{sH}, 3')
        A(f's_lshl_b32 s{sT3}, s{sT3}, 3')
        A(f's_add_u32 s{sT2}, s{sT2}, s{sT3}')
        A(f's_add_u32 s{sT2}, s{sT2}, {STATS}')
    else:
        A('v_lshlrev_b32 v39, 8, v1')
        A(f's_lshl_b32 s{sT2}, s{sW}, 12')
        A(f's_lshl_b32 s{sT3}, s{sH}, 3')
        A(f's_add_u32 s{sT2}, s{sT2}, s{sT3}')
        A(f's_add_u32 s{sT2}, s{sT2}, {STATS}')
    t2_setup()
    if CFG.get('st1', 1):
        A(f's_waitcnt vmcnt({CFG.get("st1w", 4)})')
        A(f'buffer_load_dwordx2 v[40:41], v39, {srd(sWS)}, s{sT2} offen sc1')
    A('s_waitcnt vmcnt(0)')
    for nt in range(4):
        A(f'v_xor_b32 v47, {nt * 32}, v{VWOA}')
        for t in range(2):
            for eh in range(2):
                A(f'ds_read_b64_tr_b16 {v2(VWO + 16 * t + 4 * nt + 2 * eh)}, v47 offset:{t * 4096 + eh * 512}')
    TS(6)
    lst = lambda: A(f'buffer_load_dwordx2 v[40:41], v39, {srd(sWS)}, s{sT2} offen sc1')

    def ldd():
        for e in range(4):
            A(f'buffer_load_dwordx4 {v4(64 + 4 * e)}, v32, {srd(sWS)}, s{sT0} offen offset:{256 * e} sc1')
    if CFG.get('db', -1) >= 0:
        A('v_lshlrev_b32 v41, 2, v1')
        A(f's_lshl_b32 s{sT3}, s{sXC}, 10')
        A(f's_lshl_b32 s{sT4}, s{sW}, 7')
        A(f's_add_u32 s{sT3}, s{sT3}, s{sT4}')
        A(f's_add_u32 s{sT3}, s{sT3}, {DBR}')
        poll(lambda: A(f'buffer_load_dword v40, v41, {srd(sWS)}, s{sT3} offen sc1'), None, 47, sleep=CFG.get('sl_st', 1),
             check=lambda: A(f'v_cmp_ne_u32 vcc, s{sE}, v40'))
        TS(7)
        if CFG.get('sl_op', 0):
            A(f's_sleep {CFG["sl_op"]}')
        lst()
        ldd()
        A('s_waitcnt vmcnt(4)')
        A('v_max_u32 v47, v40, v41')
        A('v_cmp_eq_u32 vcc, -1, v47')
        okst = lab('okst')
        A(f's_cbranch_vccz {okst}')
        poll(lst, [40, 41], 47, sleep=0)
        A(f'{okst}:')
    else:
        got = lab('gotst')
        if CFG.get('st1', 1):
            A('v_max_u32 v47, v40, v41')
            A('v_cmp_eq_u32 vcc, -1, v47')
            A(f's_cbranch_vccz {got}')
            A('v_cmp_ne_u32 vcc, -1, v47')
            full = lab('full')
            A(f's_cbranch_vccnz {full}')
        if CFG.get('st_stage', 1):
            A(f'v_mov_b32 v41, s{sU}')
            A(f'v_lshlrev_b32 v41, {5 if CFG.get("stl", 0) else 8}, v41')
            poll(lambda: A(f'buffer_load_dword v40, v41, {srd(sWS)}, s{sT2} offen sc1'), [40], 47, sleep=CFG.get('sl_st0', 4))
        if CFG.get('st_stage', 1):
            A('v_mov_b32 v40, -1')
        if CFG.get('st1', 1):
            A(f'{full}:')
        if CFG.get('mpoll', 1):
            top, done = lab('poll'), lab('pdone')
            A(f's_mov_b32 s{sCNT}, {CFG["poll_max"]}')
            A(f'{top}:')
            A('v_max_u32 v47, v40, v41')
            A('v_cmp_eq_u32 vcc, -1, v47')
            A(f's_cbranch_vccz {done}')
            A('s_mov_b64 exec, vcc')
            lst()
            exec_all()
            A('s_waitcnt vmcnt(0)')
            A(f's_sub_u32 s{sCNT}, s{sCNT}, 1')
            A(f's_cbranch_scc0 {top}')
            A(f'{done}:')
        else:
            poll(lst, [40, 41], 47, sleep=CFG.get('sl_st', 1))
        A(f'{got}:')
        TS(7)
        ldd()
    A('v_mov_b32 v42, v40')
    row_reduce('v_max_f32', [42])
    A('v_sub_f32 v40, v40, v42')
    A('v_exp_f32 v40, v40')
    A('v_mul_f32 v41, v41, v40')
    row_reduce('v_add_f32', [41])
    A('v_rcp_f32 v41, v41')
    A('v_and_b32 v47, 1, v2')
    A('v_cmp_eq_u32 vcc, 1, v47')
    A('v_mul_f32 v40, v40, v41')
    A('v_cvt_pk_bf16_f32 v42, v40, v40')
    A('v_and_b32 v43, 0xffff0000, v42')
    A('v_sub_f32 v40, v40, v43')
    A('v_cvt_pk_bf16_f32 v43, v40, v40')
    A('v_cndmask_b32 v42, v42, v43, vcc')
    A('ds_write_b16 v44, v42')
    A('s_waitcnt lgkmcnt(0)')
    A('ds_read_b64 v[52:53], v33')
    top, done = lab('poll'), lab('pdone')
    A(f's_mov_b32 s{sCNT}, {CFG["poll_max"]}')
    A(f'{top}:')
    A('s_waitcnt vmcnt(0)')
    for i in range(16):
        A(f'v_xor_b32 v{80 + i}, v{64 + i}, v{8 + (i & 3)}')
    A('v_or3_b32 v47, v80, v81, v82')
    A('v_or3_b32 v48, v83, v84, v85')
    A('v_or3_b32 v47, v47, v86, v87')
    A('v_or3_b32 v48, v48, v88, v89')
    A('v_or3_b32 v47, v47, v90, v91')
    A('v_or3_b32 v48, v48, v92, v93')
    A('v_or3_b32 v47, v47, v94, v95')
    A('v_or_b32 v47, v47, v48')
    A('v_and_b32 v47, 0x00010001, v47')
    A('v_cmp_ne_u32 vcc, 0, v47')
    A(f's_cbranch_vccz {done}')
    ldd()
    A(f's_sub_u32 s{sCNT}, s{sCNT}, 1')
    A(f's_cbranch_scc0 {top}')
    A('s_waitcnt vmcnt(0)')
    A(f'{done}:')
    TS(8)
    for z in range(8):
        for i in range(2):
            sel = sPO if z & 1 else sPE
            A(f'v_perm_b32 v{64 + 2 * z + i}, v{80 + 8 * i + 4 + (z >> 1)}, v{80 + 8 * i + (z >> 1)}, s{sel}')
        if z & 1:
            for i in range(2):
                A(f'v_or_b32 v{64 + 2 * z + i}, 0x00010001, v{64 + 2 * z + i}')
        if z == 1:
            A('s_waitcnt lgkmcnt(0)')
        if z >= 1:
            A(f'v_mfma_f32_16x16x16_bf16 {v4(128 + 4 * (z - 1))}, v[52:53], {v2(64 + 2 * (z - 1))}, 0')
    A(f'v_mfma_f32_16x16x16_bf16 {v4(128 + 28)}, v[52:53], {v2(64 + 14)}, 0')
    for z in range(8):
        A(f'v_add_f32 v{128 + 4 * z}, v{128 + 4 * z}, v{129 + 4 * z}')
    for i in range(4):
        A(f'v_cvt_pk_bf16_f32 v{80 + i}, v{128 + 8 * i}, v{132 + 8 * i}')
    exec_set(0xffff, 0)
    A('ds_write_b128 v34, v[80:83]')
    exec_all()
    A('s_waitcnt lgkmcnt(0)')
    A('s_barrier')
    for t in range(4):
        A(f'ds_read_b128 {v4(64 + 4 * t)}, v35 offset:{64 * t}')
    for t in range(4):
        A(f's_waitcnt lgkmcnt({3 - t})')
        c = '0' if t == 0 else 'v[84:87]'
        A(f'v_mfma_f32_16x16x32_bf16 v[84:87], {v4(112 + 4 * t)}, {v4(64 + 4 * t)}, {c}')
    A('v_cvt_pk_bf16_f32 v88, v84, v85')
    A('v_cvt_pk_bf16_f32 v89, v86, v87')
    exec_set(0x00ff00ff, 0x00ff00ff)
    far, dn = lab('far'), lab('dn')
    A(f's_cmp_lg_u32 s{sLOC}, 0')
    A(f's_cbranch_scc1 {far}')
    A(f'buffer_store_dwordx2 v[88:89], v37, {srd(sWS)}, s{sCX} offen')
    A(f's_branch {dn}')
    A(f'{far}:')
    A(f'buffer_store_dwordx2 v[88:89], v37, {srd(sWS)}, s{sCX} offen sc1')
    A(f'{dn}:')
    exec_all()
    TS(9)


def x1_from(o, x, ga, n, t):
    for i in range(0, n, 2):
        rne2(o + i, o + i + 1, o + i, o + i + 1)
    for i in range(n):
        A(f'v_mul_f32 v{o + i}, v{o + i}, v{ga + i}')
    for i in range(0, n, 2):
        rne2(o + i, o + i + 1, o + i, o + i + 1)
    for i in range(n):
        A(f'v_add_f32 v{o + i}, v{o + i}, v{x + i}')
    for i in range(0, n, 2):
        rne2(o + i, o + i + 1, o + i, o + i + 1)


def sum4_packed(dst, src, nd, t):
    n = 2 * nd
    unpack(dst, src, nd)
    unpack(t, src + nd, nd)
    for i in range(n):
        A(f'v_add_f32 v{dst + i}, v{dst + i}, v{t + i}')
    unpack(t, src + 2 * nd, nd)
    unpack(t + n, src + 3 * nd, nd)
    for i in range(n):
        A(f'v_add_f32 v{t + i}, v{t + i}, v{t + n + i}')
    for i in range(n):
        A(f'v_add_f32 v{dst + i}, v{dst + i}, v{t + i}')


def t2_setup():
    A('v_lshrrev_b32 v56, 2, v1')
    A('v_lshlrev_b32 v57, 6, v56')
    A('v_lshlrev_b32 v56, 10, v56')
    A('v_lshl_add_u32 v56, v38, 5, v56')
    A('v_lshrrev_b32 v58, 1, v2')
    A('v_lshl_add_u32 v56, v58, 7, v56')
    A('v_and_b32 v58, 1, v2')
    A('v_lshl_add_u32 v56, v58, 4, v56')
    A(f's_and_b32 s{sT5}, s{sU}, 1')
    A(f's_lshl_b32 s{sA0}, s{sXC}, 15')
    A(f's_lshr_b32 s{sT4}, s{sWB}, 1')
    A(f's_lshl_b32 s{sT4}, s{sT4}, 13')
    A(f's_add_u32 s{sA0}, s{sA0}, s{sT4}')
    A(f's_lshl_b32 s{sT4}, s{sT5}, 12')
    A(f's_add_u32 s{sA0}, s{sA0}, s{sT4}')
    A(f's_and_b32 s{sT4}, s{sWB}, 1')
    A(f's_lshl_b32 s{sT4}, s{sT4}, 9')
    A(f's_add_u32 s{sA0}, s{sA0}, s{sT4}')
    A(f's_add_u32 s{sA0}, s{sA0}, {CTX}')
    A('v_mul_u32_u24 v58, 272, v38')
    A('v_add_u32 v57, v57, v58')
    A('v_lshl_add_u32 v57, v2, 4, v57')
    A(f's_mul_i32 s{sT4}, s{sW}, 1088')
    A(f's_add_u32 s{sT4}, s{sT4}, {L_RED3}')
    A(f'v_add_u32 v57, s{sT4}, v57')
    A('v_lshlrev_b32 v58, 3, v3')
    A('v_lshrrev_b32 v59, 5, v3')
    A('v_lshl_add_u32 v58, v59, 4, v58')
    A(f'v_add_u32 v58, {L_RED3}, v58')
    A('v_lshrrev_b32 v59, 5, v3')
    A('v_lshlrev_b32 v59, 13, v59')
    A('v_and_b32 v60, 31, v3')
    A('v_lshl_add_u32 v59, v60, 2, v59')
    A(f's_lshl_b32 s{sA1}, s{sT5}, 15')
    A(f's_lshl_b32 s{sT4}, s{sXC}, 10')
    A(f's_add_u32 s{sA1}, s{sA1}, s{sT4}')
    A(f's_lshr_b32 s{sT4}, s{sU}, 1')
    A(f's_xor_b32 s{sT4}, s{sT4}, {CFG.get("nsx", 4)}')
    A(f's_lshl_b32 s{sT4}, s{sT4}, 7')
    A(f's_add_u32 s{sA1}, s{sA1}, s{sT4}')
    A(f's_add_u32 s{sA1}, s{sA1}, {OPART}')


def t2_final():
    def ld():
        for t in range(2):
            A(f'buffer_load_dwordx4 {v4(64 + 4 * t)}, v56, {srd(sWS)}, s{sA0} offen offset:{256 * t} sc1')
    if CFG.get('h3', 2) == 0:
        hint_pub(F3, 7, 108, sT0)
    poll(ld, range(64, 72, 2), 47, sleep=0, pre_sleep=CFG.get('sl_ctx', 1))
    if CFG.get('h3', 2) == 1:
        hint_pub(F3, 7, 108, sT0)
    if CFG.get('ts2', 0):
        TS(1)
    for t in range(2):
        for nt in range(4):
            c = '0' if t == 0 else v4(80 + 4 * nt)
            A(f'v_mfma_f32_16x16x32_bf16 {v4(80 + 4 * nt)}, {v4(VWO + 16 * t + 4 * nt)}, {v4(64 + 4 * t)}, {c}')
    for k in range(2):
        for r in range(4):
            A(f'v_add_f32_dpp v{96 + 4 * k + r}, v{80 + 4 * k + r}, v{80 + 4 * k + r} row_ror:8 row_mask:0xf bank_mask:0x3')
    for k in range(2):
        for r in range(4):
            A(f'v_add_f32_dpp v{96 + 4 * k + r}, v{88 + 4 * k + r}, v{88 + 4 * k + r} row_ror:8 row_mask:0xf bank_mask:0xc')
    for r in range(4):
        A(f'v_add_f32_dpp v{104 + r}, v{96 + r}, v{96 + r} row_shl:4 row_mask:0xf bank_mask:0x5')
    for r in range(4):
        A(f'v_add_f32_dpp v{104 + r}, v{100 + r}, v{100 + r} row_shr:4 row_mask:0xf bank_mask:0xa')
    A('ds_write_b128 v57, v[104:107]')
    A('s_waitcnt lgkmcnt(0)')
    A('s_barrier')
    if CFG.get('h3', 2) == 2:
        hint_pub(F3, 7, 108, sT0)
    A(f's_cmp_ge_u32 s{sW}, 3')
    A('s_cbranch_scc1 L_fin')
    A(f's_cmp_eq_u32 s{sW}, 2')
    A('s_cbranch_scc1 L_final')
    for p in range(8):
        A(f'ds_read_b64 {v2(64 + 2 * p)}, v58 offset:{1088 * p}')
    A('s_waitcnt lgkmcnt(0)')
    tree_add(64, 16, 2)
    A('v_cvt_pk_bf16_f32 v64, v64, v65')
    A(f'buffer_store_dword v64, v59, {srd(sWS)}, s{sA1} offen sc1')
    TS(10)
    A('s_cmp_lg_u32 s2, 0')
    A('s_cbranch_scc1 L_fin')
    A(f'v_mov_b32 v40, s{sE}')
    A('v_mov_b32 v39, 0')
    exec_set(1, 0)
    A(f'buffer_store_dword v40, v39, {srd(sWS)}, 0 offen offset:{EPOCH} sc1')
    exec_all()
    A('s_branch L_fin')
    A('L_final:')
    A(f's_lshr_b32 s{sT4}, s{sSID}, 2')
    A(f's_and_b32 s{sT5}, s{sSID}, 3')
    A('v_bfe_u32 v32, v0, 2, 1')
    A('v_and_b32 v33, 3, v0')
    A('v_lshlrev_b32 v34, 10, v32')
    A('v_lshl_add_u32 v34, v33, 3, v34')
    A(f's_lshl_b32 s{sT0}, s{sT5}, 11')
    A(f's_lshl_b32 s{sT1}, s{sT4}, 5')
    A(f's_add_u32 s{sT0}, s{sT0}, s{sT1}')
    A(f'buffer_load_dwordx2 v[40:41], v34, {srd(sX_)}, s{sT0} offen')
    A(f's_add_u32 s{sT1}, s{sT0}, {MODL}')
    A(f's_add_u32 s{sT2}, s{sT1}, {3 * 8192}')

    def ldm():
        A(f'buffer_load_dwordx2 v[42:43], v34, {srd(sWS)}, s{sT1} offen sc1')
        A(f'buffer_load_dwordx2 v[44:45], v34, {srd(sWS)}, s{sT2} offen sc1')
    poll(ldm, range(42, 46), 47)
    unpack(48, 40, 2)
    unpack(52, 42, 2)
    unpack(56, 44, 2)
    A('v_lshlrev_b32 v35, 13, v32')
    A('v_lshl_add_u32 v35, v33, 3, v35')
    A(f's_lshl_b32 s{sT1}, s{sT5}, 14')
    A(f's_lshl_b32 s{sT2}, s{sT4}, 5')
    A(f's_add_u32 s{sT1}, s{sT1}, s{sT2}')
    A(f's_add_u32 s{sT1}, s{sT1}, {OPART}')
    A(f's_add_u32 s{sT2}, s{sT1}, 4096')

    def ldo():
        for k in range(8):
            A(f'buffer_load_dwordx2 {v2(128 + 2 * k)}, v35, {srd(sWS)}, s{sT1 + (k >> 2)} offen offset:{1024 * (k & 3)} sc1')
    A(f's_min_u32 s{sT3}, s{sU}, 13')
    A(f's_lshl_b32 s{sA0}, s{sXC}, 4')
    A(f's_add_u32 s{sT3}, s{sT3}, s{sA0}')
    A(f's_lshl_b32 s{sT3}, s{sT3}, 7')
    A(f's_add_u32 s{sT3}, s{sT3}, {F4 + 64}')
    hint_wait(sT3, sA0)
    poll(ldo, range(128, 144), 47, sleep=1)
    unpack(144, 128, 16)
    tree_add(144, 32, 4)
    for i in range(4):
        A(f'v_mov_b32 v{72 + i}, v{144 + i}')
    x1_from(72, 48, 52, 4, 76)
    A('v_lshlrev_b32 v35, 4, v0')
    A(f's_mul_i32 s{sT1}, s{sSID}, 7168')
    A(f's_add_u32 s{sT1}, s{sT1}, {YP}')
    A(f's_add_u32 s{sT2}, s{sT1}, 4096')

    def ldy():
        for i in range(7):
            s, o = (sT1, 1024 * i) if i < 4 else (sT2, 1024 * (i - 4))
            A(f'buffer_load_dwordx4 {v4(96 + 4 * i)}, v35, {srd(sWS)}, s{s} offen offset:{o} sc1')
    for r in range(4):
        A(f'v_bfe_u32 v{40 + r}, s{sE}, {8 * r}, 8')

    def chk():
        for i in range(28):
            A(f'v_xor_b32 v{96 + i}, v{96 + i}, v{40 + (i & 3)}')
        A('v_or3_b32 v47, v96, v97, v98')
        A('v_or3_b32 v46, v99, v100, v101')
        for i in range(102, 122, 4):
            A(f'v_or3_b32 v47, v47, v{i}, v{i + 1}')
            A(f'v_or3_b32 v46, v46, v{i + 2}, v{i + 3}')
        A('v_or3_b32 v47, v47, v122, v123')
        A('v_or_b32 v47, v47, v46')
        A('v_and_b32 v47, 0xff, v47')
        A('v_cmp_ne_u32 vcc, 0, v47')
    if CFG.get('h4', 2) >= 0:
        A(f's_min_u32 s{sT3}, s{sU}, 13')
        A(f's_lshl_b32 s{sT4}, s{sXC}, 4')
        A(f's_add_u32 s{sT3}, s{sT3}, s{sT4}')
        A(f's_lshl_b32 s{sT3}, s{sT3}, 7')
        A(f's_add_u32 s{sT3}, s{sT3}, {F4}')
        hint_wait(sT3, sT4)
    poll(ldy, None, 47, sleep=CFG.get('sl_y', 0), pre_sleep=CFG.get('sl_y0', 0), check=chk)
    for r in range(4):
        A(f'v_add_f32 v{96 + r}, v{96 + r}, v{100 + r}')
        A(f'v_add_f32 v{104 + r}, v{104 + r}, v{108 + r}')
        A(f'v_add_f32 v{112 + r}, v{112 + r}, v{116 + r}')
    for r in range(4):
        A(f'v_add_f32 v{96 + r}, v{96 + r}, v{104 + r}')
        A(f'v_add_f32 v{112 + r}, v{112 + r}, v{120 + r}')
    for r in range(4):
        A(f'v_add_f32 v{96 + r}, v{96 + r}, v{112 + r}')
    for r in range(4):
        A(f'v_add_f32_dpp v{96 + r}, v{96 + r}, v{96 + r} row_ror:8 {DPPM}')
    for sw in ('v_permlane16_swap_b32', 'v_permlane32_swap_b32'):
        for r in range(4):
            A(f'v_mov_b32 v{100 + r}, v{96 + r}')
        for r in range(4):
            A(f'{sw} v{100 + r}, v{96 + r}')
        for r in range(4):
            A(f'v_add_f32 v{96 + r}, v{96 + r}, v{100 + r}')
    rne2(96, 97, 96, 97)
    rne2(98, 99, 98, 99)
    for r in range(4):
        A(f'v_mul_f32 v{96 + r}, v{96 + r}, v{56 + r}')
    rne2(96, 97, 96, 97)
    rne2(98, 99, 98, 99)
    for r in range(4):
        A(f'v_add_f32 v{96 + r}, v{96 + r}, v{72 + r}')
    if 'x_add' in CFG:
        import struct
        for r in range(4):
            A(f'v_add_f32 v{96 + r}, {struct.unpack("<I", struct.pack("<f", CFG["x_add"] / 100.0))[0]:#x}, v{96 + r}')
    if 'x_one' in CFG:
        import struct
        A(f's_cmp_eq_u32 s2, 5')
        A(f's_cselect_b32 s{sT1}, {struct.unpack("<I", struct.pack("<f", CFG["x_one"] / 100.0))[0]:#x}, 0')
        A(f'v_add_f32 v96, s{sT1}, v96')
    A('v_cvt_pk_bf16_f32 v100, v96, v97')
    A('v_cvt_pk_bf16_f32 v101, v98, v99')
    exec_set(0xff, 0)
    A(f'buffer_store_dwordx2 v[100:101], v34, {srd(sOUT)}, s{sT0} offen')
    exec_all()
    TS(10)
    A('s_branch L_fin')


VQ = 64
VK = (128, 192)
VS = (8, 12)
VS2 = 56
VKA = 96
VSO, VXP, VXW, VXR = 16, 20, 112, 113
VM, VL, VPS, VPW, VMXW, VMXR = 24, 25, 26, 27, 28, 29
VO = 64
VV = (128, 160, 192, 224)
VP = (8, 16)
VDM = 48
VVA = 24
VPR = 40
VTG = 4
LOG2E = 0x3fb8aa3b
THR = 0x42800000
SIG = [0, 2, 3, 1]


SLOT = [0, 1, 2, 3, 0, 1, 2, 3]


sPASS = sLNK
VMA = 26


def fsw(key):
    return ((key & 3) << 2) | SIG[(key >> 2) & 3]


class VM_:
    def __init__(self):
        self.ops = []

    def add(self, tag):
        self.ops.append(tag)

    def after(self, tag):
        idx = max(i for i, t in enumerate(self.ops) if t == tag)
        return len(self.ops) - 1 - idx


def kv_instr(T, k, vm, set_m0=True):
    slot = SLOT[T] * 32768
    half, i = k >> 2, k & 3
    out = []
    if set_m0:
        out.append(f's_add_u32 s{sT3}, s{sKB}, {T * 32768}')
        out.append(f's_add_u32 m0, s{sT5}, {slot + half * 4096}')
    o = f' offset:{i * 1024}' if i else ''
    out.append(f'buffer_load_dwordx4 v{VDM + k}, {srd(sKV)}, s{sT3} offen{o} {NT} lds')
    vm.add(('kv', T))
    return out


def kv_dma(T, half, vm):
    for i in range(4):
        for l in kv_instr(T, 4 * half + i, vm, set_m0=(i == 0)):
            A(l)


def v_read_list(T, vset):
    slot = SLOT[T]
    base = VVA + (8 if slot >= 2 else 0)
    out = []
    for ks in range(2):
        for ct in range(4):
            for eh in range(2):
                off = (slot & 1) * 32768 + ks * 16384
                out.append(f'ds_read_b64_tr_b16 {v2(VV[vset] + 8 * ct + 4 * ks + 2 * eh)}, v{base + 2 * ct + eh} offset:{off}')
    return out


def k_read_list(T, kset):
    slot = SLOT[T]
    base = VKA + (8 if slot >= 2 else 0)
    return [f'ds_read_b128 {v4(VK[kset] + 4 * i)}, v{base + 4 * (i >> 3) + (i & 3)} offset:{(slot & 1) * 32768 + ((i >> 2) & 1) * 256}'
            for i in range(16)]


def emit(lst):
    for l in lst:
        emit(l) if isinstance(l, list) else A(l)


def interleave(main, fill, start=0):
    n = len(main) - start
    done = 0
    for i, m_ in enumerate(main):
        A(m_)
        if i >= start:
            upto = (len(fill) * (i - start + 1) + n - 1) // n
            while done < upto:
                f = fill[done]
                emit(f) if isinstance(f, list) else A(f)
                done += 1


def call(target):
    here = lab('pc')
    A(f's_getpc_b64 s[{sTGT}:{sTGT + 1}]')
    A(f'{here}:')
    A(f's_add_u32 s{sTGT}, s{sTGT}, {target}-{here}')
    A(f's_addc_u32 s{sTGT + 1}, s{sTGT + 1}, 0')
    A(f's_swappc_b64 s[{sLNK}:{sLNK + 1}], s[{sTGT}:{sTGT + 1}]')


PVM = VM_()


def att_front():
    for i in range(4):
        A(f'v_mov_b32 v{20 + i}, -1')
    A(f's_mul_i32 s{sT3}, s{sSID}, {CLR_E_PER}')
    A(f's_add_u32 s{sT3}, s{sT3}, {CLR_E}')
    A('v_add_u32 v17, 4096, v16')
    A(f'v_min_u32 v17, {CLR_E_PER - 16}, v17')
    A(f'v_add_u32 v17, s{sT3}, v17')
    if CFG.get('modpre', 1):
        A(f's_lshl_b32 s{sT5}, s{sSID}, {MSH}')
        A(f's_add_u32 s{sT5}, s{sT5}, {MOD1}')
        A('v_min_u32 v18, 39, v0')
        A(f'v_lshl_add_u32 v18, v18, 4, s{sT5}')
        A('v_cmp_lt_u32 vcc, 191, v3')
        A('v_cndmask_b32 v17, v17, v18, vcc')
    A(f's_and_b32 s{sWB}, s{sU}, 1')
    A(f's_lshl_b32 s{sWB}, s{sWB}, 2')
    A(f's_add_u32 s{sWB}, s{sWB}, s{sW}')
    A(f's_lshl_b32 s{sT0}, s{sWB}, 7')
    A('v_lshrrev_b32 v5, 1, v0')
    A('v_mul_u32_u24 v5, 6144, v5')
    A('v_and_b32 v18, 1, v0')
    A('v_lshl_add_u32 v5, v18, 4, v5')
    A(f's_lshr_b32 s{sT2}, s{sSID}, 1')
    A(f's_lshl_b32 s{sT2}, s{sT2}, 5')
    A(f's_mul_i32 s{sT1}, s{sWB}, {64 * 6144}')
    A(f's_add_u32 s{sT1}, s{sT1}, s{sT2}')
    A(f's_add_u32 s{sT4}, s{sT1}, {32 * 6144}')
    A(f's_lshl_b32 s{sT2}, s{sW}, 11')
    A(f's_add_u32 s{sT2}, s{sT2}, {L_WM1}')
    A(f's_mov_b32 m0, s{sT2}')
    A('s_waitcnt lgkmcnt(0)')
    TF(3)
    A(f'buffer_load_dwordx4 v[8:11], v4, {srd(sC)}, s{sT0} offen')
    A(f'buffer_store_dwordx4 v[20:23], v16, {srd(sWS)}, s{sT3} offen sc1')
    A(f'buffer_store_dwordx4 v[20:23], v17, {srd(sWS)}, 0 offen sc1')
    A('s_barrier')
    dma(5, sWM, f's{sT1}')
    A(f's_add_u32 m0, s{sT2}, 1024')
    dma(5, sWM, f's{sT4}')
    TF(4)
    A('s_branch L_att1')


def att_p1():
    A('L_att1:')
    late_ptrs(sW1, sW2)
    A('v_lshrrev_b32 v28, 2, v1')
    A('v_lshl_add_u32 v28, v2, 3, v28')
    A('v_lshlrev_b32 v28, 5, v28')
    A('v_and_b32 v30, 3, v1')
    A('v_lshl_add_u32 v28, v30, 3, v28')
    A(f'v_add_u32 v28, s{sT2}, v28')
    A('v_and_b32 v19, 7, v1')
    A('v_lshlrev_b32 v30, 6, v19')
    A('v_lshl_add_u32 v30, v2, 4, v30')
    A(f's_lshl_b32 s{sT2}, s{sW}, 9')
    A(f's_add_u32 s{sT2}, s{sT2}, {L_RED1}')
    A(f'v_add_u32 v30, s{sT2}, v30')
    A('v_lshlrev_b32 v29, 3, v0')
    A(f'v_add_u32 v40, {L_RED1}, v29')
    A(f's_lshl_b32 s{sT1}, s{sSID}, {MSH}')
    A(f's_add_u32 s{sT1}, s{sT1}, {MOD1}')
    A(f's_mov_b32 s{sT3}, 0xff')
    A('s_waitcnt vmcnt(4)')
    TF(6)
    silu_frag()
    A('s_waitcnt lgkmcnt(0)')
    make_tag()
    tagbytes(32)
    TF(7)
    A('s_waitcnt vmcnt(0)')
    TS(1)

    def hh_store():
        A(f'v_mov_b32 v80, s{sE}')
        exec_set(1, 0)
        A(f'buffer_store_dword v80, v29, {srd(sWS)}, s{sT1} offen offset:512 sc1')
        exec_all()
    if CFG.get('hh', 1) == 3:
        skh = lab('nohh')
        A(f's_cmp_lg_u32 s{sW}, 3')
        A(f's_cbranch_scc1 {skh}')
        hh_store()
        A(f'{skh}:')
    for hf in range(2):
        for eh in range(2):
            A(f'ds_read_b64_tr_b16 {v2(64 + 4 * hf + 2 * eh)}, v28 offset:{hf * 1024 + eh * 128}')
    A('s_waitcnt lgkmcnt(2)')
    A('v_mfma_f32_16x16x32_bf16 v[72:75], v[64:67], v[24:27], 0')
    A('s_waitcnt lgkmcnt(0)')
    A('v_mfma_f32_16x16x32_bf16 v[76:79], v[68:71], v[24:27], 0')
    for r in range(4):
        A(f'v_add_f32_dpp v{72 + r}, v{76 + r}, v{72 + r} row_ror:8 {DPPM}')
    exec_set(0x00ff00ff, 0x00ff00ff)
    A('ds_write_b128 v30, v[72:75]')
    exec_all()
    A('s_waitcnt lgkmcnt(0)')
    TF(8)
    A('s_barrier')
    TF(9)
    if CFG.get('hh', 1) == 2:
        skh = lab('nohh')
        A(f's_cmp_lg_u32 s{sW}, 1')
        A(f's_cbranch_scc1 {skh}')
        hh_store()
        A(f'{skh}:')
    A(f's_cmp_lg_u32 s{sW}, 0')
    A('s_cbranch_scc1 L_qk')
    for p in range(4):
        A(f'ds_read_b64 {v2(64 + 2 * p)}, v40 offset:{512 * p}')
    A('s_waitcnt lgkmcnt(0)')
    tree_add(64, 8, 2)
    A(f'v_bfi_b32 v64, s{sT3}, v32, v64')
    A(f'v_bfi_b32 v65, s{sT3}, v33, v65')
    A(f'buffer_store_dwordx2 v[64:65], v29, {srd(sWS)}, s{sT1} offen sc1')
    if CFG.get('hh', 1) == 1:
        hh_store()
    TS(2)


def softmax_a(S):
    o = [f'v_cvt_pk_bf16_f32 v{32 + r}, 0, v{S + r}' for r in range(4)]
    o += [f'v_mul_f32 v{32 + r}, s{sT2}, v{32 + r}' for r in range(4)]
    o += [f'v_cvt_pk_bf16_f32 v{VS2 + r}, 0, v{32 + r}' for r in range(4)]
    return o


def lane_max():
    return [f'v_max3_f32 v47, v{VS2}, v{VS2 + 1}, v{VS2 + 2}', f'v_max_f32 v47, v47, v{VS2 + 3}',
            f'v_mul_f32 v47, s{sT3}, v47']


def softmax_b(i):
    o = [f'v_fma_f32 v{32 + r}, v{VS2 + r}, s{sT3}, -v{VM}' for r in range(4)]
    o += [f'v_max3_f32 v{VMA}, v{VMA}, v32, v33', f'v_max3_f32 v{VMA}, v{VMA}, v34, v35']
    o += [f'v_exp_f32 v{32 + r}, v{32 + r}' for r in range(4)]
    o += ['v_cvt_pk_bf16_f32 v36, v32, v33', 'v_cvt_pk_bf16_f32 v37, v34, v35',
          f'ds_write_b64 v{VPW}, v[36:37] offset:{(i & 1) * 2560}',
          'v_add_f32 v32, v32, v33', 'v_add_f32 v34, v34, v35', f'v_add_f32 v{VL}, v{VL}, v32', f'v_add_f32 v{VL}, v{VL}, v34']
    return o


def lanes4(op, v, t):
    o = []
    for sw in ('v_permlane16_swap_b32', 'v_permlane32_swap_b32'):
        o += [f'v_mov_b32 v{t}, v{v}', f'{sw} v{t}, v{v}', f'{op} v{v}, v{v}, v{t}']
    return o


def qk_wave():
    A('L_qk:')
    if CFG.get('pubbar', 1):
        A('s_barrier')
    A(f's_and_b32 s{sT4}, s{sW}, 1')
    A(f's_lshr_b32 s{sT5}, s{sW}, 1')
    A('v_and_b32 v32, 3, v1')
    A('v_lshlrev_b32 v32, 2, v32')
    A('v_lshrrev_b32 v33, 2, v1')
    A('v_lshlrev_b32 v33, 1, v33')
    A(f'v_mov_b32 v34, {SIG[0] | SIG[1] << 2 | SIG[2] << 4 | SIG[3] << 6}')
    A('v_lshrrev_b32 v33, v33, v34')
    A('v_and_b32 v33, 3, v33')
    A('v_or_b32 v32, v32, v33')
    A('v_xor_b32 v32, v32, v2')
    A('v_lshlrev_b32 v33, 10, v1')
    A(f's_mul_i32 s{sT0}, s{sT4}, {16384 + 512}')
    A(f'v_add_u32 v33, s{sT0}, v33')
    for tt in range(4):
        A(f'v_xor_b32 v{VKA + 4 + tt}, {4 * tt}, v32')
        A(f'v_lshl_add_u32 v{VKA + 4 + tt}, v{VKA + 4 + tt}, 4, v33')
        A(f'v_xor_b32 v{VKA + tt}, 0x4000, v{VKA + 4 + tt}')
        A(f'v_add_u32 v{VKA + 8 + tt}, 0x10000, v{VKA + tt}')
        A(f'v_add_u32 v{VKA + 12 + tt}, 0x10000, v{VKA + 4 + tt}')
    A(f'v_lshlrev_b32 v{VXW}, 4, v0')
    A(f's_lshl_b32 s{sT0}, s{sW}, 10')
    A(f's_add_u32 s{sT0}, s{sT0}, {L_XB}')
    A(f'v_add_u32 v{VXW}, s{sT0}, v{VXW}')
    A(f'v_xor_b32 v{VXR}, 1024, v{VXW}')
    A(f's_lshl_b32 s{sT0}, s{sT5}, 4')
    A(f'v_add_u32 v32, s{sT0}, v1')
    A(f'v_mul_u32_u24 v{VPW}, 80, v32')
    A(f'v_lshl_add_u32 v{VPW}, v2, 3, v{VPW}')
    A(f's_lshl_b32 s{sT0}, s{sT4}, 5')
    A(f's_add_u32 s{sT0}, s{sT0}, {PBUF}')
    A(f'v_add_u32 v{VPW}, s{sT0}, v{VPW}')
    A(f'v_lshlrev_b32 v{VMXR}, 5, v32')
    A(f'v_add_u32 v{VMXR}, {L_MX}, v{VMXR}')
    A(f'v_lshl_add_u32 v{VMXW}, v2, 2, v{VMXR}')
    A(f's_lshl_b32 s{sT0}, s{sT4}, 4')
    A(f'v_add_u32 v{VMXW}, s{sT0}, v{VMXW}')
    A('v_lshlrev_b32 v30, 2, v32')
    A(f's_lshl_b32 s{sT0}, s{sT4}, 7')
    A(f's_add_u32 s{sT0}, s{sT0}, {L_LS}')
    A(f'v_add_u32 v62, s{sT0}, v30')
    A(f'v_add_u32 v30, {L_ALPHA}, v30')
    A(f'v_mov_b32 v31, {L_FLAG}')
    A(f's_mov_b32 s{sPASS}, 0')
    A('L_qk_start:')
    A(f'v_mov_b32 v{VL}, 0')
    A(f'v_mov_b32 v{VMA}, 0')
    A('v_mov_b32 v40, 0')
    A('v_mov_b32 v41, 0')
    A('v_mov_b32 v42, 1')
    A('ds_write_b64 v31, v[40:41]')
    A('v_lshlrev_b32 v43, 6, v1')
    A('v_lshl_add_u32 v43, v2, 4, v43')
    A(f'v_add_u32 v46, 2560, v{VPW}')
    A(f'v_xor_b32 v46, v46, v{VPW}')
    A('s_barrier')
    emit(k_read_list(0, 0))
    A('s_waitcnt lgkmcnt(0)')
    A('s_barrier')
    emit(k_read_list(1, 1))
    A('s_waitcnt lgkmcnt(0)')
    A('s_barrier')
    A(f's_cmp_lg_u32 s{sPASS}, 0')
    A('s_cbranch_scc1 L_noq')
    A('v_mov_b32 v44, 0')
    if CFG.get('slowp', 0):
        A(f's_and_b32 s{sT0}, s{sSID}, 0x73')
        A(f's_or_b32 s{sT0}, s{sT0}, 4')
        A(f's_lshl_b32 s{sT0}, s{sT0}, 7')
    else:
        A(f's_lshl_b32 s{sT0}, s{sSID}, 7')
    A(f's_add_u32 s{sT0}, s{sT0}, {FLG}')
    A(f's_not_b32 s{sT1}, s{sE}')
    top, done, foll, seen = lab('poll'), lab('pdone'), lab('foll'), lab('seen')
    A(f's_mov_b32 s{sCNT}, {CFG["poll_max"]}')
    A(f's_cmp_lg_u32 s{sW}, 0')
    A(f's_cbranch_scc1 {foll}')
    A(f'{top}:')
    A(f's_load_dwordx2 s[{sT2}:{sT3}], s[{sWS}:{sWS + 1}], s{sT0} glc')
    A('s_waitcnt lgkmcnt(0)')
    A(f's_xor_b32 s{sT2}, s{sT2}, s{sE}')
    A(f's_xor_b32 s{sT3}, s{sT3}, s{sT1}')
    A(f's_or_b32 s{sT2}, s{sT2}, s{sT3}')
    A(f's_cbranch_scc0 {seen}')
    if CFG.get('sl_flg', 0):
        A(f's_sleep {CFG.get("sl_flg", 0)}')
    A(f's_sub_u32 s{sCNT}, s{sCNT}, 1')
    A(f's_cbranch_scc0 {top}')
    if CFG.get('allf', 0):
        seen0 = seen
        seen = lab('seen')
        A(f'{seen0}:')
        A(f's_and_b32 s{sT0}, s{sSID}, 3')
        A(f's_or_b32 s{sT0}, s{sT0}, 4')
        A(f's_lshl_b32 s{sT0}, s{sT0}, 7')
        A(f's_add_u32 s{sT0}, s{sT0}, {FLG}')
        t2 = lab('poll')
        A(f'{t2}:')
        for i in range(8):
            A(f's_add_u32 s{sT1}, s{sT0}, {2048 * i}')
            A(f's_load_dword s{sWQ + i}, s[{sWS}:{sWS + 1}], s{sT1} glc')
        A('s_waitcnt lgkmcnt(0)')
        A(f's_mov_b32 s{sT2}, 0')
        for i in range(8):
            A(f's_xor_b32 s{sWQ + i}, s{sWQ + i}, s{sE}')
            A(f's_or_b32 s{sT2}, s{sT2}, s{sWQ + i}')
        A(f's_cbranch_scc0 {seen}')
        A(f's_sub_u32 s{sCNT}, s{sCNT}, 1')
        A(f's_cbranch_scc0 {t2}')
    A(f'{seen}:')
    A('ds_write_b32 v31, v42 offset:4')
    A(f'{foll}:')
    TS(3)
    A(f's_lshl_b32 s{sT0}, s{sXC}, 15')
    A(f's_lshl_b32 s{sT1}, s{sW}, 13')
    A(f's_add_u32 s{sT0}, s{sT0}, s{sT1}')
    A(f's_add_u32 s{sT0}, s{sT0}, {QA}')
    for i in range(1, 4):
        A(f's_add_u32 s{sT0 + i}, s{sT0}, {4096 * i}')

    def ldq(t):
        A(f'buffer_load_dwordx4 {v4(VQ + 4 * t)}, v43, {srd(sWS)}, s{sT0 + (t >> 2)} offen offset:{1024 * (t & 3)} sc1')
    if CFG.get('sl_qa0', 0):
        A(f's_sleep {CFG["sl_qa0"]}')
    def qpoll(ts_, sleep):
        if CFG.get('pq2', 0):
            A('s_barrier')
        for t in ts_:
            ldq(t)
        if CFG.get('pq2', 0) != 2:
            A('s_barrier')
        top, done = lab('poll'), lab('pdone')
        A(f's_mov_b32 s{sCNT}, {CFG["poll_max"]}')
        A(f'{top}:')
        A('s_waitcnt vmcnt(0)')
        max_tree([VQ + 4 * t for t in ts_], 48)
        A('v_cmp_eq_u32 vcc, -1, v48')
        A(f's_cbranch_vccz {done}')
        if sleep:
            A(f's_sleep {sleep}')
        for t in ts_:
            nx = lab('qn')
            A(f'v_cmp_eq_u32 vcc, -1, v{VQ + 4 * t}')
            A(f's_cbranch_vccz {nx}')
            ldq(t)
            A(f'{nx}:')
        A(f's_sub_u32 s{sCNT}, s{sCNT}, 1')
        A(f's_cbranch_scc0 {top}')
        A('s_waitcnt vmcnt(0)')
        A(f'{done}:')
    qpoll(list(range(8)), CFG.get('sl_qa', 0))
    if CFG.get('pq2', 0) == 2:
        A('s_barrier')
    A('s_branch L_go')
    A('L_noq:')
    if CFG.get('pq2', 0):
        A('s_barrier')
    A('s_barrier')
    A('L_go:')
    TS(4)
    if CFG.get('cntq', 0):
        A(f's_sub_u32 s{sTS + 2}, {CFG["poll_max"]}, s{sCNT}')
        A(f's_mul_i32 s{sTS + 2}, s{sTS + 2}, 100')
        A(f's_add_u32 s{sTS + 2}, s{sTS + 2}, s{sTS}')
    A(f's_mov_b32 s{sT2}, 0x3db504f3')
    A(f's_mov_b32 s{sT3}, {LOG2E:#x}')
    A(f's_mov_b32 s{sT1}, {THR:#x}')
    A(f's_setprio {CFG.get("prio", 1)}')

    def mf(j):
        ks = j & 1
        o = []
        for i in range(16):
            S = VSO if i < 8 else VS[ks]
            o.append(f'v_mfma_f32_16x16x32_bf16 {v4(S)}, {v4(VK[ks] + 4 * i)}, {v4(VQ + 4 * (i & 7))}, ' + ('0' if i & 7 == 0 else v4(S)))
        o[11] = [o[11], f'ds_write_b128 v{VXW}, {v4(VSO)} offset:{(j & 1) * 4096}']
        return o

    def xread(j):
        return f'ds_read_b128 {v4(VXP)}, v{VXR} offset:{(j & 1) * 4096}'

    def xadd(j):
        return [f'v_add_f32 v{VS[j & 1] + r}, v{VS[j & 1] + r}, v{VXP + r}' for r in range(4)]

    def endstep(j, n=0):
        A(f's_waitcnt lgkmcnt({n})')
        A('s_barrier')
        if j == CFG.get('db', -1):
            sk = lab('nodb')
            A(f's_cmp_lg_u32 s{sW}, 3')
            A(f's_cbranch_scc1 {sk}')
            A(f's_lshl_b32 s{sT0}, s{sXC}, 7')
            A(f's_lshl_b32 s{sCNT}, s{sU}, 2')
            A(f's_add_u32 s{sT0}, s{sT0}, s{sCNT}')
            A(f's_add_u32 s{sT0}, s{sT0}, {DBR}')
            A('v_lshlrev_b32 v60, 10, v0')
            A(f'v_mov_b32 v61, s{sE}')
            exec_set(0xff, 0)
            A(f'buffer_store_dword v61, v60, {srd(sWS)}, s{sT0} offen sc1')
            exec_all()
            A(f'{sk}:')
        if CFG.get('tsloop', 0) and j <= 9:
            TS(1 + j)
        elif j in (5, 7):
            TS({5: 6, 7: 7}[j])

    def chain(m, kr, fill, f0=0, same=True):
        G = CFG.get('grp', 2)
        ng = 16 // G
        GL = ng - CFG.get('gl', 1)
        kd = fd = 0
        after = 0
        for g in range(ng):
            emit(m[G * g:G * g + G])
            if G * g <= 11 < G * g + G:
                after = 0
            kup = G * g + G if same else (16 * (g + 1) * G + 11) // 12
            while kd < min(len(kr), kup):
                A(kr[kd]); kd += 1; after += 1
            if g >= f0:
                n = max(1, GL - f0)
                fup = min(len(fill), (len(fill) * (g - f0 + 1) + n - 1) // n)
                while fd < fup:
                    if isinstance(fill[fd], str) and fill[fd].startswith('ds_write'):
                        after = 0
                    emit([fill[fd]]); fd += 1
        return after if same else 0

    kplan = {3: (4, 0), 4: (5, 1), 5: (6, 0)}
    for x_, k_ in zip(mf(0), k_read_list(2, 0)):
        emit([x_, k_])
    for r in range(4):
        A(f'v_mov_b32 v{48 + r}, v{VSO + r}')
    A(f'ds_write_b128 v{VXW}, {v4(VS[0])} offset:8192')
    A('s_waitcnt lgkmcnt(0)')
    A('s_barrier')
    TS(5)
    G = CFG.get('grp', 2)
    for j in range(1, 7):
        TC(1, j)
        kr = k_read_list(*kplan[j]) if j in kplan else []
        if j == 1:
            A(xread(0))
            A(f'ds_read_b128 v[52:55], v{VXR} offset:8192')
            kr = k_read_list(3, 1)
            f0 = 1
            nk = G * (f0 + 1)
            p2 = lab('p2')
            oth = [f'v_add_f32 v{48 + r}, v{48 + r}, v{52 + r}' for r in range(4)]
            oth += ['v_max3_f32 v48, v48, v49, v50', 'v_max_f32 v48, v48, v51',
                    'v_cvt_pk_bf16_f32 v48, 0, v48', f'v_mul_f32 v48, s{sT2}, v48', 'v_cvt_pk_bf16_f32 v48, 0, v48']
            own = xadd(0) + softmax_a(VS[0])
            mix = []
            while own or oth:
                mix += own[:2] + oth[:1]
                own, oth = own[2:], oth[1:]
            sm = [f's_waitcnt lgkmcnt({nk})'] + mix
            sm += [f'v_max3_f32 v48, v48, v{VS2}, v{VS2 + 1}', f'v_max3_f32 v48, v48, v{VS2 + 2}, v{VS2 + 3}'] + lanes4('v_max_f32', 48, 49)
            sm += [[f's_cmp_lg_u32 s{sPASS}, 0', f's_cbranch_scc1 {p2}', f'v_mul_f32 v{VM}, s{sT3}, v48', f'{p2}:']] + softmax_b(0)
            chain(mf(j), kr, sm, f0, same=True)
            na = 0
        else:
            A(xread(j - 1))
            f0 = 4 // G
            nk = 0 if not kr else (16 * (f0 + 1) * G + 11) // 12
            sm = [f's_waitcnt lgkmcnt({nk})'] + xadd(j - 1) + softmax_a(VS[(j - 1) & 1]) + softmax_b(j - 1)
            na = chain(mf(j), kr, sm, f0, same=False)
        TC(4, j)
        endstep(j, na)
        TC(6, j)
    A(xread(6))
    A('s_waitcnt lgkmcnt(0)')
    emit(xadd(6) + softmax_a(VS[0]) + softmax_b(6))
    endstep(7)
    emit(k_read_list(7, 1))
    m = mf(7)
    for t in range(16):
        A(f's_waitcnt lgkmcnt({15 - t + (1 if t > 11 else 0)})')
        emit([m[t]])
    endstep(8)
    A(xread(7))
    A('s_waitcnt lgkmcnt(0)')
    emit(xadd(7) + softmax_a(VS[1]) + softmax_b(7))
    A(f'v_cmp_lt_f32 vcc, s{sT1}, v{VMA}')
    emit(lanes4('v_add_f32', VL, 61))
    A(f'ds_write_b32 v62, v{VL}')
    nf = lab('noflag')
    A(f's_cbranch_vccz {nf}')
    A(f's_cmp_lg_u32 s{sPASS}, 0')
    A(f's_cbranch_scc1 {nf}')
    A('ds_write_b32 v31, v42')
    A(f'{nf}:')
    endstep(9)
    A('ds_read_b32 v39, v31')
    A('ds_read_b32 v33, v62 offset:128')
    if CFG.get('stl', 0):
        A(f's_lshl_b32 s{sT1}, s{sSID}, 5')
        A(f's_lshl_b32 s{sT2}, s{sT5}, 14')
        A(f's_add_u32 s{sT1}, s{sT1}, s{sT2}')
        A(f's_add_u32 s{sT1}, s{sT1}, {STATS}')
        A('v_lshrrev_b32 v63, 2, v1')
        A('v_lshlrev_b32 v63, 12, v63')
        A('v_and_b32 v61, 3, v1')
        A('v_lshl_add_u32 v63, v61, 3, v63')
    else:
        A(f's_lshl_b32 s{sT1}, s{sSID}, 8')
        A(f's_lshl_b32 s{sT2}, s{sT5}, 7')
        A(f's_add_u32 s{sT1}, s{sT1}, s{sT2}')
        A(f's_add_u32 s{sT1}, s{sT1}, {STATS}')
        A('v_lshlrev_b32 v63, 3, v1')
    A(f'v_mov_b32 v32, v{VM}')
    A('s_setprio 0')
    A('s_waitcnt lgkmcnt(0)')
    A(f'v_readfirstlane_b32 s{sT0}, v39')
    A(f'v_add_f32 v33, v33, v{VL}')
    A(f's_cmp_lg_u32 s{sT0}, 0')
    A('s_cbranch_scc1 L_qk_redo')
    A(f's_cmp_lg_u32 s{sT4}, 0')
    A('s_cbranch_scc1 L_att_post')
    exec_set(0xffff, 0)
    A(f'buffer_store_dwordx2 v[32:33], v63, {srd(sWS)}, s{sT1} offen sc1')
    exec_all()
    if not CFG.get('tsloop', 0):
        TS(8)
    A('s_branch L_att_post')
    A('L_qk_redo:')
    A(f'ds_write_b32 v{VMXW}, v{VMA}')
    A('s_waitcnt lgkmcnt(0)')
    A('s_barrier')
    A(f'ds_read_b128 v[48:51], v{VMXR}')
    A(f'ds_read_b128 v[52:55], v{VMXR} offset:16')
    A('s_waitcnt lgkmcnt(0)')
    A('v_max3_f32 v48, v48, v49, v50')
    A('v_max3_f32 v52, v52, v53, v54')
    A('v_max3_f32 v48, v48, v51, v55')
    A('v_max_f32 v48, v48, v52')
    A(f'v_add_f32 v{VM}, v{VM}, v48')
    A(f's_mov_b32 s{sPASS}, 1')
    A('s_branch L_qk_start')


def qk_body(m, fill, kr, first):
    n = len(m)
    fd = kd = 0
    for i, x in enumerate(m):
        A(x)
        t = first + i
        upto = (len(fill) * (i + 1) + n - 1) // n
        while fd < upto:
            A(fill[fd]); fd += 1
        if kr:
            kup = min(t, (16 * (i + 1)) // n)
            while kd < kup:
                A(kr[kd]); kd += 1
    while kr and kd < 16:
        A(kr[kd]); kd += 1


def pv_wave():
    vm = PVM
    A('L_pv:')
    srd_tail(sKV)
    A(f's_lshl_b32 s{sKB}, s{sSID}, 18')
    A(f's_and_b32 s{sT4P}, s{sW}, 3')
    A(f's_lshl_b32 s{sT5}, s{sT4P}, 13')
    A(f's_and_b32 s{sT0}, s{sT4P}, 1')
    A(f's_cmp_eq_u32 s{sT0}, 1')
    for i in range(8):
        A(f's_cselect_b32 s{sT1}, {fsw(8 + i)}, {fsw(i)}')
        A(f'v_xor_b32 v{VDM + i}, s{sT1}, v0')
        A(f'v_lshlrev_b32 v{VDM + i}, 4, v{VDM + i}')
        A(f'v_add_u32 v{VDM + i}, s{sT5}, v{VDM + i}')
        if i >= 4:
            A(f'v_add_u32 v{VDM + i}, 4096, v{VDM + i}')
    A('s_waitcnt lgkmcnt(0)')
    late_ptrs(sW1, sW2)
    A(f's_mov_b32 s{sPASS}, 0')
    A('L_pv_start:')
    n0 = CFG.get('n0', 4)
    for i in range(n0):
        emit(kv_instr(i >> 3, i & 7, PVM, set_m0=(i & 3) == 0))
    for i in range(64):
        A(f'v_mov_b32 v{VO + i}, 0')
    A(f's_cmp_lg_u32 s{sPASS}, 0')
    A('s_cbranch_scc1 L_pv_again')
    A('v_lshrrev_b32 v42, 2, v1')
    A('v_and_b32 v43, 3, v1')
    A('v_and_b32 v44, 1, v2')
    A('v_lshrrev_b32 v45, 1, v2')
    A('v_lshl_add_u32 v46, v45, 3, v42')
    A('v_lshlrev_b32 v46, 10, v46')
    A('v_and_b32 v47, 1, v43')
    A('v_lshl_add_u32 v46, v47, 3, v46')
    A(f's_lshl_b32 s{sT0}, s{sT4P}, 8')
    A(f'v_add_u32 v46, s{sT0}, v46')
    A('v_lshrrev_b32 v47, 1, v43')
    A('v_lshl_add_u32 v47, v44, 1, v47')
    A('v_lshl_add_u32 v47, v42, 2, v47')
    A('v_cmp_eq_u32 vcc, 1, v45')
    for eh in range(2):
        A(f'v_mov_b32 v56, {SIG[eh]}')
        A(f'v_mov_b32 v57, {SIG[2 + eh]}')
        A('v_cndmask_b32 v56, v56, v57, vcc')
        A('v_xor_b32 v56, v56, v47')
        for ct in range(4):
            d = VVA + 2 * ct + eh
            A(f'v_xor_b32 v{d}, {4 * ct}, v56')
            A(f'v_lshl_add_u32 v{d}, v{d}, 4, v46')
            if eh:
                A(f'v_add_u32 v{d}, 4096, v{d}')
            A(f'v_add_u32 v{d + 8}, 0x10000, v{d}')
    todo = [(T, k) for T in range(8) for k in range(8)][n0:]

    def issue(n):
        first = True
        for _ in range(n):
            T, k = todo.pop(0)
            emit(kv_instr(T, k, vm, set_m0=(first or (k & 3) == 0)))
            first = False
    DF = CFG.get('depth', 8)
    D0 = CFG.get('depth0', DF)
    slow_n = CFG.get('slow_n', 8)

    def Dcur():
        return D0 if len(vm.ops) < slow_n else DF
    A('v_and_b32 v42, 31, v0')
    A(f'v_mul_u32_u24 v{VPR}, 80, v42')
    A('v_lshrrev_b32 v42, 5, v0')
    A(f'v_lshl_add_u32 v{VPR}, v42, 4, v{VPR}')
    A(f'v_add_u32 v{VPR}, {PBUF}, v{VPR}')
    A(f'v_mov_b32 v41, {L_FLAG}')
    A('s_waitcnt lgkmcnt(0)')
    make_tag()
    A('v_and_b32 v42, 3, v1')
    A('v_lshlrev_b32 v42, 3, v42')
    A(f'v_lshrrev_b32 v42, v42, s{sE}')
    for q in range(4):
        A(f'v_bfe_u32 v{VTG + q}, v42, {2 * q}, 1')
        A(f'v_bfe_u32 v43, v42, {2 * q + 1}, 1')
        A(f'v_lshl_or_b32 v{VTG + q}, v43, 16, v{VTG + q}')

    def stream_until(T, extra='', maxT=5):
        while True:
            D = Dcur()
            left = vm.after(('kv', T)) if len([t for t in vm.ops if t == ('kv', T)]) == 8 else -1
            if left >= D - 2 or todo[0][0] > maxT:
                A(f's_waitcnt vmcnt({left}){extra}')
                return
            A(f's_waitcnt vmcnt({D - 2})')
            issue(2)

    A('s_barrier')
    if CFG.get('pubbar', 1):
        A('s_barrier')
    if CFG.get('sl_pub', 2):
        A(f's_sleep {CFG.get("sl_pub", 2)}')
    A('L_pv_again:')
    stream_until(0, maxT=3)
    TS(2)
    A('s_barrier')
    emit(v_read_list(0, 0))
    stream_until(1, ' lgkmcnt(0)', maxT=3)
    A('s_barrier')
    emit(v_read_list(1, 1))
    stream_until(1, ' lgkmcnt(0)', maxT=4)
    TS(5)
    A('s_barrier')
    npre = CFG.get('npre', 40)
    while 64 - len(todo) < npre:
        A(f's_waitcnt vmcnt({Dcur() - 2})')
        issue(2)
        if CFG.get('fk', 0) and 64 - len(todo) == CFG.get('fk_n', 48):
            A(f's_lshl_b32 s{sT0}, s{sSID}, 7')
            A(f's_add_u32 s{sT0}, s{sT0}, {FK}')
            A(f'v_mov_b32 v42, s{sE}')
            A(f'v_mov_b32 v43, s{sT4P}')
            A('v_lshlrev_b32 v43, 2, v43')
            exec_set(1, 0)
            A(f'buffer_store_dword v42, v43, {srd(sWS)}, s{sT0} offen sc1')
            exec_all()
            vm.add('fk')
    apf = CFG.get('apf', 0)
    if apf:
        sk = lab('noapf')
        if apf == 1:
            A(f's_load_dwordx2 s[{sWO}:{sWO + 1}], s[0:1], 40')
            srd_tail(sWO)
            A(f's_lshl_b32 s{sT0}, s{sSID}, 15')
        else:
            A(f's_add_u32 s{sT0}, s{sKB}, {6 * 32768}')
        A('v_lshlrev_b32 v43, 7, v0')
        A(f's_add_u32 s{sT0}, s{sT0}, s{sT5}')
        A(f's_waitcnt vmcnt({CFG.get("apfw", 4)})')
        A('ds_read_b32 v42, v41 offset:4')
        A('s_waitcnt lgkmcnt(0)')
        A(f'v_readfirstlane_b32 s{sT1}, v42')
        A(f's_or_b32 s{sT1}, s{sT1}, s{sPASS}')
        A(f's_cbranch_scc1 {sk}')
        A(f'buffer_load_dword v42, v43, {srd(sWO if apf == 1 else sKV)}, s{sT0} offen {CFG.get("apfpol", "")}')
        A(f'{sk}:')
    A(f's_waitcnt vmcnt({vm.after(("kv", 3))})')
    TS(6)
    A('s_barrier')
    emit(v_read_list(2, 2))
    emit(v_read_list(3, 3))
    A('s_barrier')
    sp = [int(x) for x in str(CFG.get('spread', '8,4,4,4,4')).split(',')]
    assert sum(sp) == len(todo) and npre + sp[0] <= 48 and npre + sp[0] + sp[1] <= 56
    if sp[0]:
        issue(sp[0])
    A('s_waitcnt lgkmcnt(0)')
    TS(3)
    A('s_barrier')
    TS(4)

    carry = []
    SK = CFG.get('skew', 3)

    def pv(i, vset, fill, late=()):
        par = i & 1
        TC(1, i + 2)
        if i == 7:
            A('ds_read_b32 v42, v41')
        A(f'ds_read_b128 {v4(VP[par])}, v{VPR} offset:{par * 2560}')
        A(f'ds_read_b128 {v4(VP[par] + 4)}, v{VPR} offset:{par * 2560 + 32}')
        emit(carry)
        carry.clear()
        A('s_waitcnt lgkmcnt(0)')
        if i == 7:
            A(f'v_readfirstlane_b32 s{sT0}, v42')
            A(f's_cmp_lg_u32 s{sT0}, 0')
            A('s_cbranch_scc1 L_pv_redo')
        TC(3, i + 2)
        m = []
        for ks in range(2):
            for ct in range(4):
                o = VO + 16 * ct
                m.append(f'v_mfma_f32_32x32x16_bf16 v[{o}:{o + 15}], {v4(VP[par] + 4 * ks)}, {v4(VV[vset] + 8 * ct + 4 * ks)}, v[{o}:{o + 15}]')
        k = SK if i < 6 else (CFG.get('skew6', 4) if i == 6 else 0)
        if k:
            carry.extend(m[-k:])
            m = m[:-k]
        interleave(m, fill)
        TC(4, i + 2)

    def dmas(n):
        out = []
        for _ in range(n):
            T, k = todo.pop(0)
            out.append(kv_instr(T, k, vm))
        return out

    def endstep(T=None, lg=None):
        if T is not None:
            A(f's_waitcnt vmcnt({vm.after(("kv", T))})')
        if lg is not None:
            A(f's_waitcnt lgkmcnt({lg})')
        A('s_barrier')

    sp += [0] * 8
    emit(dmas(sp[1]))
    endstep()
    pv(0, 0, dmas(sp[2]))
    endstep(4)
    pv(1, 1, dmas(sp[3]) + v_read_list(4, 0))
    endstep(5)
    pv(2, 2, dmas(sp[4]) + v_read_list(5, 1))
    endstep(6)
    pv(3, 3, dmas(sp[5]) + v_read_list(6, 2))
    endstep()

    def w2_ops(half):
        if not CFG.get('ew2', 1):
            return []
        o = [[f's_min_u32 s{sT0}, s{sU}, 13', f's_lshr_b32 s{sT0}, s{sT0}, 1', f's_mul_i32 s{sT1}, s{sXC}, 7',
              f's_add_u32 s{sT0}, s{sT0}, s{sT1}', f's_lshl_b32 s{sT0}, s{sT0}, 15', f's_add_u32 s{sT0}, s{sT0}, s{sT5}',
              f's_add_u32 s{sT0}, s{sT0}, {half * 4096}', f's_add_u32 m0, s{sT5}, {L_W2 + half * 4096}', 'v_lshlrev_b32 v43, 4, v0',
              f's_and_b32 s{sT1}, s{sW}, 1', f's_lshl_b32 s{sT1}, s{sT1}, 7', f'v_xor_b32 v43, s{sT1}, v43']]
        for i in range(4):
            o.append([f'v_xor_b32 v46, {i * 32}, v43',
                      f'buffer_load_dwordx4 v46, {srd(sW2)}, s{sT0} offen offset:{i * 1024} {POL.get(sW2, NTW)} lds'])
        return o
    nw2 = 8 if CFG.get('ew2', 1) else 0
    pv(4, 0, w2_ops(0))
    endstep()
    pv(5, 1, w2_ops(1))
    A(f's_waitcnt vmcnt({nw2})')
    endstep()
    A('v_lshrrev_b32 v44, 1, v2')
    A('v_and_b32 v45, 1, v2')
    A('v_lshl_add_u32 v44, v44, 2, v45')
    A('v_lshlrev_b32 v44, 17, v44')
    A('v_lshl_add_u32 v44, v1, 4, v44')
    A(f's_lshl_b32 s{sT1}, s{sT4P}, 15')
    A(f's_lshl_b32 s{sT2}, s{sSID}, 8')
    A(f's_add_u32 s{sT1}, s{sT1}, s{sT2}')
    A(f's_add_u32 s{sT1}, s{sT1}, {OP}')
    A(f's_mov_b32 s{sT3}, 0x00010001')
    pv(6, 2, v_read_list(7, 3))
    endstep()
    emit(carry)
    carry.clear()
    endstep()
    pv(7, 3, [])
    TS(7)
    for j in range(8):
        r = 2 * j
        d = 160 + 4 * j
        A(f'v_cvt_pk_bf16_f32 v{d}, v{VO + r}, v{VO + 16 + r}')
        A(f'v_cvt_pk_bf16_f32 v{d + 1}, v{VO + r + 1}, v{VO + 16 + r + 1}')
        A(f'v_cvt_pk_bf16_f32 v{d + 2}, v{VO + 32 + r}, v{VO + 48 + r}')
        A(f'v_cvt_pk_bf16_f32 v{d + 3}, v{VO + 32 + r + 1}, v{VO + 48 + r + 1}')
        if j:
            st_o(j - 1)
    st_o(7)
    TS(8)
    A('s_branch L_att_post')
    A('L_pv_redo:')
    A('s_waitcnt vmcnt(0) lgkmcnt(0)')
    A('s_barrier')
    A(f's_mov_b32 s{sPASS}, 1')
    A('s_nop 7')
    A('s_branch L_pv_start')


def st_o(j):
    r = 2 * j
    d = 160 + 4 * j
    A(f'v_permlane16_swap_b32 v{d}, v{d + 1}')
    A(f'v_permlane16_swap_b32 v{d + 2}, v{d + 3}')
    for q in range(4):
        A(f'v_bfi_b32 v{d + q}, s{sT3}, v{VTG + q}, v{d + q}')
    head0 = (r & 3) + 8 * (r >> 2)
    A(f's_add_u32 s{sT2}, s{sT1}, {head0 * 131072}')
    A(f'buffer_store_dwordx4 {v4(d)}, v44, {srd(sWS)}, s{sT2} offen sc1')


def t3_t4():
    A('L_att_post:')
    A(f's_cmp_ge_u32 s{sU}, 14')
    A('s_cbranch_scc1 L_fin')
    A(f's_lshr_b32 s{sT4}, s{sU}, 1')
    A(f's_mul_i32 s{sT1}, s{sXC}, 7')
    A(f's_add_u32 s{sT4}, s{sT4}, s{sT1}')
    A(f's_and_b32 s{sT5}, s{sU}, 1')
    A('v_lshrrev_b32 v44, 2, v0')
    A('v_mul_u32_u24 v44, 3584, v44')
    A('v_and_b32 v45, 3, v0')
    A('v_lshrrev_b32 v32, 5, v0')
    A('v_lshlrev_b32 v32, 1, v32')
    A('v_xor_b32 v45, v45, v32')
    A('v_lshl_add_u32 v44, v45, 4, v44')
    A('v_lshlrev_b32 v32, 4, v0')
    A(f's_lshl_b32 s{sT0}, s{sT4}, 6')
    A(f's_mul_i32 s{sT1}, s{sW}, {64 * 3584}')
    A(f's_add_u32 s{sT0}, s{sT0}, s{sT1}')
    A(f's_lshl_b32 s{sT1}, s{sW}, 12')
    A(f's_add_u32 s{sT2}, s{sT1}, {L_W1}')
    A('s_barrier')
    for i in range(4):
        dma(44, sW1, f's{sT0}', lds_s=sT2)
        if i < 3:
            A(f's_add_u32 s{sT0}, s{sT0}, {16 * 3584}')
            A(f's_add_u32 s{sT2}, s{sT2}, 1024')
    if not CFG.get('ew2', 1):
        A(f's_lshl_b32 s{sT0}, s{sT4}, 15')
        A(f's_add_u32 s{sT0}, s{sT0}, s{sT1}')
        A(f's_add_u32 m0, s{sT1}, {L_W2}')
        for i in range(4):
            o = f' offset:{i * 1024}' if i else ''
            A(f'buffer_load_dwordx4 v32, {srd(sW2)}, s{sT0} offen{o} {POL.get(sW2, NTW)} lds')
    A('v_and_b32 v38, 3, v1')
    A(f's_lshl_b32 s{sT0}, s{sT5}, 12')
    A(f's_lshl_b32 s{sT1}, s{sW}, 9')
    A(f's_add_u32 s{sT1}, s{sT1}, s{sT0}')
    A('v_and_b32 v33, 31, v0')
    A('v_lshlrev_b32 v33, 4, v33')
    A('v_lshrrev_b32 v34, 5, v0')
    A('v_lshl_add_u32 v33, v34, 3, v33')
    A(f'buffer_load_dwordx2 v[40:41], v33, {srd(sX_)}, s{sT1} offen')
    A(f's_add_u32 s{sT1}, s{sT1}, {MODL}')
    A(f's_add_u32 s{sT2}, s{sT1}, 8192')
    A(f's_add_u32 s{sT3}, s{sT1}, 16384')

    def ldm():
        for k in range(3):
            A(f'buffer_load_dwordx2 {v2(44 + 2 * k)}, v33, {srd(sWS)}, s{sT1 + k} offen sc1')
    poll(ldm, range(44, 50), 56)
    A(f's_lshr_b32 s{sT0}, s{sW}, 1')
    A(f's_and_b32 s{sT1}, s{sW}, 1')
    A(f's_mul_i32 s{sT2}, s{sT0}, 1040')
    A(f's_lshl_b32 s{sT3}, s{sT1}, 9')
    A(f's_add_u32 s{sT2}, s{sT2}, s{sT3}')
    A(f's_add_u32 s{sT2}, s{sT2}, {L_H2}')
    A(f'v_add_u32 v39, s{sT2}, v33')
    A(f'ds_write_b64 v39, v[48:49] offset:{4 * 1040}')
    A(f'ds_write_b64 v39, v[46:47] offset:{8 * 1040}')
    unpack(160, 40, 2)
    unpack(164, 44, 2)
    unpack(168, 48, 2)
    A('s_waitcnt lgkmcnt(0)')
    A('s_barrier')
    if not CFG.get('tsloop', 0):
        TS(9)
    A('v_lshrrev_b32 v34, 2, v1')
    A('v_lshl_add_u32 v34, v2, 3, v34')
    A('v_lshlrev_b32 v35, 6, v34')
    A('v_lshl_add_u32 v35, v38, 3, v35')
    A('v_and_b32 v36, 1, v2')
    A(f'v_xor_b32 v36, s{sT1}, v36')
    A('v_lshl_add_u32 v35, v36, 5, v35')
    A(f's_lshl_b32 s{sT2}, s{sT0}, 13')
    A(f'v_add_u32 v35, s{sT2}, v35')
    for t in range(4):
        for eh in range(2):
            A(f'ds_read_b64_tr_b16 {v2(128 + 4 * t + 2 * eh)}, v35 offset:{L_W1 + t * 2048 + eh * 256}')
    A('v_lshlrev_b32 v35, 10, v34')
    A('v_lshl_add_u32 v35, v38, 3, v35')
    A('v_lshrrev_b32 v36, 2, v1')
    A('v_and_b32 v37, 1, v2')
    A('v_lshl_add_u32 v36, v37, 2, v36')
    A(f's_lshl_b32 s{sT2}, s{sW}, 2')
    A(f'v_xor_b32 v36, s{sT2}, v36')
    A('v_lshl_add_u32 v35, v36, 5, v35')
    assert L_W2 == 0 and CFG.get('ew2', 1)
    for tau in range(4):
        A(f'v_xor_b32 v36, {tau * 32}, v35')
        for eh in range(2):
            A(f'ds_read_b64_tr_b16 {v2(144 + 4 * tau + 2 * eh)}, v36 offset:{eh * 4096}')
    A('v_and_b32 v42, 7, v1')
    A('v_mul_u32_u24 v34, 1040, v42')
    A('v_lshl_add_u32 v34, v2, 4, v34')
    A(f's_lshl_b32 s{sT2}, s{sT0}, 8')
    A(f's_add_u32 s{sT2}, s{sT2}, {L_H2}')
    A(f'v_add_u32 v34, s{sT2}, v34')
    A('v_mul_u32_u24 v35, 144, v42')
    A('v_lshl_add_u32 v35, v2, 4, v35')
    A(f's_mul_i32 s{sT2}, s{sT0}, 1216')
    A(f's_lshl_b32 s{sT3}, s{sT1}, 6')
    A(f's_add_u32 s{sT2}, s{sT2}, s{sT3}')
    A(f's_add_u32 s{sT2}, s{sT2}, {L_FP}')
    A(f'v_add_u32 v35, s{sT2}, v35')
    A('v_lshrrev_b32 v36, 2, v1')
    A('v_mul_u32_u24 v36, 1216, v36')
    A('v_mul_u32_u24 v43, 144, v38')
    A('v_add_u32 v36, v36, v43')
    A('v_lshl_add_u32 v36, v2, 5, v36')
    A(f'v_add_u32 v36, {L_FP}, v36')
    A('v_lshrrev_b32 v37, 1, v38')
    A('v_mul_u32_u24 v37, 7168, v37')
    A('v_and_b32 v43, 1, v38')
    A('v_lshl_add_u32 v37, v43, 6, v37')
    A('v_lshl_add_u32 v37, v2, 4, v37')
    A('v_lshrrev_b32 v43, 2, v1')
    A(f'v_mul_u32_u24 v43, {4 * 7168}, v43')
    A('v_add_u32 v37, v37, v43')
    A('v_lshlrev_b32 v50, 4, v38')
    A(f'v_add_u32 v50, {L_ST}, v50')
    A(f's_lshl_b32 s{sT2}, s{sW}, 3')
    A(f's_add_u32 s{sT2}, s{sT2}, {L_ST}')
    A(f'v_mov_b32 v51, s{sT2}')
    for t in range(4):
        A(f'ds_read_b128 {v4(64 + 4 * t)}, v34 offset:{4 * 1040 + 64 * t}')
    A('s_waitcnt lgkmcnt(0)')
    for t in range(4):
        c = '0' if t == 0 else 'v[80:83]'
        A(f'v_mfma_f32_16x16x32_bf16 v[80:83], {v4(128 + 4 * t)}, {v4(64 + 4 * t)}, {c}')
    exec_set(0x00ff00ff, 0x00ff00ff)
    A('ds_write_b128 v35, v[80:83]')
    exec_all()
    A('s_waitcnt lgkmcnt(0)')
    A('s_barrier')
    A('ds_read_b128 v[176:179], v36')
    A('ds_read_b128 v[180:183], v36 offset:16')
    A('ds_read_b128 v[184:187], v36 offset:576')
    A('ds_read_b128 v[188:191], v36 offset:592')
    A(f's_lshl_b32 s{sT2}, s{sT5}, 15')
    A(f's_lshl_b32 s{sT3}, s{sT0}, 13')
    A(f's_add_u32 s{sT2}, s{sT2}, s{sT3}')
    A(f's_lshl_b32 s{sT3}, s{sT1}, 9')
    A(f's_add_u32 s{sT2}, s{sT2}, s{sT3}')
    A(f's_add_u32 s{sT2}, s{sT2}, {OPART}')
    A(f's_add_u32 s{sT3}, s{sT2}, 4096')
    A(f's_lshl_b32 s{sT0}, s{sW}, 4')
    A(f's_lshl_b32 s{sT1}, s{sT5}, 1')
    A(f's_add_u32 s{sT0}, s{sT0}, s{sT1}')
    A(f's_mul_i32 s{sT0}, s{sT0}, 7168')
    A(f's_lshl_b32 s{sT1}, s{sT4}, 7')
    A(f's_add_u32 s{sT0}, s{sT0}, s{sT1}')
    A(f's_add_u32 s{sT0}, s{sT0}, {YP}')
    A(f's_mov_b32 s{sT1}, 0xff')
    for r in range(4):
        A(f'v_lshrrev_b32 v{40 + r}, {8 * r}, s{sE}')
    A('s_waitcnt lgkmcnt(0)')
    for sh in (8, 4):
        for i in range(16):
            A(f'v_add_f32_dpp v{176 + i}, v{176 + i}, v{176 + i} row_ror:{sh} {DPPM}')

    A('v_and_b32 v57, 31, v0')
    A('v_lshlrev_b32 v57, 4, v57')
    A('v_lshrrev_b32 v58, 5, v0')
    A('v_lshl_add_u32 v57, v58, 12, v57')

    def ldo():
        for k in range(4):
            A(f'buffer_load_dwordx4 {v4(64 + 4 * k)}, v57, {srd(sWS)}, s{sT2} offen offset:{1024 * k} sc1')
    if CFG.get('h3', 2) >= 0:
        sk = lab('nohw')
        A(f's_cmp_lg_u32 s{sW}, 0')
        A(f's_cbranch_scc1 {sk}')
        A(f's_lshl_b32 s{sKB}, s{sSID}, 7')
        A(f's_add_u32 s{sKB}, s{sKB}, {F3}')
        hint_wait(sKB, sT4P)
        A(f'{sk}:')
        A('s_barrier')
    TP(1)
    poll(ldo, range(64, 80, 2), 56, sleep=CFG.get('sl_o', 0), pre_sleep=CFG.get('sl_o0', 0))
    if not CFG.get('tsloop', 0):
        TS(10)
    TP(2)
    if CFG.get('h5', 0) == 0:
        hint_pub(F4 + 64, 6, 112, sKB)
    if CFG.get('h4', 2) == 0:
        hint_pub(F4, 7, 112, sKB)
    unpack(80, 64, 16)
    n = 32
    while n > 8:
        n //= 2
        for i in range(0, n, 2):
            A(f'v_pk_add_f32 {v2(80 + i)}, {v2(80 + i)}, {v2(80 + n + i)}')
    for i in range(4):
        A(f'v_permlane32_swap_b32 v{80 + i}, v{84 + i}')
    A('v_pk_add_f32 v[80:81], v[80:81], v[84:85]')
    A('v_pk_add_f32 v[82:83], v[82:83], v[86:87]')
    for i in range(4):
        A(f'v_fma_f32 v{80 + i}, v{80 + i}, v{164 + i}, v{160 + i}')
    for i in range(4):
        A(f'v_mul_f32 v{84 + i}, v{80 + i}, v{168 + i}')
    A('v_cvt_pk_bf16_f32 v88, v84, v85')
    A('v_cvt_pk_bf16_f32 v89, v86, v87')
    A('ds_write_b64 v39, v[88:89]')
    A('v_add_f32 v52, v80, v81')
    A('v_mul_f32 v53, v80, v80')
    A('v_add_f32 v54, v82, v83')
    A('v_fmac_f32 v53, v81, v81')
    A('v_add_f32 v52, v52, v54')
    A('v_fmac_f32 v53, v82, v82')
    A('v_fmac_f32 v53, v83, v83')
    TP(3)
    A('s_waitcnt lgkmcnt(0)')
    A('s_barrier')
    TP(4)
    for t in range(4):
        A(f'ds_read_b128 {v4(64 + 4 * t)}, v34 offset:{64 * t}')
    if CFG.get('h5', 0) == 1:
        hint_pub(F4 + 64, 6, 112, sKB)
    if CFG.get('h4', 2) == 1:
        hint_pub(F4, 7, 112, sKB)
    row_reduce('v_add_f32', [52, 53])
    for t in range(4):
        A(f's_waitcnt lgkmcnt({3 - t})')
        c = '0' if t == 0 else 'v[80:83]'
        A(f'v_mfma_f32_16x16x32_bf16 v[80:83], {v4(128 + 4 * t)}, {v4(64 + 4 * t)}, {c}')
    for r in (52, 53):
        A(f'v_add_f32_dpp v{r}, v{r}, v{r} row_bcast:15 row_mask:0xa bank_mask:0xf')
    for r in (52, 53):
        A(f'v_add_f32_dpp v{r}, v{r}, v{r} row_bcast:31 row_mask:0xc bank_mask:0xf')
    exec_set(0, 0x80000000)
    A('ds_write_b64 v51, v[52:53]')
    exec_set(0x000f000f, 0x000f000f)
    A('ds_write_b128 v35, v[80:83]')
    exec_all()
    TP(5)
    A('s_waitcnt lgkmcnt(0)')
    A('s_barrier')
    TP(6)
    A('ds_read_b128 v[52:55], v50')
    A('ds_read_b128 v[64:67], v36')
    A('ds_read_b128 v[68:71], v36 offset:16')
    if CFG.get('h4', 2) == 2:
        hint_pub(F4, 7, 112, sKB)
    A('s_waitcnt lgkmcnt(2)')
    A('v_add_f32 v52, v52, v54')
    A('v_add_f32 v53, v53, v55')
    A('v_mul_f32 v52, 0x3b000000, v52')
    A('v_mul_f32 v53, 0x3b000000, v53')
    A('v_fma_f32 v53, -v52, v52, v53')
    A('v_max_f32 v53, 0, v53')
    A('v_add_f32 v53, 0x3727c5ac, v53')
    A('v_rsq_f32 v53, v53')
    A('s_waitcnt lgkmcnt(0)')
    for sh in (8, 4):
        for i in range(8):
            A(f'v_add_f32_dpp v{64 + i}, v{64 + i}, v{64 + i} row_ror:{sh} {DPPM}')
    A('v_mov_b32 v54, v53')
    A('v_mov_b32 v55, v53')
    A('v_sub_f32 v52, 0, v52')
    A('v_mov_b32 v53, v52')
    for i in range(0, 8, 2):
        A(f'v_pk_fma_f32 {v2(64 + i)}, v[52:53], {v2(176 + i)}, {v2(64 + i)}')
    for i in range(0, 8, 2):
        A(f'v_pk_fma_f32 {v2(64 + i)}, v[54:55], {v2(64 + i)}, {v2(184 + i)}')
    for i in range(4):
        A(f'v_cvt_pk_bf16_f32 v{72 + i}, v{64 + 2 * i}, v{65 + 2 * i}')
    for i in range(4):
        A(f'v_pk_max_i16 v{72 + i}, v{72 + i}, 0')
    TP(7)
    for tau in range(4):
        A(f'v_mfma_f32_16x16x32_bf16 {v4(80 + 4 * tau)}, {v4(144 + 4 * tau)}, v[72:75], 0')
    for tau in range(1, 4):
        for r in range(4):
            A(f'v_mov_b32_dpp v{80 + r}, v{80 + 4 * tau + r} quad_perm:[0,1,2,3] row_mask:0xf bank_mask:{1 << tau:#x}')
    for r in range(4):
        A(f'v_bfi_b32 v{80 + r}, s{sT1}, v{40 + r}, v{80 + r}')
    A(f'buffer_store_dwordx4 v[80:83], v37, {srd(sWS)}, s{sT0} offen sc1')
    if CFG.get('h4', 2) == 3:
        hint_pub(F4, CFG.get('h4w', 0), 112, sKB)
    TP(8)


def epilogue():
    A('L_fin:')
    if CFG['ts']:
        A('s_waitcnt lgkmcnt(0)')
        A(f's_lshl_b32 s{sT0}, s2, 9')
        A(f's_lshl_b32 s{sT1}, s{sW}, 6')
        A(f's_add_u32 s{sT0}, s{sT0}, s{sT1}')
        A(f's_add_u32 s{sT0}, s{sT0}, {TSB}')
        A('v_mov_b32 v4, 0')
        for i in range(NTS):
            A(f'v_writelane_b32 v4, s{sTS + 2 * i}, {i}')
        A(f's_memtime s[{sT2}:{sT3}]')
        A(f's_memrealtime s[{sT4}:{sT5}]')
        A('s_waitcnt lgkmcnt(0)')
        A(f'v_writelane_b32 v4, s{sT2}, 12')
        A(f'v_writelane_b32 v4, s{sT4}, 13')
        A(f'v_writelane_b32 v4, s{sT4}, 11')
        A(f'v_writelane_b32 v4, s{sEX}, 14')
        A(f's_getreg_b32 s{sT1}, hwreg(HW_REG_XCC_ID)')
        A(f'v_writelane_b32 v4, s{sT1}, 15')
        A('v_lshlrev_b32 v5, 2, v0')
        exec_set(0xffff, 0)
        A(f'buffer_store_dword v4, v5, {srd(sWS)}, s{sT0} offen')
        if CFG.get('dbg', 0):
            exec_all()
            A(f's_load_dwordx2 s[{sT0}:{sT1}], s[0:1], 96')
            A(f's_mov_b32 s{sT2}, 256')
            A(f's_mov_b32 s{sT3}, 0x00020000')
            A(f'v_subrev_u32 v4, s{sTS}, v4')
            A('s_waitcnt lgkmcnt(0)')
            for wg, wv, lanes, base in ((8, 0, (1, 2, 5, 6, 7, 9, 10), 0), (8, 2, (11,), 7), (136, 0, (2, 3, 4, 8, 10), 8), (136, 4, (2, 3, 11), 13)):
                nx = lab('dbg')
                A(f's_cmp_lg_u32 s2, {wg}')
                A(f's_cbranch_scc1 {nx}')
                A(f's_cmp_lg_u32 s{sW}, {wv}')
                A(f's_cbranch_scc1 {nx}')
                for i, ln in enumerate(lanes):
                    A(f'v_mov_b32 v5, {4 * (base + i)}')
                    exec_set(1 << ln, 0)
                    A(f'buffer_store_dword v4, v5, s[{sT0}:{sT3}], 0 offen')
                    exec_all()
                A(f'{nx}:')
        if 'diag' in CFG:
            wg, wv, idx = [int(x) for x in str(CFG['diag']).split(',')]
            exec_all()
            A(f's_cmp_lg_u32 s2, {wg}')
            A('s_cbranch_scc1 L_end')
            A(f's_cmp_lg_u32 s{sW}, {wv}')
            A('s_cbranch_scc1 L_end')
            src_ = sT4 if idx == 11 else sTS + 2 * idx
            A(f's_sub_u32 s{sT0}, s{src_}, s{sTS}')
            A(f's_lshl_b32 s{sT0}, s{sT0}, 2')
            A(f's_add_u32 s{sT0}, s{sT0}, 5000')
            A(f's_min_u32 s{sT0}, s{sT0}, 30000')
            A('L_diag:')
            A(f's_memrealtime s[{sT2}:{sT3}]')
            A('s_waitcnt lgkmcnt(0)')
            A(f's_sub_u32 s{sT2}, s{sT2}, s{sTS}')
            A(f's_cmp_lt_u32 s{sT2}, s{sT0}')
            A('s_cbranch_scc1 L_diag')
    A('L_end:')
    A('s_endpgm')


def main():
    if CFG['ts']:
        for i in range(1, NTS):
            A(f's_mov_b32 s{sTS + 2 * i}, 0')
    prologue()
    att_front()
    service_issue()
    att_p1()
    qk_wave()
    pv_wave()
    service_pre()
    t1()
    t2_final()
    t3_t4()
    epilogue()
    body = A.finalize()
    ref = open(os.path.join(os.path.dirname(os.path.abspath(__file__)), '..', NAME + '.s.ref')).read()
    head = ref[:ref.index('; @launch')]
    out = head + f'; @launch grid=(256,1,1) block=(512,1,1) lds={LDS_BYTES}\n'
    if CFG['ts'] or CFG.get('lay', 0):
        out += '; @layout ' + ' '.join(f'{k}={globals()[k]}' for k in ('MOD1', 'Q2', 'QA', 'MODL', 'STATS', 'CTX', 'OPART', 'YP', 'OP', 'TSB')) + '\n'
    out += f""".amdgcn_target "amdgcn-amd-amdhsa--gfx950"
.text
; ---------------------------------------------------------------------------------------------------------------
; Generated by gen/gen27.py (hand-written generator).  One persistent launch, 256 co-resident workgroups.
; Math: absorbed MLA (q_abs = q w_uk^T, scores = q_abs . c_kv, ctx = (P c_kv) w_uv), split-KV softmax merged with
;   exact (m, l) statistics.  Each split subtracts the max of its first key tile; a run-time check (largest exponent
; Roles: wg>>3 >= 16: attention (+ mod partials, FFN);  wg>>3 < 16: q / q_abs, merge + w_uv, w_o, output.
; Hand-offs go through d_ws: every datum carries its own validity (launch tag derived from ws[0], or a sentinel in a
;   region cleared earlier in the same launch); "hint" lines only choose when to read.  Stores are write-through
; ---------------------------------------------------------------------------------------------------------------
.globl {NAME}_kernel
.p2align 8
.type {NAME}_kernel,@function
{NAME}_kernel:
"""
    out += body
    out += 'L_code_end:\n'
    out += f""".section .rodata,"a"
.p2align 6
.amdhsa_kernel {NAME}_kernel
  .amdhsa_next_free_vgpr 256
  .amdhsa_next_free_sgpr 102
  .amdhsa_accum_offset 256
  .amdhsa_group_segment_fixed_size 0
  .amdhsa_kernarg_size 112
  .amdhsa_user_sgpr_count 2
  .amdhsa_user_sgpr_kernarg_segment_ptr 1
  .amdhsa_system_sgpr_workgroup_id_x 1
.end_amdhsa_kernel
"""
    open(sys.argv[1], 'w').write(out)


if __name__ == '__main__':
    main()
```

```python
import sys, os
sys.path.insert(0, os.path.dirname(os.path.abspath(__file__)))
from asmlib import Asm

NAME = 'adaLN_cond__compressed_kv_cla__dense_activation_relu__decode'

CFG = dict(
    sflag=1, slowp=1, sparse=0, depth=10, sl_qa0=0, flag_at=1, allf=1, h4=3, n0=8, npre=32, spread='6,10,4,8,4', lag3=0, npf=14, ew2=3, ft=9, stat_at=1, ot=4, wsplit=8, vf='0,0', sl_y0=0, sl_pub=0, sl_q2=0, sl_ctx=0, pq2=1, p_wm='-', p_w1='-', p_w2='-', p_wo='-',
    ts=0,
    poll_max=60000,
    nt='nt',
    ntw='nt',
)
for a_ in sys.argv[2:]:
    k_, v_ = a_.split('=')
    CFG[k_] = int(v_) if v_.lstrip('-').isdigit() else v_
NT = CFG['nt'] if CFG['nt'] != '-' else ''
NTW = CFG['ntw'] if CFG['ntw'] != '-' else ''

PFK = CFG.get('pfk', '-').replace('-', '')
PFW = CFG.get('pfw', '-').replace('-', '')
EPOCH = 0
CS = CFG.get('cs', 18)
XID = 0x1000
CLR_E = 0x8000
MODL = CLR_E
STATS = MODL + 0x8000
FLG = STATS + 0x8000
CNT = FLG + 0x4000
CLR_L = CNT + 0x800
OPART = CLR_L
F3, F4 = OPART + 0x10000, OPART + 0x14000
YP = OPART + 0x18000
CLR_E_PER = (CLR_L - CLR_E) // 128
CLR_L_PER = (YP - CLR_L) // 128
QA = 0x200000
CTX = QA + 0x8000
Q2 = QA + 0x10000
M2 = QA + 0x20000
MOD1 = QA + 0x30000
MSH = 12
OP = QA + (8 << CS)
WS_END = OP + 0x400000
DB = 0x180000
assert YP + 128 * 7168 <= DB
TSB = 0xe00000
WS_SIZE = 0xf00000

L_WUV = 0
L_W1 = 32768
L_W2 = 0
L_WO = 32768
L_WQ = 98304
MISC = 131072
L_WM = MISC
L_WML = MISC + 8192
SCR = MISC + 24576
L_XN = L_WO
L_RED1 = MISC + 16384
L_WM1 = MISC
L_SF = L_WO + 12288
L_H = L_WO + 16384
L_QL = L_WO + 20480
L_RED3 = L_WQ
L_Q = MISC
PBUF = MISC
L_LS = MISC + 8192
L_MX = MISC + 31744
L_FLAG = L_MX + 512
L_H2 = MISC + 8192
L_FP = MISC + 21504
L_ST = MISC + 26624
L_XOK = SCR + 4352
L_WT = SCR
L_CC = SCR + 2048
LDS_BYTES = 163840

sX_, sKV, sWQ, sWUK, sWUV, sWO, sW1, sW2, sC, sWM, sOUT, sWS = [4 + 4 * i for i in range(12)]


def srd(n):
    return f's[{n}:{n + 3}]'


sXC, sR, sU, sSID, sW, sE, sTLO, sTHI, sH, sCQ, sBH, sCNT = range(52, 64)
sT0, sT1, sT2, sT3, sT4, sT5 = range(64, 70)
sEX = 70
sLNK = 72
sTGT = 74
sPE, sPO = 76, 77
sTB = sWQ
ROT = CFG.get('rot', 1)
sX64, sX32 = 72, 73
sO0, sO1, sRDY = 74, 75, 78
sKB = 78
sWB = sBH
sXT = sW1
sXID, sLOC = sW1, sW1 + 1
sA0, sA1 = sW2 + 1, sW2 + 2
sM0, sM1 = sW1 + 2, sW1 + 3
sMS = sW2 + 3
sCX = sW2
sTS = 80
NTS = 11

A = Asm()
POL = {}
for nm_, s_ in (('wm', sWM), ('wq', sWQ), ('wuk', sWUK), ('wuv', sWUV), ('wo', sWO), ('w1', sW1), ('w2', sW2)):
    if 'p_' + nm_ in CFG:
        POL[s_] = CFG['p_' + nm_].replace('-', '')
_late = [0]
_lab = [0]


def lab(p='L'):
    _lab[0] += 1
    return f'{p}_{_lab[0]}'


def v4(n):
    return f'v[{n}:{n + 3}]'


def v2(n):
    return f'v[{n}:{n + 1}]'


def TF(i):
    if CFG['ts'] and CFG.get('tsfront', 0):
        A(f's_memrealtime s[{sTS + 2 * i}:{sTS + 2 * i + 1}]')


def TL(i):
    if CFG['ts'] and CFG.get('tslate', 0):
        A(f's_memrealtime s[{sTS + 2 * i}:{sTS + 2 * i + 1}]')


def TP(i):
    if CFG['ts'] and CFG.get('tsstep', -1) == 200:
        A(f's_memtime s[{sTS + 2 * i}:{sTS + 2 * i + 1}]')


def TC(i, j):
    if CFG['ts'] and CFG.get('tsstep', -1) == j:
        A(f's_memtime s[{sTS + 2 * i}:{sTS + 2 * i + 1}]')


def TS(i):
    if CFG['ts'] and not (CFG.get('tsfront', 0) and i >= 3) and not (CFG.get('tsstep', -1) >= 0 and i >= 1):
        assert i < NTS
        A(f's_mem{"" if CFG.get("tscyc", 0) else "real"}time s[{sTS + 2 * i}:{sTS + 2 * i + 1}]')


def exec_set(lo, hi):
    A(f's_mov_b32 exec_lo, {lo:#x}')
    A(f's_mov_b32 exec_hi, {hi:#x}')


def exec_all():
    A('s_mov_b64 exec, -1')


def rne1(d, s):
    A(f'v_cvt_pk_bf16_f32 v{d}, 0, v{s}')


def rne2(d0, d1, s0, s1):
    rne1(d0, s0)
    rne1(d1, s1)


def unpack(dst, src, n):
    for i in range(n):
        A(f'v_lshlrev_b32 v{dst + 2 * i}, 16, v{src + i}')
        A(f'v_and_b32 v{dst + 2 * i + 1}, 0xffff0000, v{src + i}')


DPPM = 'row_mask:0xf bank_mask:0xf'


def row_reduce(op, regs):
    for sh in (8, 4, 2, 1):
        for r in regs:
            A(f'{op}_dpp v{r}, v{r}, v{r} row_ror:{sh} {DPPM}')


def wave_sum(regs, sdst):
    row_reduce('v_add_f32', regs)
    for r in regs:
        A(f'v_add_f32_dpp v{r}, v{r}, v{r} row_bcast:15 row_mask:0xa bank_mask:0xf')
    for r in regs:
        A(f'v_add_f32_dpp v{r}, v{r}, v{r} row_bcast:31 row_mask:0xc bank_mask:0xf')
    for r, s in zip(regs, sdst):
        A(f'v_readlane_b32 s{s}, v{r}, 63')


def max_tree(regs, tmp):
    regs = list(regs)
    if len(regs) == 1:
        A(f'v_mov_b32 v{tmp}, v{regs[0]}')
        return
    if len(regs) == 2:
        A(f'v_max_u32 v{tmp}, v{regs[0]}, v{regs[1]}')
        return
    A(f'v_max3_u32 v{tmp}, v{regs[0]}, v{regs[1]}, v{regs[2]}')
    regs = regs[3:]
    while len(regs) >= 2:
        A(f'v_max3_u32 v{tmp}, v{tmp}, v{regs[0]}, v{regs[1]}')
        regs = regs[2:]
    if regs:
        A(f'v_max_u32 v{tmp}, v{tmp}, v{regs[0]}')


def poll(loads, check_regs, tmp, sleep=1, pre_sleep=0, check=None):
    top, done = lab('poll'), lab('pdone')
    A(f's_mov_b32 s{sCNT}, {CFG["poll_max"]}')
    if pre_sleep:
        A(f's_sleep {pre_sleep}')
    A(f'{top}:')
    loads()
    A('s_waitcnt vmcnt(0)')
    if check:
        check()
    else:
        max_tree(check_regs, tmp)
        A(f'v_cmp_eq_u32 vcc, -1, v{tmp}')
    A(f's_cbranch_vccz {done}')
    if sleep:
        A(f's_sleep {sleep}')
    A(f's_sub_u32 s{sCNT}, s{sCNT}, 1')
    A(f's_cbranch_scc0 {top}')
    A(f'{done}:')


def hint_pub(region, wave, vt, st):
    sk = lab('nohint')
    A(f's_cmp_lg_u32 s{sW}, {wave}')
    A(f's_cbranch_scc1 {sk}')
    A(f's_lshl_b32 s{st}, s{sSID}, 7')
    A(f's_add_u32 s{st}, s{st}, {region}')
    A(f'v_mov_b32 v{vt}, s{sE}')
    A(f'v_mov_b32 v{vt + 1}, 0')
    exec_set(1, 0)
    A(f'buffer_store_dword v{vt}, v{vt + 1}, {srd(sWS)}, s{st} offen sc1')
    exec_all()
    A(f'{sk}:')


def hint_wait(s_off, st, sleep=0):
    top, done = lab('hw'), lab('hd')
    A(f's_mov_b32 s{sCNT}, {CFG["poll_max"]}')
    A(f'{top}:')
    A(f's_load_dword s{st}, s[{sWS}:{sWS + 1}], s{s_off} glc')
    A('s_waitcnt lgkmcnt(0)')
    A(f's_cmp_eq_u32 s{st}, s{sE}')
    A(f's_cbranch_scc1 {done}')
    if sleep:
        A(f's_sleep {sleep}')
    A(f's_sub_u32 s{sCNT}, s{sCNT}, 1')
    A(f's_cbranch_scc0 {top}')
    A(f'{done}:')


def layernorm_rows(x, t, out_bf):
    A(f'v_readfirstlane_b32 s{sT0}, v{x}')
    for i in range(8):
        A(f'v_subrev_f32 v{t + i}, s{sT0}, v{x + i}')
    A(f'v_add_f32 v{t + 8}, v{t}, v{t + 1}')
    A(f'v_mul_f32 v{t + 9}, v{t}, v{t}')
    A(f'v_fmac_f32 v{t + 9}, v{t + 1}, v{t + 1}')
    for i in range(2, 8):
        A(f'v_add_f32 v{t + 8}, v{t + 8}, v{t + i}')
        A(f'v_fmac_f32 v{t + 9}, v{t + i}, v{t + i}')
    wave_sum([t + 8, t + 9], [sT1, sT2])
    inv = '0x3b000000'
    A(f'v_mov_b32 v{t}, {inv}')
    A(f'v_mul_f32 v{t + 1}, s{sT1}, v{t}')
    A(f'v_mul_f32 v{t + 2}, s{sT2}, v{t}')
    A(f'v_fma_f32 v{t + 2}, -v{t + 1}, v{t + 1}, v{t + 2}')
    A(f'v_max_f32 v{t + 2}, 0, v{t + 2}')
    A(f'v_add_f32 v{t + 1}, s{sT0}, v{t + 1}')
    rne2(t + 1, t + 2, t + 1, t + 2)
    A(f'v_add_f32 v{t + 2}, 0x3727c5ac, v{t + 2}')
    rne1(t + 2, t + 2)
    A(f'v_sqrt_f32 v{t + 2}, v{t + 2}')
    for i in range(8):
        A(f'v_sub_f32 v{x + i}, v{x + i}, v{t + 1}')
    rne1(t + 2, t + 2)
    A(f'v_rcp_f32 v{t + 2}, v{t + 2}')
    for i in range(0, 8, 2):
        rne2(x + i, x + i + 1, x + i, x + i + 1)
    for i in range(8):
        A(f'v_mul_f32 v{x + i}, v{x + i}, v{t + 2}')
    if out_bf is not None:
        for i in range(4):
            A(f'v_cvt_pk_bf16_f32 v{out_bf + i}, v{x + 2 * i}, v{x + 2 * i + 1}')
    else:
        for i in range(0, 8, 2):
            rne2(x + i, x + i + 1, x + i, x + i + 1)


def dma(voff, srd_, soff, lds_s=None, lds_imm=None, off=0, pol=None):
    if lds_s is not None:
        A(f's_mov_b32 m0, s{lds_s}')
    elif lds_imm is not None:
        A(f's_mov_b32 m0, {lds_imm}')
    if pol is None:
        pol = POL.get(srd_, NTW)
    if CFG.get('x_skip', 0) and _late[0]:
        return
    o = f' offset:{off}' if off else ''
    A(f'buffer_load_dwordx4 v{voff}, {srd(srd_)}, {soff} offen{o} {pol} lds')


VTR = 6
VR16 = 7
VWO = 192
VWOA = 5
sT4P = 79


SIZES = {sX_: 8192, sKV: 33554432, sWQ: 4194304, sWUK: 4194304, sWUV: 4194304, sWO: 4194304,
         sW1: 1835008, sW2: 1835008, sC: 8192, sWM: 3145728, sOUT: 8192, sWS: WS_SIZE}


def srd_tail(*regs):
    for s in regs:
        A(f's_mov_b32 s{s + 2}, {SIZES[s]}')
        A(f's_mov_b32 s{s + 3}, 0x00020000')


def late_ptrs(*regs):
    offs = {sWUV: 32, sWO: 40, sW1: 56, sW2: 64, sOUT: 88}
    A(f's_load_dword s{sE}, s[{sWS}:{sWS + 1}], {EPOCH}')
    for s in regs:
        A(f's_load_dwordx2 s[{s}:{s + 1}], s[0:1], {offs[s]}')
    srd_tail(*regs)


def cfrag_off():
    A('v_and_b32 v4, 7, v1')
    A('v_lshlrev_b32 v4, 10, v4')
    A('v_lshrrev_b32 v5, 3, v1')
    A('v_lshl_add_u32 v4, v5, 6, v4')
    A('v_lshl_add_u32 v4, v2, 4, v4')


def prologue():
    A('s_cmp_ge_u32 s2, 256')
    A('s_cbranch_scc1 L_end')
    TS(0)
    if CFG['ts']:
        A(f's_memtime s[{sEX}:{sEX + 1}]')
    for s, off in ((sC, 72), (sWM, 80), (sWS, 104), (sKV, 8), (sX_, 0), (sWQ, 16), (sWUK, 24)):
        A(f's_load_dwordx2 s[{s}:{s + 1}], s[0:1], {off}')
    A('v_mov_b32 v3, v0')
    A('v_lshrrev_b32 v4, 6, v0')
    A('v_and_b32 v0, 63, v0')
    A(f'v_readfirstlane_b32 s{sW}, v4')
    A('v_and_b32 v1, 15, v0')
    A('v_lshrrev_b32 v2, 4, v0')
    A(f's_and_b32 s{sXC}, s2, 7')
    A(f's_lshr_b32 s{sR}, s2, 3')
    A(f's_and_b32 s{sU}, s{sR}, 15')
    A(f's_lshl_b32 s{sSID}, s{sXC}, 4')
    A(f's_add_u32 s{sSID}, s{sSID}, s{sU}')
    A('v_lshlrev_b32 v16, 4, v3')
    srd_tail(sC, sWM, sWS, sX_)
    cfrag_off()
    A(f's_cmp_ge_u32 s{sR}, 16')
    A('s_cbranch_scc1 L_att0')
    A(f's_cmp_lg_u32 s{sW}, 0')
    A('s_cbranch_scc1 L_svc0')


def make_tag():
    A(f's_mul_i32 s{sE}, s{sE}, 0x9e3779b1')
    A(f's_add_u32 s{sE}, s{sE}, 0x7f4a7c15')


def code_prefetch(vt, dst=64, t=None):
    a, b, c = t or (sT0, sT1, sT2)
    A(f's_getpc_b64 s[{a}:{b}]')
    here = lab('pc')
    A(f'{here}:')
    A(f's_sub_u32 s{a}, s{a}, {here}-{NAME}_kernel')
    A(f's_subb_u32 s{b}, s{b}, 0')
    A(f's_lshl_b32 s{c}, s{sW}, 4')
    A(f's_add_u32 s{c}, s{c}, s{sU}')
    A(f's_lshl_b32 s{c}, s{c}, 10')
    sk = lab('cpf')
    A(f's_cmp_ge_u32 s{c}, L_code_end-{NAME}_kernel')
    A(f's_cbranch_scc1 {sk}')
    A(f's_min_u32 s{c}, s{c}, L_code_end-{NAME}_kernel-1024')
    A(f'v_lshl_add_u32 v{vt}, v0, 4, s{c}')
    A(f'global_load_dword v{dst}, v{vt}, s[{a}:{b}]')
    A(f'{sk}:')


def silu_frag(src_=8, dst=24, n=4, fill=None):
    unpack(64, src_, n)
    t = 64 + 2 * n
    for i in range(2 * n):
        A(f'v_mul_f32 v{t + i}, 0xbfb8aa3b, v{64 + i}')
    for i in range(2 * n):
        A(f'v_exp_f32 v{t + i}, v{t + i}')
    if fill:
        fill()
    for i in range(2 * n):
        A(f'v_add_f32 v{t + i}, 1.0, v{t + i}')
    for i in range(2 * n):
        A(f'v_rcp_f32 v{t + i}, v{t + i}')
    for i in range(2 * n):
        A(f'v_mul_f32 v{64 + i}, v{64 + i}, v{t + i}')
    for i in range(n):
        A(f'v_cvt_pk_bf16_f32 v{dst + i}, v{64 + 2 * i}, v{65 + 2 * i}')


def tree_add(base, n, stop):
    while n > stop:
        n //= 2
        for i in range(n):
            A(f'v_add_f32 v{base + i}, v{base + i}, v{base + n + i}')


def pub_flag(w):
    sk = lab('noflg')
    A(f's_cmp_lg_u32 s{sW}, {w}')
    A(f's_cbranch_scc1 {sk}')
    A(f'v_mov_b32 v76, s{sE}')
    A(f'v_not_b32 v77, v76')
    if CFG.get('allf', 0):
        A(f's_lshl_b32 s{sT3}, s{sU}, 7')
        A(f's_lshl_b32 s{sT2}, s{sXC}, 3')
        A(f's_add_u32 s{sT3}, s{sT3}, s{sT2}')
        A('v_lshlrev_b32 v78, 11, v0')
        exec_set(0xff, 0)
    else:
        A(f's_lshl_b32 s{sT3}, s{sSID}, 7')
        A('v_lshlrev_b32 v78, 3, v0')
        exec_set(0xffff, 0)
    A(f's_add_u32 s{sT3}, s{sT3}, {FLG}')
    A(f'buffer_store_dwordx2 v[76:77], v78, {srd(sWS)}, s{sT3} offen sc1')
    exec_all()
    A(f'{sk}:')


def tagbytes(v):
    A(f'v_and_b32 v{v}, 1, v0')
    A(f'v_lshlrev_b32 v{v}, 4, v{v}')
    A(f'v_lshrrev_b32 v{v}, v{v}, s{sE}')
    A(f'v_bfe_u32 v{v + 1}, v{v}, 8, 8')
    A(f'v_and_b32 v{v}, 0xff, v{v}')


def poll8(loads, base, tg, sleep, first_issued=False, pre_sleep=0, ntg=2, n=8, first_wait=0):
    top, done = lab('poll'), lab('pdone')
    A(f's_mov_b32 s{sCNT}, {CFG["poll_max"]}')
    if pre_sleep:
        A(f's_sleep {pre_sleep}')
    if not first_issued:
        loads()
    if first_wait is not None:
        A(f's_waitcnt vmcnt({first_wait})')
    A(f'{top}:')
    for i in range(n):
        A(f'v_xor_b32 v{base + i}, v{base + i}, v{tg + (i & (ntg - 1))}')
    t = base + n
    A(f'v_or3_b32 v{t}, v{base}, v{base + 1}, v{base + 2}')
    A(f'v_or3_b32 v{t + 1}, v{base + 3}, v{base + 4}, v{base + 5}')
    for i in range(6, n, 2):
        k = t + ((i >> 1) + 1 & 1)
        A(f'v_or3_b32 v{k}, v{k}, v{base + i}, v{base + i + 1}')
    A(f'v_or_b32 v{t}, v{t}, v{t + 1}')
    A(f'v_and_b32 v{t}, 0xff, v{t}')
    A(f'v_cmp_ne_u32 vcc, 0, v{t}')
    A(f's_cbranch_vccz {done}')
    if sleep:
        A(f's_sleep {sleep}')
    loads()
    A(f's_sub_u32 s{sCNT}, s{sCNT}, 1')
    A('s_waitcnt vmcnt(0)')
    A(f's_cbranch_scc0 {top}')
    A(f'{done}:')


def tile_addr():
    A(f's_lshr_b32 s{sH}, s{sSID}, 2')
    A(f's_and_b32 s{sCQ}, s{sU}, 3')
    A('v_lshlrev_b32 v29, 13, v2')
    A(f's_and_b32 s{sT5}, s{sW}, 3')
    A(f's_lshl_b32 s{sT3}, s{sCQ}, 20')
    A(f's_lshl_b32 s{sT4}, s{sT5}, 18')
    A(f's_add_u32 s{sT3}, s{sT3}, s{sT4}')
    A(f's_lshl_b32 s{sT4}, s{sH}, 8')
    A(f's_add_u32 s{sT3}, s{sT3}, s{sT4}')
    A(f's_lshl_b32 s{sT4}, s{sT5}, 13')


def ln_x():
    unpack(96, 8, 4)
    layernorm_rows(96, 72, 84)
    A(f'ds_write_b128 v16, v[84:87] offset:{L_XN}')


def wave_if(cond, val, body, other=None):
    inv = {'lt': 'ge', 'ge': 'lt', 'eq': 'lg', 'lg': 'eq'}[cond]
    sk, dn = lab('wi'), lab('wd')
    A(f's_cmp_{inv}_u32 s{sW}, {val}')
    A(f's_cbranch_scc1 {sk}')
    body()
    if other:
        A(f's_branch {dn}')
    A(f'{sk}:')
    if other:
        other()
        A(f'{dn}:')


def xid_reg():
    A(f's_getreg_b32 s{sXID}, hwreg(HW_REG_XCC_ID)')
    A(f's_not_b32 s{sT3}, s{sE}')
    A(f's_xor_b32 s{sXID}, s{sT3}, s{sXID}')
    for r in range(4):
        A(f'v_bfe_u32 v{12 + r}, s{sE}, {8 * r}, 8')


def wm_addr():
    A('v_lshrrev_b32 v32, 3, v0')
    A('v_mul_u32_u24 v32, 6144, v32')
    A('v_add_u32 v32, v32, v95')
    A('v_xor_b32 v33, 64, v32')
    A(f's_lshl_b32 s{sT0}, s{sCQ}, 2')
    A(f's_add_u32 s{sT0}, s{sT0}, s{sT5}')
    A(f's_mul_i32 s{sA0}, s{sT0}, {32 * 6144}')
    A(f's_lshl_b32 s{sT0}, s{sH}, 7')
    A(f's_add_u32 s{sA0}, s{sA0}, s{sT0}')
    A(f's_add_u32 s{sA0}, s{sA0}, 2048')
    A(f's_lshl_b32 s{sA1}, s{sT5}, 12')
    A(f's_add_u32 s{sA1}, s{sA1}, {L_WML}')


def wm_go():
    for k in range(4):
        A(f's_add_u32 s{sT0}, s{sA0}, {8 * 6144 * k}')
        A(f's_add_u32 m0, s{sA1}, {1024 * k}')
        dma(32 + (k & 1), sWM, f's{sT0}', pol=NTW)


WMAT = CFG.get('wmat', 4)


def service_issue():
    A('L_svc0:')
    A('v_lshlrev_b32 v17, 4, v0')
    if WMAT == 3:
        A(f's_lshr_b32 s{sH}, s{sSID}, 2')
        A(f's_and_b32 s{sCQ}, s{sU}, 3')
        A(f's_and_b32 s{sT5}, s{sW}, 3')
        A('v_and_b32 v95, 1, v2')
        A('v_lshlrev_b32 v95, 1, v95')
        A('v_and_b32 v19, 7, v1')
        A('v_xor_b32 v95, v95, v19')
        A('v_lshlrev_b32 v95, 4, v95')
        wm_addr()
    A('s_waitcnt lgkmcnt(0)')
    TF(3)
    A(f's_load_dword s{sE}, s[{sWS}:{sWS + 1}], {EPOCH}')
    A(f'buffer_load_dwordx4 v[8:11], v16, {srd(sX_)}, 0 offen')
    wave_if('eq', 3, lambda: A(f'buffer_load_dwordx4 v[40:43], v17, {srd(sX_)}, 0 offen'))
    if WMAT == 3:
        A('s_barrier')
        wave_if('ge', 4, wm_go)
        TF(4)
    A('s_branch L_svc')


def service_b2():
    if WMAT == 0:
        wave_if('ge', 4, lambda: (wm_go(), TF(4), A('s_waitcnt vmcnt(4)')), lambda: A('s_waitcnt vmcnt(0)'))
    elif WMAT == 3:
        wave_if('ge', 4, lambda: A('s_waitcnt vmcnt(4)'), lambda: A('s_waitcnt vmcnt(0)'))
    else:
        A('s_waitcnt vmcnt(0)')
    TF(6)
    A('v_mov_b32 v44, v16')
    A(f's_cmp_eq_u32 s{sW}, 3')
    A(f's_cselect_b32 s{sT4}, 1, 0')
    A('L_ln:')
    unpack(96, 8, 4)
    layernorm_rows(96, 72, 84)
    A(f'ds_write_b128 v44, v[84:87] offset:{L_XN}')
    for i in range(4):
        A(f'v_mov_b32 v{8 + i}, v{40 + i}')
    A('v_lshlrev_b32 v44, 4, v0')
    A(f's_sub_u32 s{sT4}, s{sT4}, 1')
    A('s_cbranch_scc0 L_ln')
    A('s_waitcnt lgkmcnt(0)')
    make_tag()
    xid_reg()
    A(f's_cmp_lt_u32 s{sW}, 4')
    A('s_cbranch_scc1 L_svc3')
    srd_tail(sWQ)
    tile_addr()
    A('v_lshlrev_b32 v30, 1, v2')
    A('v_xor_b32 v30, v30, v1')
    A('v_lshl_add_u32 v30, v30, 4, v29')
    A('v_xor_b32 v31, 128, v30')
    TF(8)
    A('s_barrier')
    TF(9)
    for i in range(8):
        A(f's_add_u32 s{sT0}, s{sT3}, {4 * 8192 * i}')
        A(f's_add_u32 m0, s{sT4}, {L_WQ + 1024 * i}')
        dma(30 + ((i >> 1) & 1), sWQ, f's{sT0}')
    A('v_xor_b32 v30, v1, v2')
    A('v_lshl_add_u32 v30, v30, 4, v29')
    for i in range(8):
        if i & 1 == 0:
            A(f'v_xor_b32 v31, {64 * (i >> 1)}, v30')
        A(f's_add_u32 s{sT0}, s{sT3}, {4 * 8192 * i}')
        A(f's_add_u32 m0, s{sT4}, {1024 * i}')
        dma(31, sWUK, f's{sT0}')
    if WMAT == 2:
        wm_go()
    TF(5)
    A('s_branch L_svc4')
    A('L_svc3:')
    for i in range(4):
        A(f'v_mov_b32 v{68 + i}, -1')
    A(f's_mul_i32 s{sT2}, s{sSID}, {CLR_L_PER}')
    A(f's_add_u32 s{sT2}, s{sT2}, {CLR_L - 3072}')
    A(f's_lshl_b32 s{sT3}, s{sSID}, 11')
    A(f's_add_u32 s{sT3}, s{sT3}, s{sX32}')
    A(f's_add_u32 s{sT3}, s{sT3}, {CTX - 1024}')
    A(f's_cmp_eq_u32 s{sW}, 3')
    A(f's_cselect_b32 s{sT3}, s{sT2}, s{sT3}')
    A(f'v_min_u32 v30, {CLR_L_PER + 3072 - 16}, v16')
    A(f'buffer_store_dwordx4 v[68:71], v30, {srd(sWS)}, s{sT3} offen sc1')

    def xid_pub():
        A(f'v_mov_b32 v66, s{sE}')
        A(f'v_mov_b32 v67, s{sXID}')
        A(f's_lshl_b32 s{sT4}, s{sSID}, 7')
        A(f's_add_u32 s{sT4}, s{sT4}, {XID}')
        exec_set(0xffff, 0)
        A(f'buffer_store_dwordx2 v[66:67], v17, {srd(sWS)}, s{sT4} offen sc1')
        exec_all()
    wave_if('eq', 1, xid_pub)
    A(f's_and_b32 s{sT2}, s{sW}, 1')
    A(f's_lshl_b32 s{sT2}, s{sT2}, 2')
    A(f's_add_u32 s{sT2}, s{sT2}, s{sCQ}')
    A(f's_lshl_b32 s{sT2}, s{sT2}, {CS - MSH}')
    A(f's_and_b32 s{sT3}, s{sH}, 15')
    A(f's_add_u32 s{sT2}, s{sT2}, s{sT3}')
    A(f's_lshl_b32 s{sT2}, s{sT2}, {MSH}')
    A(f's_add_u32 s{sT2}, s{sT2}, {MOD1 + 1024}')
    TF(8)
    A('s_barrier')
    TF(9)
    if CFG.get('hh', 1):
        A(f's_cmp_eq_u32 s{sW}, 3')
        A('s_cbranch_scc1 L_svc4')
        hint_wait(sT2, sT3)


def service_pre():
    A('L_svc:')
    for s_, o_ in ((sWUV, 32), (sWO, 40), (sOUT, 88)):
        A(f's_load_dwordx2 s[{s_}:{s_ + 1}], s[0:1], {o_}')
    srd_tail(sWUV, sWO, sOUT, sWUK, sKV)
    tile_addr()
    A(f's_mul_i32 s{sX64}, s{sXC}, {(1 << CS) - 0x10000}')
    A(f's_mul_i32 s{sX32}, s{sXC}, {(1 << CS) - 0x8000}')
    A(f's_mov_b32 s{sPE}, 0x05040100')
    A(f's_mov_b32 s{sPO}, 0x07060302')
    A('v_lshrrev_b32 v17, 2, v1')
    A('v_and_b32 v38, 3, v1')
    A('v_lshl_add_u32 v28, v2, 3, v17')
    A('v_lshlrev_b32 v36, 8, v28')
    A('v_lshl_add_u32 v36, v38, 3, v36')
    A(f'v_lshlrev_b32 v{VWOA}, 7, v28')
    A(f'v_lshl_add_u32 v{VWOA}, v38, 3, v{VWOA}')
    A('v_bfe_u32 v28, v1, 3, 1')
    A(f'v_lshl_add_u32 v{VWOA}, v28, 5, v{VWOA}')
    A('v_and_b32 v37, 1, v2')
    A(f'v_lshl_add_u32 v{VWOA}, v37, 6, v{VWOA}')
    A('v_and_b32 v19, 7, v1')
    A('v_lshlrev_b32 v95, 1, v37')
    A('v_xor_b32 v95, v95, v19')
    A('v_lshlrev_b32 v95, 4, v95')
    A('v_lshl_add_u32 v37, v37, 2, v17')
    A(f'v_xor_b32 v37, s{sW}, v37')
    A('v_lshl_add_u32 v36, v37, 5, v36')
    A(f's_lshl_b32 s{sT2}, s{sW}, 5')
    A('v_bfe_u32 v28, v0, 2, 3')
    A('v_and_b32 v21, 3, v0')
    A('v_lshrrev_b32 v22, 5, v0')
    A('v_lshl_add_u32 v22, v21, 1, v22')
    A('v_mul_u32_u24 v20, 272, v28')
    A('v_lshl_add_u32 v20, v22, 2, v20')
    A(f'v_add_u32 v20, s{sT2}, v20')
    A('v_lshlrev_b32 v24, 10, v28')
    A('v_lshl_add_u32 v24, v22, 2, v24')
    A(f's_lshl_b32 s{sT0}, s{sCQ}, 8')
    A(f's_add_u32 s{sT0}, s{sT0}, s{sT2}')
    A(f'v_add_u32 v21, s{sT0}, v24')
    A('v_mul_u32_u24 v22, 272, v19')
    A('v_lshrrev_b32 v28, 3, v1')
    A('v_lshl_add_u32 v22, v28, 6, v22')
    A('v_lshl_add_u32 v22, v2, 4, v22')
    A('v_lshlrev_b32 v17, 3, v0')
    A('v_lshlrev_b32 v23, 6, v19')
    A('v_lshl_add_u32 v23, v2, 4, v23')
    A('v_and_b32 v26, 31, v0')
    A('v_lshlrev_b32 v26, 4, v26')
    A('v_lshrrev_b32 v28, 5, v0')
    A('v_lshl_add_u32 v39, v28, 12, v26')
    A(f'v_lshl_add_u32 v26, v28, {MSH}, v26')
    A(f'v_add_u32 v27, {2 << MSH}, v26')

    if WMAT != 3:
        wm_addr()
    A(f's_lshl_b32 s{sT0}, s{sCQ}, {CS}')
    A(f's_lshr_b32 s{sT1}, s{sW}, 1')
    A(f's_lshl_b32 s{sT1}, s{sT1}, {MSH + 2}')
    A(f's_add_u32 s{sT0}, s{sT0}, s{sT1}')
    A(f's_and_b32 s{sT1}, s{sW}, 1')
    A(f's_lshl_b32 s{sT1}, s{sT1}, 9')
    A(f's_add_u32 s{sT0}, s{sT0}, s{sT1}')
    A(f's_add_u32 s{sM0}, s{sT0}, {MOD1}')
    A(f's_add_u32 s{sM1}, s{sM0}, {4 << CS}')
    A('v_lshlrev_b32 v34, 7, v2')
    A(f's_lshl_b32 s{sLOC}, s{sH}, 9')
    A(f's_add_u32 s{sLOC}, s{sLOC}, {XID}')
    A(f's_cmp_eq_u32 s{sW}, 0')
    A('s_cbranch_scc1 L_svc4')
    service_b2()
    A('L_svc4:')

    def ld1():
        A(f'buffer_load_dwordx4 v[68:71], v26, {srd(sWS)}, s{sM1} offen sc1')
        A(f'buffer_load_dwordx4 v[76:79], v27, {srd(sWS)}, s{sM1} offen sc1')
        A(f'buffer_load_dwordx4 v[64:67], v26, {srd(sWS)}, s{sM0} offen sc1')
        A(f'buffer_load_dwordx4 v[72:75], v27, {srd(sWS)}, s{sM0} offen sc1')

    A('s_waitcnt lgkmcnt(0)')
    TF(10)
    A('s_barrier')
    TS(1)
    ld1()
    A(f'buffer_load_dwordx2 v[90:91], v34, {srd(sWS)}, s{sLOC} offen sc1')
    wave_if('ge', 4, lambda: A(f's_waitcnt vmcnt({13 + 4 * (WMAT == 2)})'))
    A('s_barrier')
    A(f'ds_read_b32 v84, v21 offset:{L_XN}')
    A(f'v_add_u32 v30, {L_WQ}, v36')
    for t in range(4):
        for eh in range(2):
            A(f'ds_read_b64_tr_b16 {v2(96 + 4 * t + 2 * eh)}, v30 offset:{t * 8192 + eh * 1024}')

    A(f's_lshl_b32 s{sT2}, s{sSID}, 12')
    A(f's_lshl_b32 s{sT3}, s{sW}, 9')
    A(f's_add_u32 s{sT2}, s{sT2}, s{sT3}')
    A(f's_add_u32 s{sT2}, s{sT2}, s{sX64}')
    A(f's_add_u32 s{sT2}, s{sT2}, {Q2}')
    A(f's_mov_b32 s{sT4}, 0xff')
    A('s_waitcnt lgkmcnt(8)')
    unpack(88, 84, 1)
    poll8(ld1, 64, 12, CFG.get('sl_h', 1), first_issued=True, ntg=4, n=16)
    TS(2)
    for r in range(8):
        A(f'v_add_f32 v{64 + (r ^ 4)}, v{64 + (r ^ 4)}, v{72 + (r ^ 4)}')
    for p in (68, 69, 64, 65):
        A(f'v_permlane32_swap_b32 v{p}, v{p + 2}')
    A('v_add_f32 v68, v68, v70')
    A('v_add_f32 v69, v69, v71')
    A('v_add_f32 v64, v64, v66')
    A('v_add_f32 v65, v65, v67')
    rne2(68, 69, 68, 69)
    rne2(64, 65, 64, 65)
    A('v_add_f32 v68, 1.0, v68')
    A('v_add_f32 v69, 1.0, v69')
    rne2(68, 69, 68, 69)
    A('v_mul_f32 v68, v68, v88')
    A('v_mul_f32 v69, v69, v89')
    rne2(68, 69, 68, 69)
    A('v_add_f32 v68, v68, v64')
    A('v_add_f32 v69, v69, v65')
    A('v_cvt_pk_bf16_f32 v68, v68, v69')
    A(f'ds_write_b32 v20, v68 offset:{L_H}')
    A('s_waitcnt lgkmcnt(0)')
    A('s_barrier')
    A(f'ds_read_b128 v[64:67], v22 offset:{L_H}')
    A(f'ds_read_b128 v[68:71], v22 offset:{L_H + 128}')
    A(f'v_xor_b32 v90, s{sE}, v90')
    A(f'v_xor_b32 v91, s{sXID}, v91')
    A('v_or_b32 v90, v90, v91')
    A('v_cmp_ne_u32 vcc, 0, v90')
    A(f's_lshl_b32 s{sT0}, s{sH}, 14')
    A(f's_add_u32 s{sT0}, s{sT0}, s{sT3}')
    A(f's_add_u32 s{sT0}, s{sT0}, s{sX64}')
    A(f's_add_u32 s{sT0}, s{sT0}, {Q2}')
    A(f's_add_u32 s{sT1}, s{sT0}, 8192')
    A('s_waitcnt lgkmcnt(1)')
    A('v_mfma_f32_16x16x32_bf16 v[112:115], v[96:99], v[64:67], 0')
    A('v_mfma_f32_16x16x32_bf16 v[116:119], v[100:103], v[64:67], 0')
    A('s_waitcnt lgkmcnt(0)')
    A('v_mfma_f32_16x16x32_bf16 v[112:115], v[104:107], v[68:71], v[112:115]')
    A('v_mfma_f32_16x16x32_bf16 v[116:119], v[108:111], v[68:71], v[116:119]')
    for r in range(4):
        A(f'v_add_f32_dpp v{112 + r}, v{116 + r}, v{112 + r} row_ror:8 {DPPM}')
    for r in range(4):
        A(f'v_bfi_b32 v{112 + r}, s{sT4}, v{12 + r}, v{112 + r}')
    exec_set(0x00ff00ff, 0x00ff00ff)
    far, dn = lab('far'), lab('dn')
    A(f's_cbranch_vccnz {far}')
    A(f'buffer_store_dwordx4 v[112:115], v23, {srd(sWS)}, s{sT2} offen')
    A(f's_branch {dn}')
    A(f'{far}:')
    A(f'buffer_store_dwordx4 v[112:115], v23, {srd(sWS)}, s{sT2} offen sc1')
    A(f'{dn}:')
    exec_all()
    TS(3)

    def uk_frag():
        A('v_lshrrev_b32 v40, 2, v1')
        A('v_lshl_add_u32 v40, v40, 3, v38')
        A('v_lshlrev_b32 v40, 8, v40')
        A(f's_lshl_b32 s{sT5}, s{sW}, 13')
        A(f'v_add_u32 v40, s{sT5}, v40')
        A('v_xor_b32 v41, v1, v2')
        A(f'v_lshlrev_b32 v30, {CS}, v19')
        A('v_lshl_add_u32 v30, v2, 4, v30')
        A(f's_lshr_b32 s{sT5}, s{sH}, 4')
        A(f's_lshl_b32 s{sT5}, s{sT5}, 14')
        A(f's_lshl_b32 s{sT2}, s{sCQ}, 12')
        A(f's_add_u32 s{sT5}, s{sT5}, s{sT2}')
        A(f's_lshl_b32 s{sT2}, s{sW}, 10')
        A(f's_add_u32 s{sT5}, s{sT5}, s{sT2}')
        A(f's_and_b32 s{sT2}, s{sH}, 15')
        A(f's_lshl_b32 s{sT2}, s{sT2}, 6')
        A(f's_add_u32 s{sT5}, s{sT5}, s{sT2}')
        A(f's_add_u32 s{sT5}, s{sT5}, {QA}')
        for t in range(4):
            A(f'v_xor_b32 v42, {4 * t}, v41')
            A('v_lshl_add_u32 v42, v42, 4, v40')
            for tau in range(2):
                A(f'ds_read_b128 {v4(128 + 16 * tau + 4 * t)}, v42 offset:{1024 * tau}')

    def wm_frag():
        A('v_lshlrev_b32 v40, 4, v0')
        A(f'ds_read_b128 v[128:131], v40 offset:{L_SF}')
        A(f'ds_read_b128 v[132:135], v40 offset:{L_SF + 1024}')
        A(f's_and_b32 s{sT5}, s{sW}, 3')
        A(f's_lshl_b32 s{sT2}, s{sT5}, 5')
        A(f'v_xor_b32 v41, s{sT2}, v{VWOA}')
        A(f'v_add_u32 v41, {L_WML}, v41')
        A(f's_lshl_b32 s{sT5}, s{sT5}, 9')
        A(f's_lshl_b32 s{sT2}, s{sSID}, 12')
        A(f's_add_u32 s{sT5}, s{sT5}, s{sT2}')
        A(f's_add_u32 s{sT5}, s{sT5}, s{sX64}')
        A(f's_add_u32 s{sT5}, s{sT5}, {M2}')
    wave_if('lt', 4, uk_frag, wm_frag)

    def ld2():
        A(f'buffer_load_dwordx4 v[64:67], v39, {srd(sWS)}, s{sT0} offen sc1')
        A(f'buffer_load_dwordx4 v[68:71], v39, {srd(sWS)}, s{sT1} offen sc1')

    def sum4():
        for r in range(4):
            A(f'v_add_f32 v{64 + r}, v{64 + r}, v{68 + r}')
        A('v_permlane32_swap_b32 v64, v66')
        A('v_permlane32_swap_b32 v65, v67')
        A('v_add_f32 v64, v64, v66')
        A('v_add_f32 v65, v65, v67')
    poll8(ld2, 64, 12, 0, pre_sleep=CFG.get('sl_q2', 1), ntg=4)
    TS(4)
    sum4()
    A('v_cvt_pk_bf16_f32 v64, v64, v65')
    A(f'ds_write_b32 v20, v64 offset:{L_QL}')
    A('s_waitcnt lgkmcnt(0)')
    A('s_barrier')
    if CFG.get('flag_at', 0) == 0:
        pub_flag(4)

    def p3():
        A(f'ds_read_b128 v[64:67], v22 offset:{L_QL}')
        A(f'ds_read_b128 v[68:71], v22 offset:{L_QL + 128}')
        A('s_waitcnt lgkmcnt(0)')
        for tau in range(2):
            A(f'v_mfma_f32_16x16x32_bf16 {v4(96 + 8 * tau)}, {v4(128 + 16 * tau)}, v[64:67], 0')
            A(f'v_mfma_f32_16x16x32_bf16 {v4(100 + 8 * tau)}, {v4(132 + 16 * tau)}, v[64:67], 0')
        for tau in range(2):
            A(f'v_mfma_f32_16x16x32_bf16 {v4(96 + 8 * tau)}, {v4(136 + 16 * tau)}, v[68:71], {v4(96 + 8 * tau)}')
            A(f'v_mfma_f32_16x16x32_bf16 {v4(100 + 8 * tau)}, {v4(140 + 16 * tau)}, v[68:71], {v4(100 + 8 * tau)}')
        for tau in range(2):
            for r in range(4):
                A(f'v_add_f32_dpp v{96 + 8 * tau + r}, v{100 + 8 * tau + r}, v{96 + 8 * tau + r} row_ror:8 {DPPM}')
        for tau in range(2):
            for i in range(2):
                A(f'v_cvt_pk_bf16_f32 v{72 + 2 * tau + i}, v{96 + 8 * tau + 2 * i}, v{97 + 8 * tau + 2 * i}')
        exec_set(0x00ff00ff, 0x00ff00ff)
        A(f'buffer_store_dwordx4 v[72:75], v30, {srd(sWS)}, s{sT5} offen sc1')
        exec_all()
        if WMAT == 4:
            A('s_barrier')
        if CFG.get('flag_at', 0) == 2:
            A('s_waitcnt vmcnt(0)')
        if CFG.get('flag_at', 0) >= 1:
            pub_flag(3)

    def modl():
        for t in range(4):
            for eh in range(2):
                A(f'ds_read_b64_tr_b16 {v2(64 + 4 * t + 2 * eh)}, v41 offset:{t * 4096 + eh * 512}')
        for t in range(4):
            A(f's_waitcnt lgkmcnt({6 - 2 * t})')
            d = 96 + 4 * (t & 1)
            A(f'v_mfma_f32_16x16x32_bf16 {v4(d)}, {v4(64 + 4 * t)}, {v4(128 + 4 * (t >> 1))}, ' + ('0' if t < 2 else v4(d)))
        for r in range(4):
            A(f'v_add_f32_dpp v{96 + r}, v{100 + r}, v{96 + r} row_ror:8 {DPPM}')
        for r in range(4):
            A(f'v_bfi_b32 v{96 + r}, s{sT4}, v{12 + r}, v{96 + r}')
        exec_set(0x00ff00ff, 0x00ff00ff)
        A(f'buffer_store_dwordx4 v[96:99], v23, {srd(sWS)}, s{sT5} offen sc1')
        exec_all()
    if WMAT == 4:
        wave_if('lt', 4, p3, lambda: (A('s_barrier'), wm_go(), A(f's_mov_b32 s{sMS}, s{sT5}')))
    else:
        wave_if('lt', 4, p3, modl)
    TS(5)
    A('v_and_b32 v30, 1, v0')
    A('v_lshlrev_b32 v30, 7, v30')
    A(f's_lshl_b32 s{sT5}, s{sXC}, 11')
    A(f's_lshl_b32 s{sT2}, s{sW}, 8')
    A(f's_add_u32 s{sT5}, s{sT5}, s{sT2}')
    A(f's_add_u32 s{sT5}, s{sT5}, {XID}')
    A('v_bfe_u32 v37, v1, 2, 1')
    A('v_lshlrev_b32 v37, 12, v37')
    A('v_lshl_add_u32 v37, v38, 5, v37')
    A('v_lshl_add_u32 v37, v2, 3, v37')
    A(f's_lshl_b32 s{sCX}, s{sH}, 13')
    A(f's_lshl_b32 s{sT2}, s{sCQ}, 10')
    A(f's_add_u32 s{sCX}, s{sCX}, s{sT2}')
    A(f's_lshl_b32 s{sT2}, s{sW}, 7')
    A(f's_add_u32 s{sCX}, s{sCX}, s{sT2}')
    A(f's_add_u32 s{sCX}, s{sCX}, s{sX32}')
    A(f's_add_u32 s{sCX}, s{sCX}, {CTX}')
    A(f's_lshl_b32 s{sT0}, s{sH}, 14')
    A(f's_lshl_b32 s{sT1}, s{sCQ}, 9')
    A(f's_add_u32 s{sT0}, s{sT0}, s{sT1}')
    A(f's_add_u32 s{sT0}, s{sT0}, s{sX64}')
    A(f's_add_u32 s{sT0}, s{sT0}, {M2}')
    A(f's_add_u32 s{sT1}, s{sT0}, 8192')
    atch = CFG.get('atch', 0)
    skip = CFG.get('skip', -1)
    if skip >= 0:
        atch = 4
    npf = CFG.get('npf', 16) - atch
    R = (npf + 7) // 8
    if npf:
        per = npf * 8 // R
        assert per * R == npf * 8
        A(f's_mul_i32 s{sT2}, s{sW}, {per}')
        A(f's_lshl_b32 s{sT3}, s{sXC}, 22')
        for i in range(R):
            A(f's_add_u32 s{sA0}, s{sT2}, {(32 - atch - npf) * 64 + i * per * 8}')
            A(f'v_add_u32 v119, s{sA0}, v0')
            if skip >= 0:
                A('v_add_u32 v115, 256, v119')
                A(f'v_cmp_le_u32 vcc, {256 * skip}, v119')
                A('v_cndmask_b32 v119, v119, v115, vcc')
            A('v_lshrrev_b32 v115, 8, v119')
            A(f'v_mul_u32_u24 v115, {ROT}, v115')
            A(f'v_add_u32 v115, s{sU}, v115')
            A('v_and_b32 v115, 15, v115')
            A('v_lshlrev_b32 v115, 18, v115')
            if CFG.get('kord', 1):
                A('v_bfe_u32 v114, v119, 3, 2')
                A('v_lshl_add_u32 v115, v114, 13, v115')
                A('v_bfe_u32 v114, v119, 5, 3')
                A('v_lshl_add_u32 v115, v114, 10, v115')
                A('v_and_b32 v119, 0x707, v119')
            A(f'v_lshl_add_u32 v{118 - i}, v119, 7, v115')
    def smalls():
        A(f'buffer_load_dwordx2 v[90:91], v30, {srd(sWS)}, s{sT5} offen sc1')
        A(f'buffer_load_dwordx2 v[92:93], v37, {srd(sWS)}, s{sCX} offen sc1')

    def touch(i):
        m = (1 << per) - 1
        if per < 64:
            exec_set(m & 0xffffffff, m >> 32)
        A(f'buffer_load_dword v{118 - i}, v{118 - i}, {srd(sKV)}, s{sT3} offen {PFK}')
        if per < 64:
            exec_all()
    if WMAT == 4:
        assert R == 2
        smalls()
        wave_if('lt', 4, lambda: (touch(0), A('s_barrier')),
                lambda: (A('s_waitcnt vmcnt(2)'), A('s_barrier'), A(f's_mov_b32 s{sT5}, s{sMS}'), modl(), touch(0)))
        A('s_barrier')
        touch(1)
        A('v_mov_b32 v45, v39')
        A(f's_mov_b32 s{sTLO}, s{sT0}')
        A(f's_mov_b32 s{sTHI}, s{sT1}')
        wave_if('eq', 5, ld2)
        A('s_barrier')
    else:
        A('s_barrier')
        wave_if('eq', 5, ld2)
        smalls()
        for i in range(R):
            touch(i)
            A('s_barrier')
    TL(1)
    wave_if('eq', 5, lambda: A(f's_waitcnt vmcnt({R + 3})'), lambda: A(f's_waitcnt vmcnt({R + 1})'))
    A(f'v_xor_b32 v90, s{sE}, v90')
    A(f'v_xor_b32 v91, s{sXID}, v91')
    A('v_or_b32 v90, v90, v91')
    A('v_and_b32 v91, 1, v0')
    A(f's_lshl_b32 s{sT2}, s{sW}, 3')
    A(f's_add_u32 s{sT2}, s{sT2}, {L_XOK}')
    A(f'v_lshl_add_u32 v91, v91, 2, s{sT2}')
    A('ds_write_b32 v91, v90')

    def modl_fin():
        def ld3():
            A(f'buffer_load_dwordx4 v[64:67], v45, {srd(sWS)}, s{sTLO} offen sc1')
            A(f'buffer_load_dwordx4 v[68:71], v45, {srd(sWS)}, s{sTHI} offen sc1')
        poll8(ld3, 64, 12, 2, first_issued=True, ntg=4, first_wait=4)
        sum4()
        A(f's_lshr_b32 s{sT2}, s{sSID}, 5')
        A(f's_lshl_b32 s{sT1}, s{sT2}, 13')
        A(f's_and_b32 s{sT3}, s{sSID}, 31')
        A(f's_lshl_b32 s{sT3}, s{sT3}, 5')
        A(f's_add_u32 s{sT1}, s{sT1}, s{sT3}')
        A(f's_add_u32 s{sT1}, s{sT1}, {MODL}')
        A(f's_cmp_eq_u32 s{sT2}, 2')
        A(f's_cselect_b32 s{sT2}, 1.0, 0')
        rne2(64, 65, 64, 65)
        A(f'v_add_f32 v64, s{sT2}, v64')
        A(f'v_add_f32 v65, s{sT2}, v65')
        A('v_cvt_pk_bf16_f32 v64, v64, v65')
        A(f'buffer_store_dword v64, v24, {srd(sWS)}, s{sT1} offen sc1')
    LATER.append(lambda: wave_if('eq', 5, modl_fin))
    if CFG.get('wb0', 0):
        sk = lab('nowb')
        A(f's_cmp_lg_u32 s{sW}, 6')
        A(f's_cbranch_scc1 {sk}')
        A(f's_cmp_ge_u32 s{sU}, {CFG["wb0"]}')
        A(f's_cbranch_scc1 {sk}')
        A('buffer_wbl2 sc1')
        A(f'{sk}:')
    TL(2)
    def t_uv():
        A('v_lshrrev_b32 v114, 3, v3')
        A('v_lshlrev_b32 v114, 13, v114')
        A('v_lshl_add_u32 v114, v19, 7, v114')
        A(f's_lshl_b32 s{sT3}, s{sU}, 18')
        A(f's_lshl_b32 s{sT4}, s{sXC}, 10')
        A(f's_add_u32 s{sT3}, s{sT3}, s{sT4}')
        A(f'buffer_load_dword v114, v114, {srd(sWUV)}, s{sT3} offen')

    def t_o():
        A('v_lshlrev_b32 v113, 7, v3')
        A(f's_lshl_b32 s{sT3}, s{sSID}, 15')
        A(f'buffer_load_dword v113, v113, {srd(sWO)}, s{sT3} offen')
    if not CFG.get('ut', 0):
        wave_if('lt', 4, t_uv)
    if not CFG.get('ot', 0):
        wave_if('lt', 4, t_o)
    A('s_barrier')
    A(f's_lshl_b32 s{sWB}, s{sU}, 2')
    A(f's_add_u32 s{sWB}, s{sWB}, s{sW}')
    A(f's_and_b32 s{sWB}, s{sWB}, 7')
    A('v_lshrrev_b32 v17, 3, v0')
    A('v_lshlrev_b32 v17, 10, v17')
    A('v_add_u32 v17, v17, v95')
    A('v_xor_b32 v18, 64, v17')
    A(f's_lshl_b32 s{sO0}, s{sXC}, 19')
    A(f's_lshl_b32 s{sT2}, s{sWB}, 16')
    A(f's_add_u32 s{sO0}, s{sO0}, s{sT2}')
    A(f's_lshr_b32 s{sT2}, s{sU}, 1')
    A(f's_xor_b32 s{sT2}, s{sT2}, {CFG.get("nsx", 4)}')
    A(f's_lshl_b32 s{sT2}, s{sT2}, 7')
    A(f's_add_u32 s{sO0}, s{sO0}, s{sT2}')
    A(f's_lshl_b32 s{sO1}, s{sW}, 13')
    A(f's_add_u32 s{sO1}, s{sO1}, {L_WO}')
    A(f'v_add_u32 v{VWOA}, s{sO1}, v{VWOA}')


def wo_dma(idx):
    for i in idx:
        A(f's_add_u32 s{sT1}, s{sO0}, {8 * 1024 * i}')
        A(f's_add_u32 m0, s{sO1}, {1024 * i}')
        dma(17 + (i & 1), sWO, f's{sT1}')


def wuv_dma(idx, wave_s, nwaves, vt):
    per = 32 // nwaves
    A(f'v_and_b32 v{vt}, 1, v2')
    A(f'v_lshlrev_b32 v{vt}, 18, v{vt}')
    A(f'v_lshrrev_b32 v{vt + 1}, 1, v2')
    A(f'v_lshl_add_u32 v{vt}, v{vt + 1}, 17, v{vt}')
    A(f'v_lshlrev_b32 v{vt + 1}, 1, v2')
    A(f'v_xor_b32 v{vt + 1}, v{vt + 1}, v1')
    A(f'v_lshl_add_u32 v{vt}, v{vt + 1}, 4, v{vt}')
    A(f'v_xor_b32 v{vt + 1}, 128, v{vt}')
    A(f's_lshl_b32 s{sT1}, s{sCQ}, 20')
    A(f's_mul_i32 s{sT2}, s{wave_s}, {per // 2 * 8192}')
    A(f's_add_u32 s{sT1}, s{sT1}, s{sT2}')
    A(f's_lshl_b32 s{sT2}, s{sH}, 8')
    A(f's_add_u32 s{sT1}, s{sT1}, s{sT2}')
    A(f's_mul_i32 s{sT2}, s{wave_s}, {per * 1024}')
    assert L_WUV == 0
    for i in idx:
        A(f's_add_u32 s{sT3}, s{sT1}, {((i & 1) * 64 + (i >> 1)) * 8192}')
        A(f's_add_u32 s{sT4}, s{sT2}, {i * 1024}')
        dma(vt + ((i >> 1) & 1), sWUV, f's{sT3}', lds_s=sT4)


def t1():
    _late[0] = 0
    A('v_and_b32 v38, 3, v1')
    A('v_lshlrev_b32 v32, 10, v2')
    A('v_lshl_add_u32 v32, v1, 4, v32')
    A(f's_lshl_b32 s{sT0}, s{sSID}, 15')
    A(f's_lshl_b32 s{sT1}, s{sW}, 12')
    A(f's_add_u32 s{sT0}, s{sT0}, s{sT1}')
    A(f's_add_u32 s{sT0}, s{sT0}, {OP}')
    A(f's_lshl_b32 s{sT2}, s{sW}, 8')
    A(f's_add_u32 s{sT2}, s{sT2}, {L_WT}')
    A('v_and_b32 v33, 1, v1')
    A('v_lshlrev_b32 v33, 5, v33')
    A('v_lshl_add_u32 v33, v2, 3, v33')
    A(f'v_add_u32 v33, s{sT2}, v33')
    A('v_lshlrev_b32 v44, 5, v2')
    A('v_lshl_add_u32 v44, v1, 1, v44')
    A(f'v_add_u32 v44, s{sT2}, v44')
    A(f's_mul_i32 s{sT2}, s{sW}, 272')
    A(f's_add_u32 s{sT2}, s{sT2}, {L_CC}')
    A('v_lshlrev_b32 v34, 4, v1')
    A(f'v_add_u32 v34, s{sT2}, v34')
    A('v_mul_u32_u24 v35, 272, v19')
    A('v_lshl_add_u32 v35, v2, 4, v35')
    A(f'v_add_u32 v35, {L_CC}, v35')
    A('v_lshlrev_b32 v49, 3, v38')
    A(f'v_lshrrev_b32 v49, v49, s{sE}')
    for k in range(4):
        A(f'v_bfe_u32 v{8 + k}, v49, {2 * k}, 1')
        A(f'v_bfe_u32 v48, v49, {2 * k + 1}, 1')
        A(f'v_lshl_or_b32 v{8 + k}, v48, 16, v{8 + k}')
    if CFG.get('stl', 0):
        A('v_lshlrev_b32 v39, 5, v1')
        A(f's_lshl_b32 s{sT2}, s{sXC}, 12')
        A(f's_lshl_b32 s{sT3}, s{sW}, 9')
        A(f's_add_u32 s{sT2}, s{sT2}, s{sT3}')
        A(f's_and_b32 s{sT3}, s{sH}, 3')
        A(f's_lshl_b32 s{sT3}, s{sT3}, 3')
        A(f's_add_u32 s{sT2}, s{sT2}, s{sT3}')
        A(f's_add_u32 s{sT2}, s{sT2}, {STATS}')
    else:
        A('v_lshlrev_b32 v39, 8, v1')
        A(f's_lshl_b32 s{sT2}, s{sW}, 12')
        A(f's_lshl_b32 s{sT3}, s{sH}, 3')
        A(f's_add_u32 s{sT2}, s{sT2}, s{sT3}')
        A(f's_add_u32 s{sT2}, s{sT2}, {STATS}')
    A(f's_mov_b32 s{sM1}, s{sT2}')
    t2_setup()
    A('v_lshlrev_b32 v110, 2, v1')
    A(f'v_add_u32 v110, {L_XOK}, v110')
    lst = lambda: A(f'buffer_load_dwordx2 v[40:41], v39, {srd(sWS)}, s{sM1} offen sc1')

    def ldd():
        for e in range(4):
            A(f'buffer_load_dwordx4 {v4(64 + 4 * e)}, v32, {srd(sWS)}, s{sT0} offen offset:{256 * e} sc1')
    A(f's_lshl_b32 s{sM0}, s{sH}, 10')
    A(f's_lshl_b32 s{sT1}, s{sW}, 7')
    A(f's_add_u32 s{sM0}, s{sM0}, s{sT1}')
    A(f's_add_u32 s{sM0}, s{sM0}, {DB}')
    TL(3)
    wuv_dma(range(4), wave_s=sW, nwaves=8, vt=28)
    LATER[0]()
    TL(4)
    A(f's_load_dword s{sT1}, s[{sWS}:{sWS + 1}], s{sM0} glc')
    A('s_waitcnt lgkmcnt(0)')
    TS(6)
    ws = CFG.get('wsplit', 4)

    def uvfrag():
        A('s_barrier')
        A('ds_read_b32 v110, v110')
        for t in range(4):
            for eh in range(2):
                A(f'ds_read_b64_tr_b16 {v2(112 + 4 * t + 2 * eh)}, v36 offset:{L_WUV + t * 8192 + eh * 1024}')
    got = lab('gotst')
    A(f's_mov_b32 s{sRDY}, 1')
    A(f's_cmp_eq_u32 s{sT1}, s{sE}')
    A(f's_cbranch_scc1 {got}')
    A(f's_mov_b32 s{sRDY}, 0')
    wo_dma(range(8))
    A('s_waitcnt vmcnt(8)')
    uvfrag()
    hint_wait(sM0, sT1, sleep=CFG.get('sl_db', 0))
    A(f'{got}:')
    TS(7)
    lst()
    ldd()

    def if_rdy(body):
        sk = lab('nr')
        A(f's_cmp_eq_u32 s{sRDY}, 0')
        A(f's_cbranch_scc1 {sk}')
        body()
        A(f'{sk}:')
    A('s_waitcnt vmcnt(4)')
    A('v_max_u32 v47, v40, v41')
    A('v_cmp_eq_u32 vcc, -1, v47')
    okst = lab('okst')
    A(f's_cbranch_vccz {okst}')
    poll(lst, [40, 41], 47, sleep=0)
    A(f'{okst}:')
    if_rdy(lambda: (wo_dma(range(ws)), uvfrag()))
    wchain = ['v_mov_b32 v42, v40', 'v_and_b32 v50, 1, v2', f'v_cmp_eq_u32 s[{sEX}:{sEX + 1}], 1, v50']
    wchain += [f'v_max_f32_dpp v42, v42, v42 row_ror:{sh} {DPPM}' for sh in (8, 4, 2, 1)]
    wchain += ['v_sub_f32 v40, v40, v42', 'v_exp_f32 v40, v40', 'v_mul_f32 v41, v41, v40']
    wchain += [f'v_add_f32_dpp v41, v41, v41 row_ror:{sh} {DPPM}' for sh in (8, 4, 2, 1)]
    wchain += ['v_rcp_f32 v41, v41', 'v_mul_f32 v40, v40, v41', 'v_cvt_pk_bf16_f32 v42, v40, v40', 'v_and_b32 v43, 0xffff0000, v42',
               'v_sub_f32 v40, v40, v43', 'v_cvt_pk_bf16_f32 v43, v40, v40',
               f'v_cndmask_b32 v42, v42, v43, s[{sEX}:{sEX + 1}]',
               'ds_write_b16 v44, v42', 'ds_read_b64 v[52:53], v33']
    chk_ = [f'v_xor_b32 v{80 + i}, v{64 + i}, v{8 + (i & 3)}' for i in range(16)]
    chk_ += ['v_or3_b32 v47, v80, v81, v82', 'v_or3_b32 v48, v83, v84, v85', 'v_or3_b32 v47, v47, v86, v87', 'v_or3_b32 v48, v48, v88, v89',
             'v_or3_b32 v47, v47, v90, v91', 'v_or3_b32 v48, v48, v92, v93', 'v_or3_b32 v47, v47, v94, v95', 'v_or_b32 v47, v47, v48',
             'v_and_b32 v47, 0x00010001, v47', 'v_cmp_ne_u32 vcc, 0, v47']
    nw0 = CFG.get('nw0', 7)
    emit(wchain[:nw0])
    top, done, chk = lab('poll'), lab('pdone'), lab('chk')
    A(f's_mov_b32 s{sCNT}, {CFG["poll_max"]}')
    A(f's_waitcnt vmcnt({ws})')
    A(f's_cmp_lg_u32 s{sRDY}, 0')
    A(f's_cbranch_scc1 {chk}')
    A('s_waitcnt vmcnt(0)')
    A(f'{chk}:')
    a_, b_ = wchain[nw0:], list(chk_)
    while a_ or b_:
        emit(a_[:1] + b_[:2])
        a_, b_ = a_[1:], b_[2:]
    A(f's_cbranch_vccz {done}')
    A(f'{top}:')
    ldd()
    A('s_waitcnt vmcnt(0)')
    emit(chk_)
    A(f's_cbranch_vccz {done}')
    A(f's_sub_u32 s{sCNT}, s{sCNT}, 1')
    A(f's_cbranch_scc0 {top}')
    A(f'{done}:')
    TS(8)
    for z in range(8):
        for i in range(2):
            sel = sPO if z & 1 else sPE
            A(f'v_perm_b32 v{64 + 2 * z + i}, v{80 + 8 * i + 4 + (z >> 1)}, v{80 + 8 * i + (z >> 1)}, s{sel}')
        if z & 1:
            for i in range(2):
                A(f'v_or_b32 v{64 + 2 * z + i}, 0x00010001, v{64 + 2 * z + i}')
        if z == 3:
            A('s_waitcnt lgkmcnt(0)')
        if z >= 3:
            A(f'v_mfma_f32_16x16x16_bf16 {v4(128 + 4 * (z - 3))}, v[52:53], {v2(64 + 2 * (z - 3))}, 0')
    for z in range(5, 8):
        A(f'v_mfma_f32_16x16x16_bf16 {v4(128 + 4 * z)}, v[52:53], {v2(64 + 2 * z)}, 0')
    for z in range(8):
        A(f'v_add_f32 v{128 + 4 * z}, v{128 + 4 * z}, v{129 + 4 * z}')
    for i in range(4):
        A(f'v_cvt_pk_bf16_f32 v{80 + i}, v{128 + 8 * i}, v{132 + 8 * i}')
    exec_set(0xffff, 0)
    A('ds_write_b128 v34, v[80:83]')
    exec_all()
    A('s_waitcnt lgkmcnt(0)')
    A('s_barrier')
    for t in range(4):
        A(f'ds_read_b128 {v4(64 + 4 * t)}, v35 offset:{64 * t}')
    for t in range(4):
        A(f's_waitcnt lgkmcnt({3 - t})')
        c = '0' if t == 0 else 'v[84:87]'
        A(f'v_mfma_f32_16x16x32_bf16 v[84:87], {v4(112 + 4 * t)}, {v4(64 + 4 * t)}, {c}')
    A('v_cmp_ne_u32 vcc, 0, v110')
    A(f's_or_b32 s{sLOC}, vcc_lo, vcc_hi')
    A('v_cvt_pk_bf16_f32 v88, v84, v85')
    A('v_cvt_pk_bf16_f32 v89, v86, v87')
    exec_set(0x00ff00ff, 0x00ff00ff)
    far, dn = lab('far'), lab('dn')
    A(f's_cmp_lg_u32 s{sLOC}, 0')
    A(f's_cbranch_scc1 {far}')
    A(f'buffer_store_dwordx2 v[88:89], v37, {srd(sWS)}, s{sCX} offen')
    A(f's_branch {dn}')
    A(f'{far}:')
    A(f'buffer_store_dwordx2 v[88:89], v37, {srd(sWS)}, s{sCX} offen sc1')
    A(f'{dn}:')
    exec_all()
    TS(9)
    if ws < 8:
        if_rdy(lambda: (wo_dma(range(ws, 8)), A('s_waitcnt vmcnt(0)')))
    A('s_waitcnt vmcnt(1)')
    for nt in range(4):
        A(f'v_xor_b32 v47, {nt * 32}, v{VWOA}')
        for t in range(2):
            for eh in range(2):
                A(f'ds_read_b64_tr_b16 {v2(VWO + 16 * t + 4 * nt + 2 * eh)}, v47 offset:{t * 4096 + eh * 512}')


def x1_from(o, x, ga, n, t):
    for i in range(0, n, 2):
        rne2(o + i, o + i + 1, o + i, o + i + 1)
    for i in range(n):
        A(f'v_mul_f32 v{o + i}, v{o + i}, v{ga + i}')
    for i in range(0, n, 2):
        rne2(o + i, o + i + 1, o + i, o + i + 1)
    for i in range(n):
        A(f'v_add_f32 v{o + i}, v{o + i}, v{x + i}')
    for i in range(0, n, 2):
        rne2(o + i, o + i + 1, o + i, o + i + 1)


def sum4_packed(dst, src, nd, t):
    n = 2 * nd
    unpack(dst, src, nd)
    unpack(t, src + nd, nd)
    for i in range(n):
        A(f'v_add_f32 v{dst + i}, v{dst + i}, v{t + i}')
    unpack(t, src + 2 * nd, nd)
    unpack(t + n, src + 3 * nd, nd)
    for i in range(n):
        A(f'v_add_f32 v{t + i}, v{t + i}, v{t + n + i}')
    for i in range(n):
        A(f'v_add_f32 v{dst + i}, v{dst + i}, v{t + i}')


def t2_setup():
    A('v_lshrrev_b32 v56, 2, v1')
    A('v_lshlrev_b32 v57, 6, v56')
    A('v_lshlrev_b32 v56, 10, v56')
    A('v_lshl_add_u32 v56, v38, 5, v56')
    A('v_lshrrev_b32 v58, 1, v2')
    A('v_lshl_add_u32 v56, v58, 7, v56')
    A('v_and_b32 v58, 1, v2')
    A('v_lshl_add_u32 v56, v58, 4, v56')
    A(f's_and_b32 s{sT5}, s{sU}, 1')
    A(f's_lshl_b32 s{sA0}, s{sXC}, 15')
    A(f's_lshr_b32 s{sT4}, s{sWB}, 1')
    A(f's_lshl_b32 s{sT4}, s{sT4}, 13')
    A(f's_add_u32 s{sA0}, s{sA0}, s{sT4}')
    A(f's_lshl_b32 s{sT4}, s{sT5}, 12')
    A(f's_add_u32 s{sA0}, s{sA0}, s{sT4}')
    A(f's_and_b32 s{sT4}, s{sWB}, 1')
    A(f's_lshl_b32 s{sT4}, s{sT4}, 9')
    A(f's_add_u32 s{sA0}, s{sA0}, s{sT4}')
    A(f's_add_u32 s{sA0}, s{sA0}, s{sX32}')
    A(f's_add_u32 s{sA0}, s{sA0}, {CTX}')
    A('v_mul_u32_u24 v58, 272, v38')
    A('v_add_u32 v57, v57, v58')
    A('v_lshl_add_u32 v57, v2, 4, v57')
    A(f's_mul_i32 s{sT4}, s{sW}, 1088')
    A(f's_add_u32 s{sT4}, s{sT4}, {L_RED3}')
    A(f'v_add_u32 v57, s{sT4}, v57')
    A('v_lshlrev_b32 v58, 3, v3')
    A('v_lshrrev_b32 v59, 5, v3')
    A('v_lshl_add_u32 v58, v59, 4, v58')
    A(f'v_add_u32 v58, {L_RED3}, v58')
    A('v_lshrrev_b32 v59, 5, v3')
    A('v_lshlrev_b32 v59, 13, v59')
    A('v_and_b32 v60, 31, v3')
    A('v_lshl_add_u32 v59, v60, 2, v59')
    A(f's_lshl_b32 s{sA1}, s{sT5}, 15')
    A(f's_lshl_b32 s{sT4}, s{sXC}, 10')
    A(f's_add_u32 s{sA1}, s{sA1}, s{sT4}')
    A(f's_lshr_b32 s{sT4}, s{sU}, 1')
    A(f's_xor_b32 s{sT4}, s{sT4}, {CFG.get("nsx", 4)}')
    A(f's_lshl_b32 s{sT4}, s{sT4}, 7')
    A(f's_add_u32 s{sA1}, s{sA1}, s{sT4}')
    A(f's_add_u32 s{sA1}, s{sA1}, {OPART}')


def t2_final():
    def ld():
        for t in range(2):
            A(f'buffer_load_dwordx4 {v4(64 + 4 * t)}, v56, {srd(sWS)}, s{sA0} offen offset:{256 * t} sc1')
    if CFG.get('h3', 2) == 0:
        hint_pub(F3, 7, 108, sT0)
    poll(ld, range(64, 72, 2), 47, sleep=0, pre_sleep=CFG.get('sl_ctx', 1))
    if CFG.get('h3', 2) == 1:
        hint_pub(F3, 7, 108, sT0)
    if CFG.get('ts2', 0):
        TS(1)
    A('s_waitcnt lgkmcnt(0)')
    for t in range(2):
        for nt in range(4):
            c = '0' if t == 0 else v4(80 + 4 * nt)
            A(f'v_mfma_f32_16x16x32_bf16 {v4(80 + 4 * nt)}, {v4(VWO + 16 * t + 4 * nt)}, {v4(64 + 4 * t)}, {c}')
    for k in range(2):
        for r in range(4):
            A(f'v_add_f32_dpp v{96 + 4 * k + r}, v{80 + 4 * k + r}, v{80 + 4 * k + r} row_ror:8 row_mask:0xf bank_mask:0x3')
    for k in range(2):
        for r in range(4):
            A(f'v_add_f32_dpp v{96 + 4 * k + r}, v{88 + 4 * k + r}, v{88 + 4 * k + r} row_ror:8 row_mask:0xf bank_mask:0xc')
    for r in range(4):
        A(f'v_add_f32_dpp v{104 + r}, v{96 + r}, v{96 + r} row_shl:4 row_mask:0xf bank_mask:0x5')
    for r in range(4):
        A(f'v_add_f32_dpp v{104 + r}, v{100 + r}, v{100 + r} row_shr:4 row_mask:0xf bank_mask:0xa')
    A('ds_write_b128 v57, v[104:107]')
    A('s_waitcnt lgkmcnt(0)')
    A('s_barrier')
    if CFG.get('h3', 2) == 2:
        hint_pub(F3, 7, 108, sT0)
    if CFG.get('wb', 0):
        sk = lab('nowb')
        A(f's_cmp_lg_u32 s{sW}, 5')
        A(f's_cbranch_scc1 {sk}')
        A(f's_cmp_ge_u32 s{sU}, {CFG["wb"]}')
        A(f's_cbranch_scc1 {sk}')
        A('buffer_wbl2 sc1')
        A(f'{sk}:')
    A(f's_cmp_ge_u32 s{sW}, 3')
    A('s_cbranch_scc1 L_fin')
    A(f's_cmp_eq_u32 s{sW}, 2')
    A('s_cbranch_scc1 L_final')
    for p in range(8):
        A(f'ds_read_b64 {v2(64 + 2 * p)}, v58 offset:{1088 * p}')
    A('s_waitcnt lgkmcnt(0)')
    tree_add(64, 16, 2)
    A('v_cvt_pk_bf16_f32 v64, v64, 0')
    A('v_and_b32 v66, 0x7fffffff, v65')
    A('v_add_u32 v66, 0x8000, v66')
    A(f's_mov_b32 s{sT0}, 0xffff')
    A(f's_brev_b32 s{sT1}, 1')
    A('v_sub_u32 v66, v66, v64 clamp')
    A(f'v_bfi_b32 v64, s{sT0}, v64, v66')
    A(f'v_bfi_b32 v64, s{sT1}, v65, v64')
    A(f'buffer_store_dword v64, v59, {srd(sWS)}, s{sA1} offen sc1')
    TS(10)
    A('s_cmp_lg_u32 s2, 0')
    A('s_cbranch_scc1 L_fin')
    A(f'v_mov_b32 v40, s{sE}')
    A('v_mov_b32 v39, 0')
    exec_set(1, 0)
    A(f'buffer_store_dword v40, v39, {srd(sWS)}, 0 offen offset:{EPOCH} sc1')
    exec_all()
    A('s_branch L_fin')
    A('L_final:')
    A(f's_lshr_b32 s{sT4}, s{sSID}, 2')
    A(f's_and_b32 s{sT5}, s{sSID}, 3')
    A('v_bfe_u32 v32, v0, 2, 1')
    A('v_and_b32 v33, 3, v0')
    A('v_lshlrev_b32 v34, 10, v32')
    A('v_lshl_add_u32 v34, v33, 3, v34')
    A(f's_lshl_b32 s{sT0}, s{sT5}, 11')
    A(f's_lshl_b32 s{sT1}, s{sT4}, 5')
    A(f's_add_u32 s{sT0}, s{sT0}, s{sT1}')
    A(f'buffer_load_dwordx2 v[40:41], v34, {srd(sX_)}, s{sT0} offen')
    A(f's_add_u32 s{sT1}, s{sT0}, {MODL}')
    A(f's_add_u32 s{sT2}, s{sT1}, {3 * 8192}')

    def ldm():
        A(f'buffer_load_dwordx2 v[42:43], v34, {srd(sWS)}, s{sT1} offen sc1')
        A(f'buffer_load_dwordx2 v[44:45], v34, {srd(sWS)}, s{sT2} offen sc1')
    poll(ldm, range(42, 46), 47)
    unpack(48, 40, 2)
    unpack(52, 42, 2)
    unpack(56, 44, 2)
    A('v_lshlrev_b32 v35, 13, v32')
    A('v_lshl_add_u32 v35, v33, 3, v35')
    A(f's_lshl_b32 s{sT1}, s{sT5}, 14')
    A(f's_lshl_b32 s{sT2}, s{sT4}, 5')
    A(f's_add_u32 s{sT1}, s{sT1}, s{sT2}')
    A(f's_add_u32 s{sT1}, s{sT1}, {OPART}')
    A(f's_add_u32 s{sT2}, s{sT1}, 4096')

    def ldo():
        for k in range(8):
            A(f'buffer_load_dwordx2 {v2(128 + 2 * k)}, v35, {srd(sWS)}, s{sT1 + (k >> 2)} offen offset:{1024 * (k & 3)} sc1')
    A(f's_min_u32 s{sT3}, s{sU}, 13')
    A(f's_lshl_b32 s{sA0}, s{sXC}, 4')
    A(f's_add_u32 s{sT3}, s{sT3}, s{sA0}')
    A(f's_lshl_b32 s{sT3}, s{sT3}, 7')
    A(f's_add_u32 s{sT3}, s{sT3}, {F4 + 64}')
    hint_wait(sT3, sA0)
    poll(ldo, range(128, 144), 47, sleep=1)
    for i in range(16):
        A(f'v_lshlrev_b32 v{144 + 2 * i}, 16, v{128 + i}')
        A(f'v_mov_b32 v{145 + 2 * i}, v{128 + i}')
    tree_add(144, 32, 4)
    for i in range(4):
        A(f'v_mov_b32 v{72 + i}, v{144 + i}')
    x1_from(72, 48, 52, 4, 76)
    A('v_lshlrev_b32 v35, 4, v0')
    A(f's_mul_i32 s{sT1}, s{sSID}, 7168')
    A(f's_add_u32 s{sT1}, s{sT1}, {YP}')
    A(f's_add_u32 s{sT2}, s{sT1}, 4096')

    def ldy():
        for i in range(7):
            s, o = (sT1, 1024 * i) if i < 4 else (sT2, 1024 * (i - 4))
            A(f'buffer_load_dwordx4 {v4(96 + 4 * i)}, v35, {srd(sWS)}, s{s} offen offset:{o} sc1')
    for r in range(4):
        A(f'v_bfe_u32 v{40 + r}, s{sE}, {8 * r}, 8')

    def chk():
        for i in range(28):
            A(f'v_xor_b32 v{96 + i}, v{96 + i}, v{40 + (i & 3)}')
        A('v_or3_b32 v47, v96, v97, v98')
        A('v_or3_b32 v46, v99, v100, v101')
        for i in range(102, 122, 4):
            A(f'v_or3_b32 v47, v47, v{i}, v{i + 1}')
            A(f'v_or3_b32 v46, v46, v{i + 2}, v{i + 3}')
        A('v_or3_b32 v47, v47, v122, v123')
        A('v_or_b32 v47, v47, v46')
        A('v_and_b32 v47, 0xff, v47')
        A('v_cmp_ne_u32 vcc, 0, v47')
    if CFG.get('h4', 2) >= 0:
        A(f's_min_u32 s{sT3}, s{sU}, 13')
        A(f's_lshl_b32 s{sT4}, s{sXC}, 4')
        A(f's_add_u32 s{sT3}, s{sT3}, s{sT4}')
        A(f's_lshl_b32 s{sT3}, s{sT3}, 7')
        A(f's_add_u32 s{sT3}, s{sT3}, {F4}')
        hint_wait(sT3, sT4)
    poll(ldy, None, 47, sleep=CFG.get('sl_y', 0), pre_sleep=CFG.get('sl_y0', 0), check=chk)
    for r in range(4):
        A(f'v_add_f32 v{96 + r}, v{96 + r}, v{100 + r}')
        A(f'v_add_f32 v{104 + r}, v{104 + r}, v{108 + r}')
        A(f'v_add_f32 v{112 + r}, v{112 + r}, v{116 + r}')
    for r in range(4):
        A(f'v_add_f32 v{96 + r}, v{96 + r}, v{104 + r}')
        A(f'v_add_f32 v{112 + r}, v{112 + r}, v{120 + r}')
    for r in range(4):
        A(f'v_add_f32 v{96 + r}, v{96 + r}, v{112 + r}')
    for r in range(4):
        A(f'v_add_f32_dpp v{96 + r}, v{96 + r}, v{96 + r} row_ror:8 {DPPM}')
    for sw in ('v_permlane16_swap_b32', 'v_permlane32_swap_b32'):
        for r in range(4):
            A(f'v_mov_b32 v{100 + r}, v{96 + r}')
        for r in range(4):
            A(f'{sw} v{100 + r}, v{96 + r}')
        for r in range(4):
            A(f'v_add_f32 v{96 + r}, v{96 + r}, v{100 + r}')
    rne2(96, 97, 96, 97)
    rne2(98, 99, 98, 99)
    for r in range(4):
        A(f'v_mul_f32 v{96 + r}, v{96 + r}, v{56 + r}')
    rne2(96, 97, 96, 97)
    rne2(98, 99, 98, 99)
    for r in range(4):
        A(f'v_add_f32 v{96 + r}, v{96 + r}, v{72 + r}')
    if 'x_add' in CFG:
        import struct
        for r in range(4):
            A(f'v_add_f32 v{96 + r}, {struct.unpack("<I", struct.pack("<f", CFG["x_add"] / 100.0))[0]:#x}, v{96 + r}')
    if 'x_one' in CFG:
        import struct
        A(f's_cmp_eq_u32 s2, 5')
        A(f's_cselect_b32 s{sT1}, {struct.unpack("<I", struct.pack("<f", CFG["x_one"] / 100.0))[0]:#x}, 0')
        A(f'v_add_f32 v96, s{sT1}, v96')
    A('v_cvt_pk_bf16_f32 v100, v96, v97')
    A('v_cvt_pk_bf16_f32 v101, v98, v99')
    exec_set(0xff, 0)
    A(f'buffer_store_dwordx2 v[100:101], v34, {srd(sOUT)}, s{sT0} offen')
    exec_all()
    TS(10)
    A('s_branch L_fin')


VQ = 64
VK = (128, 192)
VS = (8, 12)
VS2 = 56
VKA = 96
VSO, VXP, VXW, VXR = 16, 20, 112, 113
VM, VL, VPS, VPW, VMXW, VMXR = 24, 25, 26, 27, 28, 29
VO = 64
VV = (128, 160, 192, 224)
VP = (8, 16)
VDM = 48
VVA = 24
VPR = 40
VTG = 4
LOG2E = 0x3fb8aa3b
THR = 0x42800000
SIG = [0, 2, 3, 1]


SLOT = [0, 2, 1, 3, 0, 2, 1, 3]


sPASS = sLNK
VMA = 26


def fsw(key):
    return ((key & 3) << 2) | SIG[(key >> 2) & 3]


class VM_:
    def __init__(self):
        self.ops = []

    def add(self, tag):
        self.ops.append(tag)

    def after(self, tag):
        idx = max(i for i, t in enumerate(self.ops) if t == tag)
        return len(self.ops) - 1 - idx


def kv_instr(T, k, vm, set_m0=True):
    slot = SLOT[T] * 32768
    half, i = k >> 2, k & 3
    out = []
    if set_m0:
        out.append(f's_add_u32 m0, s{sT5}, {slot + half * 4096}')
    o = f' offset:{i * 1024}' if i else ''
    pol = NT if T < CFG.get('ntT', 8) else ''
    out.append(f'buffer_load_dwordx4 v{VDM + k}, {srd(sKV)}, s{sTB + T} offen{o} {pol} lds')
    vm.add(('kv', T))
    return out


def kv_dma(T, half, vm):
    for i in range(4):
        for l in kv_instr(T, 4 * half + i, vm, set_m0=(i == 0)):
            A(l)


def v_read_list(T, vset):
    slot = SLOT[T]
    base = VVA + (8 if slot >= 2 else 0)
    out = []
    for ks in range(2):
        for ct in range(4):
            for eh in range(2):
                off = (slot & 1) * 32768 + ks * 16384
                out.append(f'ds_read_b64_tr_b16 {v2(VV[vset] + 8 * ct + 4 * ks + 2 * eh)}, v{base + 2 * ct + eh} offset:{off}')
    return out


def k_read_list(T, kset):
    slot = SLOT[T]
    base = VKA + (8 if slot >= 2 else 0)
    return [f'ds_read_b128 {v4(VK[kset] + 4 * i)}, v{base + 4 * (i >> 3) + (i & 3)} offset:{(slot & 1) * 32768 + ((i >> 2) & 1) * 256}'
            for i in range(16)]


def emit(lst):
    for l in lst:
        emit(l) if isinstance(l, list) else A(l)


def interleave(main, fill, start=0):
    n = len(main) - start
    done = 0
    for i, m_ in enumerate(main):
        A(m_)
        if i >= start:
            upto = (len(fill) * (i - start + 1) + n - 1) // n
            while done < upto:
                f = fill[done]
                emit(f) if isinstance(f, list) else A(f)
                done += 1


def call(target):
    here = lab('pc')
    A(f's_getpc_b64 s[{sTGT}:{sTGT + 1}]')
    A(f'{here}:')
    A(f's_add_u32 s{sTGT}, s{sTGT}, {target}-{here}')
    A(f's_addc_u32 s{sTGT + 1}, s{sTGT + 1}, 0')
    A(f's_swappc_b64 s[{sLNK}:{sLNK + 1}], s[{sTGT}:{sTGT + 1}]')


PVM = VM_()
LATER = []
W2OPS = []


def att_front():
    A(f's_and_b32 s{sCQ}, s{sU}, 3')
    A(f's_lshl_b32 s{sT0}, s{sCQ}, 8')
    A('v_lshrrev_b32 v5, 2, v0')
    A('v_mul_u32_u24 v5, 6144, v5')
    A('v_and_b32 v18, 3, v0')
    A('v_lshrrev_b32 v17, 5, v0')
    A('v_lshlrev_b32 v17, 1, v17')
    A('v_xor_b32 v18, v18, v17')
    A('v_lshl_add_u32 v5, v18, 4, v5')
    A(f's_lshr_b32 s{sT2}, s{sSID}, 2')
    A(f's_lshl_b32 s{sT2}, s{sT2}, 6')
    A(f's_mul_i32 s{sT1}, s{sCQ}, {128 * 6144}')
    A(f's_add_u32 s{sT1}, s{sT1}, s{sT2}')
    A(f's_mov_b32 m0, {L_WM1}')
    for i in range(4):
        A(f'v_mov_b32 v{20 + i}, -1')
    A(f's_lshl_b32 s{sT4}, s{sXC}, {CS}')
    A(f's_lshl_b32 s{sT3}, s{sU}, 11')
    A(f's_add_u32 s{sT4}, s{sT4}, s{sT3}')
    A(f's_add_u32 s{sMS}, s{sT4}, s{sT3}')
    A(f's_add_u32 s{sMS}, s{sMS}, {MOD1}')
    A(f's_add_u32 s{sT3}, s{sT4}, {QA}')
    n3 = CLR_E_PER // 16
    A(f's_mul_i32 s{sT4}, s{sSID}, {CLR_E_PER}')
    A(f's_add_u32 s{sT4}, s{sT4}, {CLR_E}')
    A(f'v_add_u32 v17, s{sT4}, v16')
    A(f's_add_u32 s{sT4}, s{sMS}, {1024 - 16 * n3}')
    A(f'v_min_u32 v18, {n3 + 7}, v0')
    A(f'v_lshl_add_u32 v18, v18, 4, s{sT4}')
    A(f'v_cmp_lt_u32 vcc, {n3 - 1}, v0')
    A('v_cndmask_b32 v17, v17, v18, vcc')
    A('s_waitcnt lgkmcnt(0)')
    TF(3)
    A(f's_load_dword s{sE}, s[{sWS}:{sWS + 1}], {EPOCH}')
    A(f'buffer_load_dwordx4 v[40:43], v4, {srd(sC)}, s{sT0} offen')
    A(f'buffer_load_dwordx4 v[44:47], v4, {srd(sC)}, s{sT0} offen offset:128')
    for i in range(8):
        dma(5, sWM, f's{sT1}')
        if i < 7:
            A(f's_add_u32 s{sT1}, s{sT1}, {16 * 6144}')
            A(f's_add_u32 m0, m0, 1024')
    if not CFG.get('x_noclr', 0) & 1:
        A(f'buffer_store_dwordx4 v[20:23], v16, {srd(sWS)}, s{sT3} offen sc1')
        A(f'buffer_store_dwordx4 v[20:23], v16, {srd(sWS)}, s{sT3} offen offset:1024 sc1')
        A(f'buffer_store_dwordx4 v[20:23], v17, {srd(sWS)}, 0 offen sc1')
    if CFG.get('modpre', 0):
        A(f'buffer_store_dwordx4 v[20:23], v16, {srd(sWS)}, s{sMS} offen sc1')
    if WMAT == 3:
        A('s_barrier')
    TF(4)
    A('s_branch L_p1')


def att_p1():
    A('L_p1:')
    ns = 3 + CFG.get('modpre', 0) - 3 * (CFG.get('x_noclr', 0) & 1)
    A('v_lshrrev_b32 v48, 2, v1')
    A('v_lshl_add_u32 v48, v2, 3, v48')
    A('v_lshlrev_b32 v48, 6, v48')
    A('v_and_b32 v50, 3, v1')
    A('v_lshl_add_u32 v48, v50, 3, v48')
    A('v_and_b32 v50, 1, v2')
    A('v_lshl_add_u32 v48, v50, 5, v48')
    A(f'v_add_u32 v48, {L_WM1}, v48')
    A('v_xor_b32 v49, 32, v48')
    A('v_lshlrev_b32 v50, 6, v1')
    A('v_lshl_add_u32 v50, v2, 4, v50')
    A(f's_waitcnt vmcnt({8 + ns})')
    TF(6)
    silu_frag(40, 52, 8)
    A('s_waitcnt lgkmcnt(0)')
    A(f'ds_write_b128 v16, v[52:55] offset:{L_SF}')
    A(f'ds_write_b128 v16, v[56:59] offset:{L_SF + 1024}')
    make_tag()
    xid_reg()
    A(f's_mov_b32 s{sT3}, 0xff')
    A('s_waitcnt lgkmcnt(0)')
    TF(7)

    def hh_store():
        A(f'v_mov_b32 v60, s{sE}')
        exec_set(1, 0)
        A(f'buffer_store_dword v60, v16, {srd(sWS)}, s{sMS} offen offset:1024 sc1')
        exec_all()
    hh = CFG.get('hh', 1)
    nh = 0
    if hh == 4:
        hh_store()
        nh = 1
    for t in range(4):
        A(f's_waitcnt vmcnt({6 - 2 * t + ns + nh})')
        if t == 3:
            TF(5)
        if hh == 3 and t == CFG.get('hht', 3):
            hh_store()
            nh = 1
        for ct in range(2):
            for eh in range(2):
                A(f'ds_read_b64_tr_b16 {v2(64 + 8 * t + 4 * ct + 2 * eh)}, v{48 + ct} offset:{t * 2048 + eh * 256}')
    for t in range(4):
        for ct in range(2):
            A(f's_waitcnt lgkmcnt({min(15, 14 - 4 * t - 2 * ct)})')
            d = 96 + 8 * ct + 4 * (t & 1)
            A(f'v_mfma_f32_16x16x32_bf16 {v4(d)}, {v4(64 + 8 * t + 4 * ct)}, {v4(52 + 4 * (t >> 1))}, ' + ('0' if t < 2 else v4(d)))
    for r in range(4):
        A(f'v_add_f32_dpp v{112 + r}, v{100 + r}, v{96 + r} row_ror:8 row_mask:0xf bank_mask:0x3')
    for r in range(4):
        A(f'v_add_f32_dpp v{112 + r}, v{104 + r}, v{108 + r} row_ror:8 row_mask:0xf bank_mask:0xc')
    for r in range(4):
        A(f'v_bfi_b32 v{112 + r}, s{sT3}, v{12 + r}, v{112 + r}')
    TF(8)
    A(f's_waitcnt vmcnt({nh})')
    A(f'buffer_store_dwordx4 v[112:115], v50, {srd(sWS)}, s{sMS} offen sc1')
    if hh == 1:
        hh_store()
    TF(9)
    A('s_barrier')


class LG:
    def __init__(self):
        self.n = 0
        self.pos = {}
        self.done = 0

    def op(self, ins, tag=None):
        A(ins)
        self.n += 1
        if tag is not None:
            self.pos[tag] = self.n

    def need(self, tag):
        k = self.pos[tag]
        if k > self.done:
            A(f's_waitcnt lgkmcnt({min(15, self.n - k)})')
            self.done = max(k, self.n - 15)

    def all(self):
        A('s_waitcnt lgkmcnt(0)')
        self.done = self.n


QQ = 64
QK_ = 192
QSB = ((8, 12), (4, 56))
QS2 = (16, 20)
QM, QL, QMA = 24, 26, 28
QPW, QFL = 30, 31
QT = 32
QKA = 48
QG, QLA, QXW, QXR = 52, 53, 54, 55
QP = 60
QST = QQ + 4 * 23


def sm_a(hh, j):
    S, t = QSB[j & 1][hh], QT + 4 * hh
    o = [f'v_cvt_pk_bf16_f32 v{t + r}, 0, v{S + r}' for r in range(4)]
    o += [f'v_mul_f32 v{t + r}, s{sT2}, v{t + r}' for r in range(4)]
    o += [f'v_cvt_pk_bf16_f32 v{QS2[hh] + r}, 0, v{t + r}' for r in range(4)]
    return o


def sm_b(hh):
    t = QT + 4 * hh
    o = [f'v_fma_f32 v{t + r}, v{QS2[hh] + r}, s{sT3}, -v{QM + hh}' for r in range(4)]
    o += [f'v_max3_f32 v{QMA + hh}, v{QMA + hh}, v{t}, v{t + 1}', f'v_max3_f32 v{QMA + hh}, v{QMA + hh}, v{t + 2}, v{t + 3}']
    o += [f'v_exp_f32 v{t + r}, v{t + r}' for r in range(4)]
    o += [f'v_cvt_pk_bf16_f32 v{QP + 2 * hh}, v{t}, v{t + 1}', f'v_cvt_pk_bf16_f32 v{QP + 2 * hh + 1}, v{t + 2}, v{t + 3}']
    return o


def sm_l(hh):
    t = QT + 4 * hh
    return [f'v_add_f32 v{t}, v{t}, v{t + 1}', f'v_add_f32 v{t + 2}, v{t + 2}, v{t + 3}',
            f'v_add_f32 v{QL + hh}, v{QL + hh}, v{t}', f'v_add_f32 v{QL + hh}, v{QL + hh}, v{t + 2}']


def heads32(op, a, b, t):
    return [f'v_permlane16_swap_b32 v{a}, v{b}', f'{op} v{a}, v{a}, v{b}', f'v_mov_b32 v{t}, v{a}',
            f'v_permlane32_swap_b32 v{t}, v{a}', f'{op} v{a}, v{a}, v{t}']


def kread(j, t):
    return f'ds_read_b128 {v4(QK_ + 4 * t)}, v{QKA + (t & 3)} offset:{(j & 1) * 32768 + (t >> 2) * 256}'


def ffn_touch():
    def w1():
        A('v_and_b32 v40, 31, v3')
        A('v_mul_u32_u24 v40, 3584, v40')
        A('v_lshrrev_b32 v41, 5, v3')
        A('v_lshl_add_u32 v40, v41, 7, v40')
        A(f's_mul_i32 s{sT0}, s{sU}, {32 * 3584}')
        A(f's_mul_i32 s{sT4}, s{sXC}, 448')
        A(f's_add_u32 s{sT0}, s{sT0}, s{sT4}')
        A(f'buffer_load_dword v{QG}, v40, {srd(sW1)}, s{sT0} offen offset:60')

    def w2():
        A('v_subrev_u32 v40, 128, v3')
        A('v_min_u32 v40, 111, v40')
        A('v_lshlrev_b32 v40, 7, v40')
        A(f's_mul_i32 s{sT0}, s{sSID}, {112 * 128}')
        A(f'buffer_load_dword v{QG}, v40, {srd(sW2)}, s{sT0} offen')
    wave_if('lt', 2, w1, w2)


def qk_wave():
    A('L_qk:')
    late_ptrs(sW1, sW2, sWO, sWUV)
    A('v_and_b32 v32, 3, v1')
    A('v_lshlrev_b32 v32, 2, v32')
    A('v_lshrrev_b32 v33, 2, v1')
    A('v_lshlrev_b32 v33, 1, v33')
    A(f'v_mov_b32 v34, {SIG[0] | SIG[1] << 2 | SIG[2] << 4 | SIG[3] << 6}')
    A('v_lshrrev_b32 v33, v33, v34')
    A('v_and_b32 v33, 3, v33')
    A('v_or_b32 v32, v32, v33')
    A('v_xor_b32 v32, v32, v2')
    A('v_lshlrev_b32 v33, 10, v1')
    A(f's_and_b32 s{sT0}, s{sW}, 1')
    A(f's_lshl_b32 s{sT0}, s{sT0}, 14')
    A(f's_lshr_b32 s{sT1}, s{sW}, 1')
    A(f's_lshl_b32 s{sT1}, s{sT1}, 16')
    A(f's_add_u32 s{sT0}, s{sT0}, s{sT1}')
    A(f'v_add_u32 v33, s{sT0}, v33')
    for tt in range(4):
        A(f'v_xor_b32 v{QKA + tt}, {4 * tt}, v32')
        A(f'v_lshl_add_u32 v{QKA + tt}, v{QKA + tt}, 4, v33')
    A(f'v_add_u32 v{QPW}, {PBUF}, v16')
    A(f'v_lshlrev_b32 v{QLA}, 4, v0')
    A(f'v_add_u32 v{QLA}, {L_Q}, v{QLA}')
    A(f'v_lshlrev_b32 v{QXR}, 4, v1')
    A(f'v_add_u32 v{QXR}, {L_MX}, v{QXR}')
    A(f'v_and_b32 v{QXW}, 31, v0')
    A(f'v_lshlrev_b32 v{QXW}, 4, v{QXW}')
    A(f's_lshl_b32 s{sT0}, s{sW}, 2')
    A(f's_add_u32 s{sT0}, s{sT0}, {L_MX}')
    A(f'v_add_u32 v{QXW}, s{sT0}, v{QXW}')
    A(f'v_mov_b32 v{QFL}, {L_FLAG}')
    A(f'v_lshlrev_b32 v{QG}, 6, v1')
    A(f'v_lshl_add_u32 v{QG}, v2, 4, v{QG}')
    A(f's_lshl_b32 s{sT0}, s{sW}, 12')
    A(f'v_add_u32 v57, s{sT0}, v{QLA}')
    A('s_waitcnt lgkmcnt(0)')
    make_tag()
    A(f's_mov_b32 s{sPASS}, 0')
    A('L_qk_start:')
    for r in (QL, QL + 1, QMA, QMA + 1, 40, 41):
        A(f'v_mov_b32 v{r}, 0')
    A(f'ds_write_b64 v{QFL}, v[40:41]')
    A('s_barrier')
    for t in range(16):
        A(kread(0, t))
    A('s_waitcnt lgkmcnt(0)')
    A('s_barrier')
    A(f's_cmp_lg_u32 s{sPASS}, 0')
    A('s_cbranch_scc1 L_noq')
    if CFG.get('slowp', 0) and not CFG.get('allf', 0):
        A(f's_and_b32 s{sT0}, s{sSID}, 0x73')
        A(f's_or_b32 s{sT0}, s{sT0}, 4')
        A(f's_lshl_b32 s{sT0}, s{sT0}, 7')
    else:
        A(f's_lshl_b32 s{sT0}, s{sSID}, 7')
    A(f's_add_u32 s{sT0}, s{sT0}, {FLG}')
    A(f's_not_b32 s{sT1}, s{sE}')
    top, foll = lab('poll'), lab('foll')
    A(f's_lshl_b32 s{sT4}, s{sXC}, {CS}')
    A(f's_add_u32 s{sT4}, s{sT4}, {QA}')
    A(f's_add_u32 s{sKB}, s{sT4}, {31 * 1024}')
    A(f's_lshl_b32 s{sT5}, s{sW}, 12')
    A(f's_add_u32 s{sT4}, s{sT4}, s{sT5}')
    A(f's_add_u32 s{sT5}, s{sT4}, 16384')
    A(f's_mov_b32 s{sCNT}, {CFG["poll_max"]}')
    A(f's_cmp_lg_u32 s{sW}, 0')
    A(f's_cbranch_scc1 {foll}')
    A(f'{top}:')
    seen = lab('seen')
    if CFG.get('allf', 0):
        A(f's_load_dwordx16 s[8:23], s[{sWS}:{sWS + 1}], s{sT0} glc')
        A('s_waitcnt lgkmcnt(0)')
        A(f's_mov_b32 s{sT2}, s{sE}')
        A(f's_mov_b32 s{sT3}, s{sT1}')
        for i in range(8):
            A(f's_xor_b64 s[{8 + 2 * i}:{9 + 2 * i}], s[{8 + 2 * i}:{9 + 2 * i}], s[{sT2}:{sT3}]')
        for i in (4, 2, 1):
            for k in range(i):
                A(f's_or_b64 s[{8 + 2 * k}:{9 + 2 * k}], s[{8 + 2 * k}:{9 + 2 * k}], s[{8 + 2 * (k + i)}:{9 + 2 * (k + i)}]')
    else:
        A(f's_load_dwordx2 s[{sT2}:{sT3}], s[{sWS}:{sWS + 1}], s{sT0} glc')
        A('s_waitcnt lgkmcnt(0)')
        A(f's_xor_b32 s{sT2}, s{sT2}, s{sE}')
        A(f's_xor_b32 s{sT3}, s{sT3}, s{sT1}')
        A(f's_or_b32 s{sT2}, s{sT2}, s{sT3}')
    A(f's_cbranch_scc0 {seen}')
    A(f's_sub_u32 s{sCNT}, s{sCNT}, 1')
    A(f's_cbranch_scc0 {top}')
    A(f'{seen}:')
    A(f'ds_write_b32 v{QFL}, v{QFL} offset:4')
    A(f'{foll}:')
    TS(3)

    def ldq(i):
        if i == 8:
            A(f'buffer_load_dwordx4 {v4(QQ + 4 * 31)}, v{QG}, {srd(sWS)}, s{sKB} offen sc1')
        else:
            A(f'buffer_load_dwordx4 {v4(QST + 4 * i)}, v{QG}, {srd(sWS)}, s{sT4 + (i >> 2)} offen offset:{1024 * (i & 3)} sc1')

    def wrq(i):
        ins = f'ds_write_b128 v57, {v4(QST + 4 * i)} offset:{(i >> 2) * 16384 + (i & 3) * 1024}'
        if i == 7:
            wave_if('lg', 3, lambda: A(ins))
        else:
            A(ins)
    A(f's_load_dwordx2 s[{sWUV}:{sWUV + 1}], s[0:1], 32')
    srd_tail(sWUV)
    A('s_barrier')
    for i in range(9):
        ldq(i)
    A('s_barrier')
    for i in range(8):
        A(f's_waitcnt vmcnt({8 - i})')
        wrq(i)
    top, done = lab('poll'), lab('pdone')
    A(f's_mov_b32 s{sCNT}, {CFG["poll_max"]}')
    A('s_waitcnt vmcnt(0)')
    A(f'{top}:')
    max_tree([QST + 4 * i for i in range(9)], 40)
    A('v_cmp_eq_u32 vcc, -1, v40')
    A(f's_cbranch_vccz {done}')
    for i in range(9):
        nx = lab('qn')
        A(f'v_cmp_eq_u32 vcc, -1, v{QST + 4 * i}')
        A(f's_cbranch_vccz {nx}')
        ldq(i)
        A(f'{nx}:')
    A('s_waitcnt vmcnt(0)')
    for i in range(8):
        wrq(i)
    A(f's_sub_u32 s{sCNT}, s{sCNT}, 1')
    A(f's_cbranch_scc0 {top}')
    A(f'{done}:')
    TS(4)
    A('s_branch L_go')
    A('L_noq:')
    A('s_barrier')
    A('s_barrier')
    for f in range(31):
        A(f'ds_write_b128 v{QLA}, {v4(QQ + 4 * f)} offset:{1024 * f}')
    A('L_go:')
    A(f's_mov_b32 s{sT2}, 0x3db504f3')
    A(f's_mov_b32 s{sT3}, {LOG2E:#x}')
    A(f's_mov_b32 s{sT1}, {THR:#x}')
    A(f's_setprio {CFG.get("prio", 1)}')
    A('s_waitcnt lgkmcnt(0)')
    A('s_barrier')
    lg = LG()
    nb = [0]

    def arrive():
        sk = lab('noarr')
        A(f's_or_b32 s{sT0}, s{sW}, s{sPASS}')
        A(f's_cbranch_scc1 {sk}')
        A(f's_lshl_b32 s{sT0}, s{sXC}, 7')
        A(f's_add_u32 s{sT0}, s{sT0}, {CNT}')
        if CFG.get('satom', 0):
            A(f's_mov_b32 s{sKB}, 1')
            A(f's_atomic_add s{sKB}, s[{sWS}:{sWS + 1}], s{sT0} glc')
        else:
            A(f'v_mov_b32 v43, 1')
            A('v_mov_b32 v40, 0')
            exec_set(1, 0)
            A(f'buffer_atomic_add v43, v40, {srd(sWS)}, s{sT0} offen sc0 sc1')
            exec_all()
        A(f'{sk}:')

    def bar(tag=None):
        lg.need(tag) if tag else lg.all()
        A('s_barrier')
        nb[0] += 1
        if nb[0] == 4 and (CFG.get('lag3', 1) or not CFG.get('split', 1)):
            arrive()
        if nb[0] == CFG.get('ut', 0):
            A('v_lshrrev_b32 v40, 3, v3')
            A('v_lshlrev_b32 v40, 13, v40')
            A('v_and_b32 v41, 7, v0')
            A('v_lshl_add_u32 v40, v41, 7, v40')
            A(f's_lshl_b32 s{sT0}, s{sU}, 18')
            A(f's_lshl_b32 s{sT4}, s{sXC}, 10')
            A(f's_add_u32 s{sT0}, s{sT0}, s{sT4}')
            A(f'buffer_load_dword v{QLA}, v40, {srd(sWUV)}, s{sT0} offen')
        if nb[0] == CFG.get('ot', 0):
            A('v_lshlrev_b32 v40, 7, v3')
            A(f's_lshl_b32 s{sT0}, s{sSID}, 15')
            A(f'buffer_load_dword v{QLA}, v40, {srd(sWO)}, s{sT0} offen')
        if nb[0] == CFG.get('cp2', 3):
            code_prefetch(40, QG, (sT4, sT5, sT0))
        if nb[0] == CFG.get('ft', 4):
            ffn_touch()
        if CFG.get('tsloop', 0):
            TS(4 + nb[0])
        elif nb[0] in (1, 3, 4):
            TS({1: 5, 3: 6, 4: 7}[nb[0]])

    def fill_one(f):
        if callable(f):
            f()
        else:
            A(f)

    def step(j, fill=(), pre=None, post=None, f0=0, f1=32, seq=False):
        fill = list(fill)
        fd = 0
        G = CFG.get('grp', 1)
        for n in range(32):
            hh, t = ((n >> 4, n & 15) if seq else (n & 1, n >> 1))
            if pre:
                pre(hh, t)
            S = QSB[j & 1][hh]
            A(f'v_mfma_f32_16x16x32_bf16 {v4(S)}, {v4(QK_ + 4 * t)}, {v4(QQ + 64 * hh + 4 * t)}, ' + ('0' if t == 0 else v4(S)))
            if post:
                post(hh, t)
            if n >= f0 and (n + 1) % G == 0:
                up = min(len(fill), (len(fill) * (n - f0 + 1) + (f1 - f0) - 1) // (f1 - f0))
                while fd < up:
                    fill_one(fill[fd]); fd += 1

    def pwrite(j):
        return [f'v_permlane16_swap_b32 v{QP}, v{QP + 2}', f'v_permlane16_swap_b32 v{QP + 1}, v{QP + 3}',
                lambda: lg.op(f'ds_write_b128 v{QPW}, {v4(QP)} offset:{(j & 1) * 4096}', ('p', j))]

    def mix(a, b):
        return [x for pr in zip(a, b) for x in pr]

    def softmax(j):
        return mix(sm_a(0, j), sm_a(1, j)) + mix(sm_b(0), sm_b(1)) + pwrite(j) + mix(sm_l(0), sm_l(1))

    kn = {1: 0, 2: 0, 3: 0}

    def kr(j, upto):
        while kn[j] < min(16, upto):
            lg.op(kread(j, kn[j]), ('k', j, kn[j]))
            kn[j] += 1

    LA = CFG.get('la', 6)
    qo = [16 * (n & 1) + (n >> 1) for n in range(31)]
    qn = [0]

    def qread(n):
        for _ in range(n):
            if qn[0] < 31:
                f = qo[qn[0]]
                lg.op(f'ds_read_b128 {v4(QQ + 4 * f)}, v{QLA} offset:{1024 * f}', ('q', f))
                qn[0] += 1
    qread(CFG.get('q0', 8))

    def post0(hh, t):
        if qn[0] < 31:
            qread(1)
        elif kn[1] < t + hh:
            kr(1, kn[1] + 1)
    step(0, pre=lambda hh, t: 16 * hh + t < 31 and lg.need(('q', 16 * hh + t)), post=post0)
    S0 = QSB[0]
    p2 = lab('p2')
    f = [f'v_max3_f32 v44, v{S0[0]}, v{S0[0] + 1}, v{S0[0] + 2}', f'v_max3_f32 v45, v{S0[1]}, v{S0[1] + 1}, v{S0[1] + 2}',
         f'v_max_f32 v44, v44, v{S0[0] + 3}', f'v_max_f32 v45, v45, v{S0[1] + 3}']
    sa = mix(sm_a(0, 0), sm_a(1, 0))
    for x in heads32('v_max_f32', 44, 45, 46):
        f += [sa.pop(0), sa.pop(0), x]
    f += [lambda: (kr(1, 16), lg.op(f'ds_write_b32 v{QXW}, v44', 'mw'))]
    nm = CFG.get('nm', 8)
    f += sa[:nm] + [lambda: bar('mw'),
                    lambda: lg.op(f'ds_read_b128 v[40:43], v{QXR}'), lambda: lg.op(f'ds_read_b128 v[44:47], v{QXR} offset:256', 'mx')]
    f += sa[nm:] + [lambda: None] * CFG.get('nx', 6) + [lambda: lg.need('mx')]
    for b_ in (40, 44):
        f += [f'v_max3_f32 v{b_}, v{b_}, v{b_ + 1}, v{b_ + 2}']
    for b_ in (40, 44):
        f += [f'v_max_f32 v{b_}, v{b_}, v{b_ + 3}']
    for ins in ('v_cvt_pk_bf16_f32 v{b}, 0, v{b}', 'v_mul_f32 v{b}, s%d, v{b}' % sT2, 'v_cvt_pk_bf16_f32 v{b}, 0, v{b}'):
        f += [ins.format(b=40), ins.format(b=44)]
    f += [lambda: emit([f's_cmp_lg_u32 s{sPASS}, 0', f's_cbranch_scc1 {p2}', f'v_mul_f32 v{QM}, s{sT3}, v40',
                        f'v_mul_f32 v{QM + 1}, s{sT3}, v44', f'{p2}:'])]
    f += mix(sm_b(0), sm_b(1)) + pwrite(0) + mix(sm_l(0), sm_l(1))

    def jit(j):
        return dict(pre=lambda hh, t: lg.need(('k', j, t)), post=lambda hh, t: hh and kr(j, t + 1 + LA))
    step(1, fill=f, f0=4, pre=lambda hh, t: lg.need(('k', 1, t)), post=lambda hh, t: kr(1, kn[1] + 1))
    bar()
    def lagged(j):
        kr(j, LA)
        sm = softmax(j - 1)
        pf = CFG.get('pf', 0)
        for x in sm[:pf]:
            fill_one(x)
        step(j, fill=sm[pf:], f0=CFG.get('f0', 0), f1=CFG.get('f1', 28), **jit(j))
    lagged(2)
    bar()
    if CFG.get('lag3', 1):
        lagged(3)
        bar()
        tail = softmax(3)
    else:
        for x in softmax(2):
            fill_one(x)
        if CFG.get('split', 1):
            A('v_lshrrev_b32 v44, 1, v2')
            A('v_lshlrev_b32 v44, 9, v44')
            A('v_lshl_add_u32 v44, v1, 4, v44')
            A('v_and_b32 v45, 1, v2')
            A('v_lshl_add_u32 v44, v45, 3, v44')
            A(f's_and_b32 s{sT0}, s{sW}, 1')
            A(f's_lshl_b32 s{sT0}, s{sT0}, 10')
            A(f's_lshr_b32 s{sT4}, s{sW}, 1')
            A(f's_lshl_b32 s{sT4}, s{sT4}, 8')
            A(f's_add_u32 s{sT0}, s{sT0}, s{sT4}')
            A(f's_add_u32 s{sT0}, s{sT0}, {PBUF + 4096}')
            A(f'v_add_u32 v44, s{sT0}, v44')
            for tt in range(4):
                A(f'v_and_b32 v{QKA + tt}, 0xffff, v{QKA + tt}')
        bar()
        if CFG.get('split', 1):
            def single(hh):
                for e in range(2):
                    l2 = LG()
                    for t in range(16):
                        l2.op(kread(3, t), t)
                    S = QSB[1][hh]
                    for t in range(16):
                        l2.need(t)
                        A(f'v_mfma_f32_16x16x32_bf16 {v4(S)}, {v4(QK_ + 4 * t)}, {v4(QQ + 64 * hh + 4 * t)}, ' + ('0' if t == 0 else v4(S)))
                    if e == 0:
                        for tt in range(4):
                            A(f'v_or_b32 v{QKA + tt}, 0x10000, v{QKA + tt}')
                    elif hh == 0:
                        for tt in range(4):
                            A(f'v_and_b32 v{QKA + tt}, 0xffff, v{QKA + tt}')
                    emit(sm_a(hh, 3) + sm_b(hh))
                    A(f'ds_write_b64 v44, {v2(QP + 2 * hh)} offset:{2048 * e}')
                    emit(sm_l(hh))
                    if e == 0:
                        A('s_waitcnt lgkmcnt(0)')
                        A('s_barrier')
                        if hh == 0:
                            if not CFG.get('satom', 0):
                                arrive()
                            TS(7)
            wave_if('lt', 2, lambda: single(0), lambda: single(1))
            tail = []
        else:
            kr(3, 16)
            step(3, fill=sm_a(0, 3) + sm_b(0) + sm_l(0), f0=18, f1=31, seq=True, pre=lambda hh, t: lg.need(('k', 3, t)))
            tail = sm_a(1, 3) + sm_b(1) + pwrite(3) + sm_l(1)
    for x in tail:
        fill_one(x)
    A(f'v_max_f32 v40, v{QMA}, v{QMA + 1}')
    A(f'v_cmp_lt_f32 vcc, s{sT1}, v40')
    emit(heads32('v_add_f32', QL, QL + 1, 41))
    A(f'v_subrev_u32 v42, {L_MX - L_LS}, v{QXW}')
    lg.op(f'ds_write_b32 v42, v{QL}')
    nf = lab('noflag')
    A(f's_cbranch_vccz {nf}')
    A(f's_cmp_lg_u32 s{sPASS}, 0')
    A(f's_cbranch_scc1 {nf}')
    A(f'ds_write_b32 v{QFL}, v{QFL}')
    A(f'{nf}:')
    bar()
    if CFG.get('satom', 0):
        arrive()
    A(f'ds_read_b32 v39, v{QFL}')
    A('v_and_b32 v42, -16, v42')
    A('ds_read_b128 v[44:47], v42')
    A(f's_lshl_b32 s{sT1}, s{sSID}, 8')
    A(f's_add_u32 s{sT1}, s{sT1}, {STATS}')
    A('v_lshlrev_b32 v40, 3, v0')
    A('v_and_b32 v41, 1, v2')
    A('v_cmp_eq_u32 vcc, 1, v41')
    A(f'v_cndmask_b32 v32, v{QM}, v{QM + 1}, vcc')
    A('s_setprio 0')
    A('s_waitcnt lgkmcnt(0)')
    A(f'v_readfirstlane_b32 s{sT0}, v39')
    A('v_add_f32 v44, v44, v45')
    A('v_add_f32 v46, v46, v47')
    A('v_add_f32 v33, v44, v46')

    def ring(n=0):
        sk = lab('noring')
        A(f's_or_b32 s{sT4}, s{sW}, s{sPASS}')
        A(f's_cbranch_scc1 {sk}')
        A('v_lshlrev_b32 v35, 10, v0')
        A(f'v_mov_b32 v36, s{sE}')
        A(f's_lshl_b32 s{sT5}, s{sXC}, 7')
        A(f's_add_u32 s{sT5}, s{sT5}, {DB}')
        if CFG.get('satom', 0):
            A(f's_cmp_lg_u32 s{sKB}, 14')
        else:
            A(f's_waitcnt vmcnt({n})')
            A(f'v_readfirstlane_b32 s{sT4}, v43')
            A(f's_cmp_lg_u32 s{sT4}, 14')
        A(f's_cbranch_scc1 {sk}')
        exec_set(0xffffffff, 0)
        A(f'buffer_store_dword v36, v35, {srd(sWS)}, s{sT5} offen sc1')
        exec_all()
        TS(2)
        A(f'{sk}:')
    A(f's_cmp_lg_u32 s{sT0}, 0')
    A('s_cbranch_scc1 L_qk_redo')

    def stats():
        exec_set(0xffffffff, 0)
        A(f'buffer_store_dwordx2 v[32:33], v40, {srd(sWS)}, s{sT1} offen sc1')
        exec_all()
        if not CFG.get('tsloop', 0):
            TS(8)
    wave_if('eq', 0, stats)
    if CFG.get('stat_at', 0):
        A('s_barrier')
    ring(1 + (CFG.get('ot', 0) == 4 and not CFG.get('split', 1)))
    A('s_branch L_att_post')
    A('L_qk_redo:')
    ring()
    A('s_waitcnt vmcnt(0)')
    A(f'v_lshlrev_b32 v{QLA}, 4, v0')
    A(f'v_add_u32 v{QLA}, {L_Q}, v{QLA}')
    emit(heads32('v_max_f32', QMA, QMA + 1, 41))
    A(f'ds_write_b32 v{QXW}, v{QMA}')
    A('s_waitcnt lgkmcnt(0)')
    A('s_barrier')
    A(f'ds_read_b128 v[40:43], v{QXR}')
    A(f'ds_read_b128 v[44:47], v{QXR} offset:256')
    A('s_waitcnt lgkmcnt(0)')
    for hh in range(2):
        b_ = 40 + 4 * hh
        A(f'v_max3_f32 v{b_}, v{b_}, v{b_ + 1}, v{b_ + 2}')
        A(f'v_max_f32 v{b_}, v{b_}, v{b_ + 3}')
        A(f'v_add_f32 v{QM + hh}, v{QM + hh}, v{b_}')
    A(f's_mov_b32 s{sPASS}, 1')
    A('s_branch L_qk_start')


def att_stub():
    A('L_att0:')
    A(f's_cmp_ge_u32 s{sW}, 4')
    A('s_cbranch_scc0 L_atq')
    if CFG.get('qpf', 32) and CFG.get('qpfb', 1):
        A('s_barrier')
    if CFG.get('kvb', 1):
        A('s_barrier')
    A('s_branch L_pv')
    A('L_atq:')
    code_prefetch(32)
    if CFG.get('adel', -1) == -1:
        A('s_waitcnt lgkmcnt(0)')
    if CFG.get('ukpf', 1):
        srd_tail(sWUK)
        if CFG.get('bal', 1):
            A('v_lshrrev_b32 v33, 3, v3')
            A('v_lshlrev_b32 v33, 13, v33')
            A('v_and_b32 v34, 7, v0')
            A('v_lshl_add_u32 v33, v34, 7, v33')
            A(f's_lshl_b32 s{sT3}, s{sU}, 18')
            A(f's_lshl_b32 s{sT4}, s{sXC}, 10')
            A(f's_add_u32 s{sT3}, s{sT3}, s{sT4}')
        else:
            tile_addr()
            A('v_lshrrev_b32 v33, 1, v0')
            A('v_lshlrev_b32 v33, 13, v33')
            A('v_and_b32 v34, 1, v0')
            A('v_lshl_add_u32 v33, v34, 7, v33')
    qpf = CFG.get('qpf', 32)
    if qpf:
        srd_tail(sWQ)
        m = ((1 << 64) - 1) ^ ((1 << (64 - 2 * qpf)) - 1)
        exec_set(m & 0xffffffff, m >> 32)
    A('s_waitcnt lgkmcnt(0)')
    if CFG.get('adel', 0) == 1:
        A(f's_load_dword s{sE}, s[{sWS}:{sWS + 1}], {EPOCH}')
        A('s_waitcnt lgkmcnt(0)')
    if CFG.get('adel', 0) > 1:
        A(f's_sleep {CFG["adel"]}')
    if qpf:
        A(f'buffer_load_dword v69, v33, {srd(sWQ)}, s{sT3} offen {PFW}')
        exec_all()
        if CFG.get('qpfb', 1):
            A('s_barrier')
    if CFG.get('ukpf', 1):
        m = ((1 << 64) - 1) ^ ((1 << (8 * 0)) - 1)
        exec_set(m & 0xffffffff, m >> 32)
        A(f'buffer_load_dword v68, v33, {srd(sWUK)}, s{sT3} offen {PFW}')
        exec_all()
    if CFG.get('awarm', 1):
        A(f's_lshl_b32 s{sT2}, s{sU}, 12')
        A(f's_lshl_b32 s{sT1}, s{sXC}, {CS}')
        A(f's_add_u32 s{sT2}, s{sT2}, s{sT1}')
        A(f's_add_u32 s{sT2}, s{sT2}, {Q2}')
        A(f'buffer_load_dword v70, v16, {srd(sWS)}, s{sT2} offen sc1')
    if CFG.get('kvb', 1):
        A('s_barrier')
    A('s_branch L_qk')


def pv_wave():
    vm = PVM
    A('L_pv:')
    srd_tail(sKV)
    A(f's_lshl_b32 s{sKB}, s{sU}, 18')
    A(f's_lshl_b32 s{sT0}, s{sXC}, 22')
    for T in range(8):
        A(f's_add_u32 s{sTB + T}, s{sKB}, {T * (ROT * 262144 + 32768)}')
        A(f's_and_b32 s{sTB + T}, s{sTB + T}, 0x3fffff')
        A(f's_or_b32 s{sTB + T}, s{sTB + T}, s{sT0}')
    A(f's_and_b32 s{sT4P}, s{sW}, 3')
    A(f's_lshl_b32 s{sT5}, s{sT4P}, 13')
    A(f's_and_b32 s{sT0}, s{sT4P}, 1')
    A(f's_cmp_eq_u32 s{sT0}, 1')
    for i in range(8):
        A(f's_cselect_b32 s{sT1}, {fsw(8 + i)}, {fsw(i)}')
        A(f'v_xor_b32 v{VDM + i}, s{sT1}, v0')
        A(f'v_lshlrev_b32 v{VDM + i}, 4, v{VDM + i}')
        A(f'v_add_u32 v{VDM + i}, s{sT5}, v{VDM + i}')
        if i >= 4:
            A(f'v_add_u32 v{VDM + i}, 4096, v{VDM + i}')
    A('s_waitcnt lgkmcnt(0)')
    late_ptrs(sW1, sW2)
    A(f's_mov_b32 s{sPASS}, 0')
    A('L_pv_start:')
    n0 = CFG.get('n0', 4)
    for i in range(n0):
        emit(kv_instr(i >> 3, i & 7, PVM, set_m0=(i & 3) == 0))
    for i in range(64):
        A(f'v_mov_b32 v{VO + i}, 0')
    A(f's_cmp_lg_u32 s{sPASS}, 0')
    A('s_cbranch_scc1 L_pv_again')
    A('v_lshrrev_b32 v42, 2, v1')
    A('v_and_b32 v43, 3, v1')
    A('v_and_b32 v44, 1, v2')
    A('v_lshrrev_b32 v45, 1, v2')
    A('v_lshl_add_u32 v46, v45, 3, v42')
    A('v_lshlrev_b32 v46, 10, v46')
    A('v_and_b32 v47, 1, v43')
    A('v_lshl_add_u32 v46, v47, 3, v46')
    A(f's_lshl_b32 s{sT0}, s{sT4P}, 8')
    A(f'v_add_u32 v46, s{sT0}, v46')
    A('v_lshrrev_b32 v47, 1, v43')
    A('v_lshl_add_u32 v47, v44, 1, v47')
    A('v_lshl_add_u32 v47, v42, 2, v47')
    A('v_cmp_eq_u32 vcc, 1, v45')
    for eh in range(2):
        A(f'v_mov_b32 v56, {SIG[eh]}')
        A(f'v_mov_b32 v57, {SIG[2 + eh]}')
        A('v_cndmask_b32 v56, v56, v57, vcc')
        A('v_xor_b32 v56, v56, v47')
        for ct in range(4):
            d = VVA + 2 * ct + eh
            A(f'v_xor_b32 v{d}, {4 * ct}, v56')
            A(f'v_lshl_add_u32 v{d}, v{d}, 4, v46')
            if eh:
                A(f'v_add_u32 v{d}, 4096, v{d}')
            A(f'v_add_u32 v{d + 8}, 0x10000, v{d}')
    todo = [(T, k) for T in range(8) for k in range(8)][n0:]

    def issue(n):
        first = True
        for _ in range(n):
            T, k = todo.pop(0)
            emit(kv_instr(T, k, vm, set_m0=(first or (k & 3) == 0)))
            first = False
    DF = CFG.get('depth', 8)
    D0 = CFG.get('depth0', DF)
    slow_n = CFG.get('slow_n', 8)

    def Dcur():
        if len(vm.ops) >= CFG.get('slow2', 64):
            return CFG.get('depth2', DF)
        return D0 if len(vm.ops) < slow_n else DF
    A(f'v_lshlrev_b32 v{VPR}, 4, v0')
    A(f'v_add_u32 v{VPR}, {PBUF}, v{VPR}')
    A(f'v_mov_b32 v41, {L_FLAG}')
    A('s_waitcnt lgkmcnt(0)')
    make_tag()
    A('v_and_b32 v42, 3, v1')
    A('v_lshlrev_b32 v42, 3, v42')
    A(f'v_lshrrev_b32 v42, v42, s{sE}')
    for q in range(4):
        A(f'v_bfe_u32 v{VTG + q}, v42, {2 * q}, 1')
        A(f'v_bfe_u32 v43, v42, {2 * q + 1}, 1')
        A(f'v_lshl_or_b32 v{VTG + q}, v43, 16, v{VTG + q}')

    def stream_until(T, extra='', maxT=5):
        while True:
            D = Dcur()
            left = vm.after(('kv', T)) if len([t for t in vm.ops if t == ('kv', T)]) == 8 else -1
            if left >= D - 2 or todo[0][0] > maxT:
                A(f's_waitcnt vmcnt({left}){extra}')
                return
            A(f's_waitcnt vmcnt({D - 2})')
            issue(2)

    A('L_pv_again:')
    stream_until(1, maxT=3)
    TS(2)
    A('s_barrier')
    vr = v_read_list(0, 0) + v_read_list(1, 1)
    nab = CFG.get('nab', 3)
    for c in range(4):
        emit(vr[8 * c:8 * c + 8])
        if c < nab and 64 - len(todo) < min(32, CFG['npre']):
            A(f's_waitcnt vmcnt({Dcur() - 2})')
            issue(2)
    A('s_waitcnt lgkmcnt(0)')
    TS(5)
    A('s_barrier')
    npre = CFG.get('npre', 40)
    while 64 - len(todo) < npre:
        A(f's_waitcnt vmcnt({Dcur() - 2})')
        issue(2)
    A(f's_waitcnt vmcnt({vm.after(("kv", 2))})')
    TS(6)
    ndyn = CFG.get('ndyn', 0)
    sND = sKB
    dyn = [todo[i] for i in range(ndyn)]
    if ndyn:
        assert npre == 32 and ndyn % 2 == 0
        D2 = CFG.get('depth2', 8)
        A(f's_mov_b32 s{sND}, 0')
        for i in range(0, ndyn, 2):
            A(f's_waitcnt vmcnt({D2 - 2})')
            A('ds_read_b32 v42, v41 offset:4')
            A('s_waitcnt lgkmcnt(0)')
            A(f'v_readfirstlane_b32 s{sT0}, v42')
            A(f's_cmp_lg_u32 s{sT0}, 0')
            A('s_cbranch_scc1 L_dynend')
            for T, k in dyn[i:i + 2]:
                emit(kv_instr(T, k, VM_(), set_m0=(k & 1) == 0))
            A(f's_mov_b32 s{sND}, {i + 2}')
        A('L_dynend:')
    A('s_barrier')
    emit(v_read_list(2, 2))
    if ndyn:
        dn = lab('t3')
        for n in (6, 4, 2):
            nx = lab('t3n')
            A(f's_cmp_lt_u32 s{sND}, {n}')
            A(f's_cbranch_scc1 {nx}')
            A(f's_waitcnt vmcnt({n})')
            A(f's_branch {dn}')
            A(f'{nx}:')
        A('s_waitcnt vmcnt(0)')
        A(f'{dn}:')
    else:
        A(f's_waitcnt vmcnt({vm.after(("kv", 3))})')
    TS(3)
    A('s_barrier')
    emit(v_read_list(3, 3))
    atch = CFG.get('atch', 0)
    assert atch % 4 == 0
    for i in range(atch // 4):
        A(f'v_lshlrev_b32 v{46 + i}, 7, v0')
        A(f'v_add_u32 v{46 + i}, s{sT5}, v{46 + i}')
        A(f'buffer_load_dword v{46 + i}, v{46 + i}, {srd(sKV)}, s{sTB + 8 - atch // 4 + i} offen')
        vm.add('touch')
    sp = [int(x) for x in str(CFG['spread']).split(',')] + [0] * 8
    kp = 1 | 2 * CFG.get('lag3', 1)
    assert sum(sp) == len(todo) and npre + sp[0] + sp[1] <= 48 and npre >= 32
    assert npre + sum(sp[:3 if kp & 1 else 4]) >= 48 and npre + sum(sp[:4 if kp & 2 else 5]) >= (56 if CFG.get('split', 1) and not kp & 2 else 64)
    def dmas(n):
        out = []
        for _ in range(n):
            T, k = todo.pop(0)
            ins = kv_instr(T, k, vm)
            if (T, k) in dyn:
                sk = lab('dy')
                ins = [f's_cmp_gt_u32 s{sND}, {dyn.index((T, k))}', f's_cbranch_scc1 {sk}'] + ins + [f'{sk}:']
            out.append(ins)
        return out
    emit(dmas(sp[0]))
    A('s_barrier')
    TS(4)

    carry = []
    SK = CFG.get('skew', 3)

    def endstep(T=None, lg=None):
        if T is not None:
            A(f's_waitcnt vmcnt({vm.after(("kv", T))})')
        if lg is not None:
            A(f's_waitcnt lgkmcnt({lg})')
        A('s_barrier')

    def pv(j, fill, first=(), nofill=0, fr=range(4), k=None, check=False):
        par = j & 1
        pr = [8, 12, 16, (20, 60)[par]]
        if check:
            A('ds_read_b32 v42, v41')
        for f in fr:
            A(f'ds_read_b128 {v4(pr[f])}, v{VPR} offset:{par * 4096 + f * 1024}')
        emit(carry)
        carry.clear()
        A('s_waitcnt lgkmcnt(0)')
        emit(list(first))
        if check:
            A(f'v_readfirstlane_b32 s{sT0}, v42')
            A(f's_cmp_lg_u32 s{sT0}, 0')
            A('s_cbranch_scc1 L_pv_redo')
        m = []
        for f in fr:
            for ct in range(4):
                o = VO + 16 * ct
                m.append(f'v_mfma_f32_32x32x16_bf16 v[{o}:{o + 15}], {v4(pr[f])}, {v4(VV[2 * par + (f >> 1)] + 8 * ct + 4 * (f & 1))}, v[{o}:{o + 15}]')
        if k is None:
            k = SK
        if k:
            carry.extend(m[-k:])
            m = m[:-k]
        interleave(m[:len(m) - nofill], fill)
        emit(m[len(m) - nofill:])

    def w2_ops(half):
        if not CFG.get('ew2', 1):
            return []
        o = [[f's_min_u32 s{sT0}, s{sU}, 13', f's_lshr_b32 s{sT0}, s{sT0}, 1', f's_mul_i32 s{sT1}, s{sXC}, 7',
              f's_add_u32 s{sT0}, s{sT0}, s{sT1}', f's_lshl_b32 s{sT0}, s{sT0}, 15', f's_add_u32 s{sT0}, s{sT0}, s{sT5}',
              f's_add_u32 s{sT0}, s{sT0}, {half * 4096}', f's_add_u32 m0, s{sT5}, {L_W2 + half * 4096}', 'v_lshlrev_b32 v43, 4, v0',
              f's_and_b32 s{sT1}, s{sW}, 1', f's_lshl_b32 s{sT1}, s{sT1}, 7', f'v_xor_b32 v43, s{sT1}, v43']]
        for i in range(4):
            o.append([f'v_xor_b32 v46, {i * 32}, v43',
                      f'buffer_load_dwordx4 v46, {srd(sW2)}, s{sT0} offen offset:{i * 1024} {POL.get(sW2, NTW)} lds'])
        return o

    emit(dmas(sp[1]))
    endstep(lg=0)
    emit(dmas(sp[2]))
    endstep(5)
    pv(0, dmas(sp[3]), nofill=CFG.get('nf0', 5))
    endstep(7 if kp & 2 else 5)
    vf = [int(x) for x in str(CFG.get('vf', '0,0')).split(',')]
    vr = v_read_list(4, 0) + v_read_list(5, 1)
    pv(1, dmas(sp[4]) + vr[vf[0]:], vr[:vf[0]])
    SPL = CFG.get('split', 1) and not CFG.get('lag3', 1)
    if SPL:
        endstep(6, lg=0)
        pv(2, dmas(sp[5]) + v_read_list(6, 2), k=CFG.get('sk2', 6))
        endstep(7)
        pv(3, v_read_list(7, 3), fr=(0, 1), k=CFG.get('sk3', 2))
    else:
        endstep(7, lg=0)
        vr = v_read_list(6, 2) + v_read_list(7, 3)
        pv(2, vr[vf[1]:] + (w2_ops(0) + w2_ops(1) if CFG.get('ew2', 1) == 1 else []), vr[:vf[1]], k=CFG.get('skew2', 2))
    A('v_lshrrev_b32 v44, 1, v2')
    A('v_and_b32 v45, 1, v2')
    A('v_lshl_add_u32 v44, v44, 2, v45')
    A('v_lshlrev_b32 v44, 17, v44')
    A('v_lshl_add_u32 v44, v1, 4, v44')
    A(f's_lshl_b32 s{sT1}, s{sT4P}, 15')
    A(f's_lshl_b32 s{sT2}, s{sSID}, 8')
    A(f's_add_u32 s{sT1}, s{sT1}, s{sT2}')
    A(f's_add_u32 s{sT1}, s{sT1}, {OP}')
    A(f's_mov_b32 s{sT3}, 0x00010001')
    endstep()
    pv(3, [], fr=(2, 3) if SPL else range(4), k=0, check=True)
    TS(7)
    for j in range(8):
        r = 2 * j
        d = 160 + 4 * j
        A(f'v_cvt_pk_bf16_f32 v{d}, v{VO + r}, v{VO + 16 + r}')
        A(f'v_cvt_pk_bf16_f32 v{d + 1}, v{VO + r + 1}, v{VO + 16 + r + 1}')
        A(f'v_cvt_pk_bf16_f32 v{d + 2}, v{VO + 32 + r}, v{VO + 48 + r}')
        A(f'v_cvt_pk_bf16_f32 v{d + 3}, v{VO + 32 + r + 1}, v{VO + 48 + r + 1}')
        if j:
            st_o(j - 1)
        if CFG.get('stat_at', 0) == j + 1:
            A('s_barrier')
    st_o(7)
    TS(8)
    if CFG.get('stat_at', 0) >= 9:
        if CFG['stat_at'] > 9:
            A(f's_waitcnt vmcnt({17 - CFG["stat_at"]})')
        A('s_barrier')
    if CFG.get('ew2', 1) == 2:
        emit(w2_ops(0) + w2_ops(1))
    W2OPS.extend(w2_ops(0) + w2_ops(1))
    A('s_branch L_att_post')
    A('L_pv_redo:')
    A('s_waitcnt vmcnt(0) lgkmcnt(0)')
    A('s_barrier')
    A(f's_mov_b32 s{sPASS}, 1')
    A('s_nop 7')
    A('s_branch L_pv_start')


def st_o(j):
    r = 2 * j
    d = 160 + 4 * j
    A(f'v_permlane16_swap_b32 v{d}, v{d + 1}')
    A(f'v_permlane16_swap_b32 v{d + 2}, v{d + 3}')
    for q in range(4):
        A(f'v_bfi_b32 v{d + q}, s{sT3}, v{VTG + q}, v{d + q}')
    head0 = (r & 3) + 8 * (r >> 2)
    A(f's_add_u32 s{sT2}, s{sT1}, {head0 * 131072}')
    A(f'buffer_store_dwordx4 {v4(d)}, v44, {srd(sWS)}, s{sT2} offen sc1')


def t3_t4():
    A('L_att_post:')
    if CFG.get('ft', 4) == 9:
        A('s_barrier')
        wave_if('lt', 4, ffn_touch)
    A(f's_cmp_ge_u32 s{sU}, 14')
    A('s_cbranch_scc1 L_fin')
    A(f's_lshr_b32 s{sT4}, s{sU}, 1')
    A(f's_mul_i32 s{sT1}, s{sXC}, 7')
    A(f's_add_u32 s{sT4}, s{sT4}, s{sT1}')
    A(f's_and_b32 s{sT5}, s{sU}, 1')
    A('v_lshrrev_b32 v44, 2, v0')
    A('v_mul_u32_u24 v44, 3584, v44')
    A('v_and_b32 v45, 3, v0')
    A('v_lshrrev_b32 v32, 5, v0')
    A('v_lshlrev_b32 v32, 1, v32')
    A('v_xor_b32 v45, v45, v32')
    A('v_lshl_add_u32 v44, v45, 4, v44')
    A('v_lshlrev_b32 v32, 4, v0')
    A(f's_lshl_b32 s{sT0}, s{sT4}, 6')
    A(f's_mul_i32 s{sT1}, s{sW}, {64 * 3584}')
    A(f's_add_u32 s{sT0}, s{sT0}, s{sT1}')
    A(f's_lshl_b32 s{sT1}, s{sW}, 12')
    A(f's_add_u32 s{sT2}, s{sT1}, {L_W1}')
    A('s_barrier')
    for i in range(4):
        dma(44, sW1, f's{sT0}', lds_s=sT2)
        if i < 3:
            A(f's_add_u32 s{sT0}, s{sT0}, {16 * 3584}')
            A(f's_add_u32 s{sT2}, s{sT2}, 1024')
    if CFG.get('ew2', 1) == 3:
        def w2l():
            A(f's_mov_b32 s{sKB}, s{sT5}')
            A(f's_lshl_b32 s{sT5}, s{sT4P}, 13')
            emit(W2OPS)
            A(f's_mov_b32 s{sT5}, s{sKB}')
        wave_if('ge', 4, w2l)
    if not CFG.get('ew2', 1):
        A(f's_lshl_b32 s{sT0}, s{sT4}, 15')
        A(f's_add_u32 s{sT0}, s{sT0}, s{sT1}')
        A(f's_add_u32 m0, s{sT1}, {L_W2}')
        for i in range(4):
            o = f' offset:{i * 1024}' if i else ''
            A(f'buffer_load_dwordx4 v32, {srd(sW2)}, s{sT0} offen{o} {POL.get(sW2, NTW)} lds')
    A('v_and_b32 v38, 3, v1')
    A(f's_lshl_b32 s{sT0}, s{sT5}, 12')
    A(f's_lshl_b32 s{sT1}, s{sW}, 9')
    A(f's_add_u32 s{sT1}, s{sT1}, s{sT0}')
    A('v_and_b32 v33, 31, v0')
    A('v_lshlrev_b32 v33, 4, v33')
    A('v_lshrrev_b32 v34, 5, v0')
    A('v_lshl_add_u32 v33, v34, 3, v33')
    A(f'buffer_load_dwordx2 v[40:41], v33, {srd(sX_)}, s{sT1} offen')
    A(f's_add_u32 s{sT1}, s{sT1}, {MODL}')
    A(f's_add_u32 s{sT2}, s{sT1}, 8192')
    A(f's_add_u32 s{sT3}, s{sT1}, 16384')

    def ldm():
        for k in range(3):
            A(f'buffer_load_dwordx2 {v2(44 + 2 * k)}, v33, {srd(sWS)}, s{sT1 + k} offen sc1')
    poll(ldm, range(44, 50), 56)
    A(f's_lshr_b32 s{sT0}, s{sW}, 1')
    A(f's_and_b32 s{sT1}, s{sW}, 1')
    A(f's_mul_i32 s{sT2}, s{sT0}, 1040')
    A(f's_lshl_b32 s{sT3}, s{sT1}, 9')
    A(f's_add_u32 s{sT2}, s{sT2}, s{sT3}')
    A(f's_add_u32 s{sT2}, s{sT2}, {L_H2}')
    A(f'v_add_u32 v39, s{sT2}, v33')
    A(f'ds_write_b64 v39, v[48:49] offset:{4 * 1040}')
    A(f'ds_write_b64 v39, v[46:47] offset:{8 * 1040}')
    unpack(160, 40, 2)
    unpack(164, 44, 2)
    unpack(168, 48, 2)
    A('s_waitcnt lgkmcnt(0)')
    A('s_barrier')
    if not CFG.get('tsloop', 0):
        TS(9)
    A('v_lshrrev_b32 v34, 2, v1')
    A('v_lshl_add_u32 v34, v2, 3, v34')
    A('v_lshlrev_b32 v35, 6, v34')
    A('v_lshl_add_u32 v35, v38, 3, v35')
    A('v_and_b32 v36, 1, v2')
    A(f'v_xor_b32 v36, s{sT1}, v36')
    A('v_lshl_add_u32 v35, v36, 5, v35')
    A(f's_lshl_b32 s{sT2}, s{sT0}, 13')
    A(f'v_add_u32 v35, s{sT2}, v35')
    for t in range(4):
        for eh in range(2):
            A(f'ds_read_b64_tr_b16 {v2(128 + 4 * t + 2 * eh)}, v35 offset:{L_W1 + t * 2048 + eh * 256}')
    A('v_lshlrev_b32 v35, 10, v34')
    A('v_lshl_add_u32 v35, v38, 3, v35')
    A('v_lshrrev_b32 v36, 2, v1')
    A('v_and_b32 v37, 1, v2')
    A('v_lshl_add_u32 v36, v37, 2, v36')
    A(f's_and_b32 s{sT2}, s{sW}, 3')
    A(f's_lshl_b32 s{sT2}, s{sT2}, 3')
    A(f'v_xor_b32 v36, s{sT2}, v36')
    A('v_lshl_add_u32 v35, v36, 5, v35')
    assert L_W2 == 0 and CFG.get('ew2', 1)
    for tau in range(8):
        A(f'v_xor_b32 v36, {tau * 32}, v35')
        for eh in range(2):
            A(f'ds_read_b64_tr_b16 {v2(192 + 4 * tau + 2 * eh)}, v36 offset:{eh * 4096}')
    A('v_and_b32 v42, 7, v1')
    A('v_mul_u32_u24 v34, 1040, v42')
    A('v_lshl_add_u32 v34, v2, 4, v34')
    A(f's_lshl_b32 s{sT2}, s{sT0}, 8')
    A(f's_add_u32 s{sT2}, s{sT2}, {L_H2}')
    A(f'v_add_u32 v34, s{sT2}, v34')
    A('v_mul_u32_u24 v35, 144, v42')
    A('v_lshl_add_u32 v35, v2, 4, v35')
    A(f's_mul_i32 s{sT2}, s{sT0}, 1216')
    A(f's_lshl_b32 s{sT3}, s{sT1}, 6')
    A(f's_add_u32 s{sT2}, s{sT2}, s{sT3}')
    A(f's_add_u32 s{sT2}, s{sT2}, {L_FP}')
    A(f'v_add_u32 v35, s{sT2}, v35')
    A('v_lshrrev_b32 v36, 2, v1')
    A('v_mul_u32_u24 v36, 1216, v36')
    A('v_mul_u32_u24 v43, 144, v38')
    A('v_add_u32 v36, v36, v43')
    A('v_lshl_add_u32 v36, v2, 5, v36')
    A(f'v_add_u32 v36, {L_FP}, v36')
    A('v_lshrrev_b32 v37, 1, v38')
    A('v_mul_u32_u24 v37, 7168, v37')
    A('v_and_b32 v43, 1, v38')
    A('v_lshl_add_u32 v37, v43, 6, v37')
    A('v_lshl_add_u32 v37, v2, 4, v37')
    A('v_lshrrev_b32 v43, 2, v1')
    A(f'v_mul_u32_u24 v43, {4 * 7168}, v43')
    A('v_add_u32 v37, v37, v43')
    A('v_lshlrev_b32 v50, 4, v38')
    A(f'v_add_u32 v50, {L_ST}, v50')
    A(f's_lshl_b32 s{sT2}, s{sW}, 3')
    A(f's_add_u32 s{sT2}, s{sT2}, {L_ST}')
    A(f'v_mov_b32 v51, s{sT2}')
    for t in range(4):
        A(f'ds_read_b128 {v4(64 + 4 * t)}, v34 offset:{4 * 1040 + 64 * t}')
    A('s_waitcnt lgkmcnt(0)')
    for t in range(4):
        c = '0' if t == 0 else 'v[80:83]'
        A(f'v_mfma_f32_16x16x32_bf16 v[80:83], {v4(128 + 4 * t)}, {v4(64 + 4 * t)}, {c}')
    exec_set(0x00ff00ff, 0x00ff00ff)
    A('ds_write_b128 v35, v[80:83]')
    exec_all()
    A('s_waitcnt lgkmcnt(0)')
    A('s_barrier')
    A('ds_read_b128 v[176:179], v36')
    A('ds_read_b128 v[180:183], v36 offset:16')
    A('ds_read_b128 v[184:187], v36 offset:576')
    A('ds_read_b128 v[188:191], v36 offset:592')
    A(f's_lshl_b32 s{sT2}, s{sT5}, 15')
    A(f's_lshl_b32 s{sT3}, s{sT0}, 13')
    A(f's_add_u32 s{sT2}, s{sT2}, s{sT3}')
    A(f's_lshl_b32 s{sT3}, s{sT1}, 9')
    A(f's_add_u32 s{sT2}, s{sT2}, s{sT3}')
    A(f's_add_u32 s{sT2}, s{sT2}, {OPART}')
    A(f's_add_u32 s{sT3}, s{sT2}, 4096')
    A(f's_lshl_b32 s{sT0}, s{sW}, 5')
    A(f's_lshl_b32 s{sT1}, s{sT5}, 1')
    A(f's_add_u32 s{sT0}, s{sT0}, s{sT1}')
    A(f's_mul_i32 s{sT0}, s{sT0}, 7168')
    A(f's_lshl_b32 s{sT1}, s{sT4}, 7')
    A(f's_add_u32 s{sT0}, s{sT0}, s{sT1}')
    A(f's_add_u32 s{sT0}, s{sT0}, {YP}')
    A(f's_mov_b32 s{sT1}, 0xff')
    for r in range(4):
        A(f'v_lshrrev_b32 v{40 + r}, {8 * r}, s{sE}')
    A('s_waitcnt lgkmcnt(0)')
    for sh in (8, 4):
        for i in range(16):
            A(f'v_add_f32_dpp v{176 + i}, v{176 + i}, v{176 + i} row_ror:{sh} {DPPM}')

    A('v_and_b32 v57, 31, v0')
    A('v_lshlrev_b32 v57, 4, v57')
    A('v_lshrrev_b32 v58, 5, v0')
    A('v_lshl_add_u32 v57, v58, 12, v57')

    def ldo():
        for k in range(4):
            A(f'buffer_load_dwordx4 {v4(64 + 4 * k)}, v57, {srd(sWS)}, s{sT2} offen offset:{1024 * k} sc1')
    if CFG.get('h3', 2) >= 0:
        sk = lab('nohw')
        A(f's_cmp_lg_u32 s{sW}, 0')
        A(f's_cbranch_scc1 {sk}')
        A(f's_lshl_b32 s{sKB}, s{sSID}, 7')
        A(f's_add_u32 s{sKB}, s{sKB}, {F3}')
        hint_wait(sKB, sT4P)
        A(f'{sk}:')
        A('s_barrier')
    TP(1)
    poll(ldo, range(64, 80, 2), 56, sleep=CFG.get('sl_o', 0), pre_sleep=CFG.get('sl_o0', 0))
    if not CFG.get('tsloop', 0):
        TS(10)
    TP(2)
    if CFG.get('h5', 0) == 0:
        hint_pub(F4 + 64, 6, 112, sKB)
    if CFG.get('h4', 2) == 0:
        hint_pub(F4, 7, 112, sKB)
    for i in range(16):
        A(f'v_lshlrev_b32 v{80 + i}, 16, v{64 + i}')
    for n in (8, 4):
        for b_ in (64, 80):
            for i in range(0, n, 2):
                A(f'v_pk_add_f32 {v2(b_ + i)}, {v2(b_ + i)}, {v2(b_ + n + i)}')
    for b_ in (80, 64):
        for i in range(2):
            A(f'v_permlane32_swap_b32 v{b_ + i}, v{b_ + 2 + i}')
    A('v_pk_add_f32 v[68:69], v[80:81], v[82:83]')
    A('v_pk_add_f32 v[64:65], v[64:65], v[66:67]')
    for i, r in enumerate((68, 64, 69, 65)):
        A(f'v_fma_f32 v{80 + i}, v{r}, v{164 + i}, v{160 + i}')
    for i in range(4):
        A(f'v_mul_f32 v{84 + i}, v{80 + i}, v{168 + i}')
    A('v_cvt_pk_bf16_f32 v88, v84, v85')
    A('v_cvt_pk_bf16_f32 v89, v86, v87')
    A('ds_write_b64 v39, v[88:89]')
    A('v_add_f32 v52, v80, v81')
    A('v_mul_f32 v53, v80, v80')
    A('v_add_f32 v54, v82, v83')
    A('v_fmac_f32 v53, v81, v81')
    A('v_add_f32 v52, v52, v54')
    A('v_fmac_f32 v53, v82, v82')
    A('v_fmac_f32 v53, v83, v83')
    TP(3)
    A('s_waitcnt lgkmcnt(0)')
    A('s_barrier')
    TP(4)
    for t in range(4):
        A(f'ds_read_b128 {v4(64 + 4 * t)}, v34 offset:{64 * t}')
    if CFG.get('h5', 0) == 1:
        hint_pub(F4 + 64, 6, 112, sKB)
    if CFG.get('h4', 2) == 1:
        hint_pub(F4, 7, 112, sKB)
    row_reduce('v_add_f32', [52, 53])
    for t in range(4):
        A(f's_waitcnt lgkmcnt({3 - t})')
        c = '0' if t == 0 else 'v[80:83]'
        A(f'v_mfma_f32_16x16x32_bf16 v[80:83], {v4(128 + 4 * t)}, {v4(64 + 4 * t)}, {c}')
    for r in (52, 53):
        A(f'v_add_f32_dpp v{r}, v{r}, v{r} row_bcast:15 row_mask:0xa bank_mask:0xf')
    for r in (52, 53):
        A(f'v_add_f32_dpp v{r}, v{r}, v{r} row_bcast:31 row_mask:0xc bank_mask:0xf')
    exec_set(0, 0x80000000)
    A('ds_write_b64 v51, v[52:53]')
    exec_set(0x000f000f, 0x000f000f)
    A('ds_write_b128 v35, v[80:83]')
    exec_all()
    TP(5)
    A('s_waitcnt lgkmcnt(0)')
    A('s_barrier')
    TP(6)
    A(f's_cmp_ge_u32 s{sW}, 4')
    A('s_cbranch_scc1 L_fin')
    A(f's_add_u32 s{sT2}, s{sT0}, {16 * 7168}')
    A('ds_read_b128 v[52:55], v50')
    A('ds_read_b128 v[64:67], v36')
    A('ds_read_b128 v[68:71], v36 offset:16')
    if CFG.get('h4', 2) == 2:
        hint_pub(F4, 7, 112, sKB)
    A('s_waitcnt lgkmcnt(2)')
    A('v_add_f32 v52, v52, v54')
    A('v_add_f32 v53, v53, v55')
    A('v_mul_f32 v52, 0x3b000000, v52')
    A('v_mul_f32 v53, 0x3b000000, v53')
    A('v_fma_f32 v53, -v52, v52, v53')
    A('v_max_f32 v53, 0, v53')
    A('v_add_f32 v53, 0x3727c5ac, v53')
    A('v_rsq_f32 v53, v53')
    A('s_waitcnt lgkmcnt(0)')
    for sh in (8, 4):
        for i in range(8):
            A(f'v_add_f32_dpp v{64 + i}, v{64 + i}, v{64 + i} row_ror:{sh} {DPPM}')
    A('v_mov_b32 v54, v53')
    A('v_mov_b32 v55, v53')
    A('v_sub_f32 v52, 0, v52')
    A('v_mov_b32 v53, v52')
    for i in range(0, 8, 2):
        A(f'v_pk_fma_f32 {v2(64 + i)}, v[52:53], {v2(176 + i)}, {v2(64 + i)}')
    for i in range(0, 8, 2):
        A(f'v_pk_fma_f32 {v2(64 + i)}, v[54:55], {v2(64 + i)}, {v2(184 + i)}')
    for i in range(4):
        A(f'v_cvt_pk_bf16_f32 v{72 + i}, v{64 + 2 * i}, v{65 + 2 * i}')
    for i in range(4):
        A(f'v_pk_max_i16 v{72 + i}, v{72 + i}, 0')
    TP(7)
    for tau in range(8):
        A(f'v_mfma_f32_16x16x32_bf16 {v4(80 + 4 * tau)}, {v4(192 + 4 * tau)}, v[72:75], 0')
    for k in range(2):
        d = 80 + 16 * k
        for tau in range(1, 4):
            for r in range(4):
                A(f'v_mov_b32_dpp v{d + r}, v{d + 4 * tau + r} quad_perm:[0,1,2,3] row_mask:0xf bank_mask:{1 << tau:#x}')
        for r in range(4):
            A(f'v_bfi_b32 v{d + r}, s{sT1}, v{40 + r}, v{d + r}')
        A(f'buffer_store_dwordx4 {v4(d)}, v37, {srd(sWS)}, s{(sT0, sT2)[k]} offen sc1')
    if CFG.get('h4', 2) == 3:
        hint_pub(F4, CFG.get('h4w', 0), 112, sKB)
    TP(8)


def epilogue():
    A('L_fin:')
    if CFG['ts']:
        A('s_waitcnt lgkmcnt(0)')
        A(f's_lshl_b32 s{sT0}, s2, 9')
        A(f's_lshl_b32 s{sT1}, s{sW}, 6')
        A(f's_add_u32 s{sT0}, s{sT0}, s{sT1}')
        A(f's_add_u32 s{sT0}, s{sT0}, {TSB}')
        A('v_mov_b32 v4, 0')
        for i in range(NTS):
            A(f'v_writelane_b32 v4, s{sTS + 2 * i}, {i}')
        A(f's_memtime s[{sT2}:{sT3}]')
        A(f's_memrealtime s[{sT4}:{sT5}]')
        A('s_waitcnt lgkmcnt(0)')
        A(f'v_writelane_b32 v4, s{sT2}, 12')
        A(f'v_writelane_b32 v4, s{sT4}, 13')
        A(f'v_writelane_b32 v4, s{sT4}, 11')
        A(f'v_writelane_b32 v4, s{sEX}, 14')
        A(f's_getreg_b32 s{sT1}, hwreg(HW_REG_XCC_ID)')
        A(f'v_writelane_b32 v4, s{sT1}, 15')
        A('v_lshlrev_b32 v5, 2, v0')
        exec_set(0xffff, 0)
        A(f'buffer_store_dword v4, v5, {srd(sWS)}, s{sT0} offen')
        if CFG.get('dbg', 0):
            exec_all()
            A(f's_load_dwordx2 s[{sT0}:{sT1}], s[0:1], 96')
            A(f's_mov_b32 s{sT2}, 256')
            A(f's_mov_b32 s{sT3}, 0x00020000')
            A(f'v_subrev_u32 v4, s{sTS}, v4')
            A('s_waitcnt lgkmcnt(0)')
            for wg, wv, lanes, base in ((8, 0, (1, 2, 5, 6, 7, 9, 10), 0), (8, 2, (11,), 7), (136, 0, (2, 3, 4, 8, 10), 8), (136, 4, (2, 3, 11), 13)):
                nx = lab('dbg')
                A(f's_cmp_lg_u32 s2, {wg}')
                A(f's_cbranch_scc1 {nx}')
                A(f's_cmp_lg_u32 s{sW}, {wv}')
                A(f's_cbranch_scc1 {nx}')
                for i, ln in enumerate(lanes):
                    A(f'v_mov_b32 v5, {4 * (base + i)}')
                    exec_set(1 << ln, 0)
                    A(f'buffer_store_dword v4, v5, s[{sT0}:{sT3}], 0 offen')
                    exec_all()
                A(f'{nx}:')
        if 'diag' in CFG:
            wg, wv, idx = [int(x) for x in str(CFG['diag']).split(',')]
            exec_all()
            A(f's_cmp_lg_u32 s2, {wg}')
            A('s_cbranch_scc1 L_end')
            A(f's_cmp_lg_u32 s{sW}, {wv}')
            A('s_cbranch_scc1 L_end')
            src_ = sT4 if idx == 11 else sTS + 2 * idx
            A(f's_sub_u32 s{sT0}, s{src_}, s{sTS}')
            A(f's_lshl_b32 s{sT0}, s{sT0}, 2')
            A(f's_add_u32 s{sT0}, s{sT0}, 5000')
            A(f's_min_u32 s{sT0}, s{sT0}, 30000')
            A('L_diag:')
            A(f's_memrealtime s[{sT2}:{sT3}]')
            A('s_waitcnt lgkmcnt(0)')
            A(f's_sub_u32 s{sT2}, s{sT2}, s{sTS}')
            A(f's_cmp_lt_u32 s{sT2}, s{sT0}')
            A('s_cbranch_scc1 L_diag')
    A('L_end:')
    A('s_endpgm')


def main():
    if CFG['ts']:
        for i in range(1, NTS):
            A(f's_mov_b32 s{sTS + 2 * i}, 0')
    prologue()
    att_front()
    service_issue()
    att_stub()
    att_p1()
    service_pre()
    t1()
    t2_final()
    pv_wave()
    qk_wave()
    t3_t4()
    epilogue()
    XSKIP = [srd({'w1': sW1, 'w2': sW2, 'wo': sWO, 'uv': sWUV}[k]) for k in str(CFG.get('xskip', '')).split(',') if k]
    A.lines = [l if not (l.startswith('buffer_load') and any(x in l for x in XSKIP)) else l.replace(', ' + [x for x in XSKIP if x in l][0], ', ' + srd(sX_)) for l in A.lines]
    body = A.finalize()
    ref = open(os.path.join(os.path.dirname(os.path.abspath(__file__)), '..', NAME + '.s.ref')).read()
    head = ref[:ref.index('; @launch')]
    out = head + f'; @launch grid=(256,1,1) block=(512,1,1) lds={LDS_BYTES}\n'
    if CFG['ts'] or CFG.get('lay', 0):
        out += '; @layout ' + ' '.join(f'{k}={globals()[k]}' for k in ('CS', 'MOD1', 'Q2', 'QA', 'MODL', 'STATS', 'CTX', 'OPART', 'YP', 'OP', 'TSB')) + '\n'
    out += f""".amdgcn_target "amdgcn-amd-amdhsa--gfx950"
.text
; ---------------------------------------------------------------------------------------------------------------
; Generated by gen/gen27.py (hand-written generator).  One persistent launch, 256 co-resident workgroups.
; Math: absorbed MLA (q_abs = q w_uk^T, scores = q_abs . c_kv, ctx = (P c_kv) w_uv), split-KV softmax merged with
;   exact (m, l) statistics.  Each split subtracts the max of its first key tile; a run-time check (largest exponent
;   seen > 64) re-runs the split with its exact max.  LayerNorm 2 is applied after the w1 product (linear rewrite).
; Roles: wg>>3 >= 16: attention (+ mod partials, FFN);  wg>>3 < 16: q / q_abs, merge + w_uv, w_o, output.
; Hand-offs go through d_ws: every datum carries its own validity (launch tag derived from ws[0], or a sentinel in a
;   region cleared earlier in the same launch); "hint" lines only choose when to read.  Stores are write-through
; ---------------------------------------------------------------------------------------------------------------
.globl {NAME}_kernel
.p2align {CFG.get('al', 12)}
.p2align 8
.type {NAME}_kernel,@function
{NAME}_kernel:
"""
    out += body
    out += 'L_code_end:\n'
    out += f""".section .rodata,"a"
.p2align 6
.amdhsa_kernel {NAME}_kernel
  .amdhsa_next_free_vgpr 256
  .amdhsa_next_free_sgpr 102
  .amdhsa_accum_offset 256
  .amdhsa_group_segment_fixed_size 0
  .amdhsa_kernarg_size 112
  .amdhsa_user_sgpr_count 2
  .amdhsa_user_sgpr_kernarg_segment_ptr 1
  .amdhsa_system_sgpr_workgroup_id_x 1
.end_amdhsa_kernel
"""
    open(sys.argv[1], 'w').write(out)


if __name__ == '__main__':
    main()
```
